```python
import torch

def _softmax(x, axis=-1):
    return torch.softmax(x, dim=axis)
def _gelu(x):
    return torch.nn.functional.gelu(x, approximate="tanh")
def _silu(x):
    return torch.nn.functional.silu(x)
def _sigmoid(x):
    return torch.sigmoid(x)
def _layernorm(x, axis=-1, eps=1e-5):
    m = x.mean(dim=axis, keepdim=True)
    v = x.var(dim=axis, keepdim=True, unbiased=False)
    return (x - m) / torch.sqrt(v + eps)
def _scatter_add(tgt, idx, src, axis=0):
    return tgt.clone().index_add_(axis, idx, src)
def _segment_sum(src, seg, n):
    out = torch.zeros((n,) + src.shape[1:], dtype=src.dtype)
    return out.index_add_(0, seg, src)
def _pad(x, pw):
    flat = tuple(v for pair in reversed(pw) for v in pair)
    return torch.nn.functional.pad(x, flat)

kernel_name = 'standalone__mha_softmax__near_ridge'

def setup_inputs():

    _w = (lambda a: (lambda t: t.to(torch.bfloat16) if t.is_floating_point() else t)(torch.as_tensor(a)))
    B, H, Sq, Sk, D = 8, 32, 256, 2048, 128
    return {
        "q": _w((lambda *s: torch.randn(*s, dtype=torch.bfloat16) * 0.8)(B, H, Sq, D)),
        "k": _w((lambda *s: torch.randn(*s, dtype=torch.bfloat16) * 0.8)(B, H, Sk, D)),
        "v": _w((lambda *s: torch.randn(*s, dtype=torch.bfloat16) * 0.05)(B, H, Sk, D)),
    }

def reference(q, k, v):
    scale = q.shape[-1] ** -0.5
    scores = torch.einsum("bhqd,bhkd->bhqk", q, k) * scale
    p = _softmax(scores, axis=-1)
    return torch.einsum("bhqk,bhkd->bhqd", p, v)
```

```python
import re
TRANS = ("v_exp_f32", "v_log_f32", "v_rcp_f32", "v_rsq_f32", "v_sqrt_f32", "v_sin_f32", "v_cos_f32")
def regs(tok):
    tok = tok.strip()
    tok = tok.lstrip("-")
    if tok.startswith("abs("): tok = tok[4:-1]
    if tok.startswith("|"): tok = tok.strip("|")
    m = re.fullmatch(r"([vas])(\d+)", tok)
    if m: return {(m.group(1), int(m.group(2)))}
    m = re.fullmatch(r"([vas])\[(\d+):(\d+)\]", tok)
    if m: return {(m.group(1), i) for i in range(int(m.group(2)), int(m.group(3)) + 1)}
    if tok == "vcc": return {("s", "vcc")}
    if tok == "m0": return {("s", "m0")}
    if tok == "exec": return {("s", "exec")}
    return set()
class I:
    def __init__(s, text):
        s.text = text
        t = text.split(";")[0].strip()
        parts = t.split(None, 1)
        s.op = parts[0] if parts else ""
        ops = []
        if len(parts) > 1:
            ops = [x.strip() for x in parts[1].split(",")]
            if ops:
                last = ops[-1].split()
                ops[-1] = last[0] if last else ""
                s.mods = last[1:]
        else:
            s.mods = []
        s.ops = ops
        op = s.op
        s.kind = "other"
        s.w = set(); s.r = set(); s.a = set(); s.b = set(); s.c = set(); s.states = 1
        if op.startswith("v_mfma"):
            s.kind = "mfma"; s.w = regs(ops[0]); s.a = regs(ops[1]); s.b = regs(ops[2]); s.c = regs(ops[3]); s.r = s.a | s.b | s.c
            s.passes = 8 if "32x32" in op else 4
        elif op.startswith("v_permlane"):
            s.kind = "valu"; s.w = regs(ops[0]) | regs(ops[1]); s.r = set(s.w)
        elif op.startswith("v_cmp"):
            s.kind = "valu"; s.w = regs(ops[0]); s.r = set().union(*[regs(x) for x in ops[1:]])
        elif op.startswith("v_"):
            s.kind = "valu"; s.w = regs(ops[0]); s.r = set().union(*[regs(x) for x in ops[1:]]) if len(ops) > 1 else set()
            if op.startswith("v_fmac") or op.startswith("v_dot2c"): s.r |= s.w
            if op.startswith("v_cndmask") and len(ops) == 3: s.r |= {("s", "vcc")}
        elif op.startswith("ds_read"):
            s.kind = "dsr"; s.w = regs(ops[0]); s.r = regs(ops[1])
        elif op.startswith("ds_write"):
            s.kind = "dsw"; s.r = set().union(*[regs(x) for x in ops])
        elif op.startswith("buffer_load") or op.startswith("global_load"):
            if "lds" in s.mods:
                s.kind = "dma"; s.r = set().union(*[regs(x) for x in ops]) | {("s", "m0")}
            else:
                s.kind = "vload"; s.w = regs(ops[0]); s.r = set().union(*[regs(x) for x in ops[1:]])
        elif op.startswith("buffer_store") or op.startswith("global_store"):
            s.kind = "vstore"; s.r = set().union(*[regs(x) for x in ops]); s.data = regs(ops[0]) if op.startswith("buffer") else regs(ops[1])
        elif op == "s_nop":
            s.kind = "nop"; s.states = int(ops[0], 0) + 1
        elif op == "s_waitcnt":
            s.kind = "wait"
            m = re.search(r"lgkmcnt\((\d+)\)", t); s.lgkm = int(m.group(1)) if m else None
            m = re.search(r"vmcnt\((\d+)\)", t); s.vm = int(m.group(1)) if m else None
        elif op.startswith("s_load") or op.startswith("s_memtime") or op.startswith("s_memrealtime"):
            s.kind = "smem"; s.w = regs(ops[0])
        elif op.startswith("s_"):
            s.kind = "salu"
            if op.startswith("s_cmp") or op.startswith("s_cbranch") or op in ("s_barrier", "s_branch", "s_endpgm", "s_setprio"):
                s.r = set().union(*[regs(x) for x in ops]) if ops else set()
            else:
                s.w = regs(ops[0]); s.r = set().union(*[regs(x) for x in ops[1:]]) if len(ops) > 1 else set()
        s.trans = any(op.startswith(x) for x in TRANS)

def check(lines, name="", verbose=True):
    ins = []
    for l in lines:
        for x in l.split("\n"):
            x = x.strip()
            if not x or x.startswith(";") or x.startswith(".") or x.split(";")[0].strip().endswith(":"): continue
            ins.append(I(x))
    errs = []
    n = len(ins)
    for i, p in enumerate(ins):
        dist = 0
        for j in range(i + 1, min(n, i + 24)):
            c = ins[j]
            need = 0; why = ""
            if p.kind == "mfma":
                big = 12 if p.passes == 8 else 8
                if c.kind == "mfma":
                    if p.w & (c.a | c.b): need, why = big, "mfma D->A/B"
                    elif p.w & c.c and not (p.w == c.c and p.passes == c.passes): need, why = big - 2, "mfma D->C partial"
                elif c.kind in ("valu", "dsr", "dsw", "vload", "vstore", "dma"):
                    if p.w & (c.r | c.w): need, why = big, "mfma D->valu/mem"
                    elif c.kind == "valu" and p.c & c.w: need, why = (7 if p.passes == 8 else 3), "mfma C WAR"
            if p.kind == "valu":
                vw = {x for x in p.w if x[0] in "va"}
                sw = {x for x in p.w if x[0] == "s"}
                if c.kind == "mfma" and vw & c.r: need, why = max(need, 2), "valu->mfma"
                if c.op.startswith("v_permlane") and vw & c.r: need, why = max(need, 2), "valu->permlane"
                if (c.op.startswith("v_readfirstlane") or c.op.startswith("v_readlane")) and vw & c.r: need, why = max(need, 1), "valu->readlane"
                if p.trans and c.kind == "valu" and not c.trans and vw & c.r: need, why = max(need, 1), "trans->valu"
                if "dpp" in c.text or "row_" in c.text or "quad_perm" in c.text:
                    if vw & c.r: need, why = max(need, 2), "valu->dpp"
                if sw and c.kind in ("vload", "vstore", "dma") and sw & c.r: need, why = max(need, 5), "valu sgpr->vmem"
                if sw and c.kind == "valu" and sw & c.r: need, why = max(need, 2), "valu sgpr->valu"
            if p.kind == "salu" and ("s", "m0") in p.w and c.kind == "dma": need, why = 1, "m0->dma"
            if p.kind == "vstore" and ("x4" in p.op or "x3" in p.op) and p.data & c.w: need, why = 2, "store data WAR"
            if need > dist:
                errs.append("%s: %s need %d have %d:\n   [%d] %s\n   [%d] %s" % (name, why, need, dist, i, p.text, j, c.text))
            dist += c.states
    pend = []
    for i, c in enumerate(ins):
        if c.kind == "wait" and c.lgkm is not None:
            while len(pend) > c.lgkm: pend.pop(0)
        use = c.r | c.w
        for (k, rg) in pend:
            if rg & use:
                errs.append("%s: lds result used before wait:\n   [%d] %s\n   [%d] %s" % (name, k, ins[k].text, i, c.text))
        if c.kind == "dsr": pend.append((i, c.w))
        elif c.kind == "dsw": pend.append((i, set()))
        elif c.kind == "smem": pend.append((i, c.w))
    pend = []
    for i, c in enumerate(ins):
        if c.kind == "wait" and c.vm is not None:
            while len(pend) > c.vm: pend.pop(0)
        use = c.r | c.w
        for (k, rg) in pend:
            if rg & use:
                errs.append("%s: vmem result used before wait:\n   [%d] %s\n   [%d] %s" % (name, k, ins[k].text, i, c.text))
        if c.kind == "vload": pend.append((i, c.w))
        elif c.kind in ("dma", "vstore"): pend.append((i, set()))
    if verbose:
        for e in errs[:6]: print(e)
        if errs: print("%s: %d hazard problems" % (name, len(errs)))
    return errs
```

```python
import sys, struct
import hazards

KN = "standalone__mha_softmax__near_ridge_kernel"
SLOT = 16640
STAGE = 2 * SLOT
FLAG_OFF = 9 * SLOT
LDS_BYTES = 9 * SLOT + 64

def f32(x): return "0x%08x" % struct.unpack("<I", struct.pack("<f", x))[0]

def vO(qb, db): return 128 + qb * 64 + db * 16
def vS(qb): return 64 + 16 * qb
def vNM(qb): return 96 + 16 * qb
def vP(qb): return 48 + 8 * qb
vDMA = 2
vK = 6
vV = 8
def vL(qb): return 10 + qb
def vM(qb): return 12 + qb
vOA = 14
vT = 16
def aQ(qb, t): return qb * 32 + t * 4
def aK(t): return 64 + 4 * t
def aV(i): return 96 + 4 * i
def R(p, b, n): return "%s[%d:%d]" % (p, b, b + n - 1)

sW = 3
sQ, sK, sV, sO = 4, 8, 12, 16
sSOK, sSOV = 20, 21
sWL = 22
sCNT = 23
sPASS = 32
sC = 34
sT = 36

class Gen:
    def __init__(s, L=5, ld="nt", st="", stamps=0, bias=10.0, thr=2.0 ** 40, nodma=0, nobar=0, novalu=0, nolds=0, warm=0, rot=0):
        s.__dict__.update(locals())
        s.lines = []
    def A(s, x): s.lines.append(x)

    def dma_group(s, g_slot, srd, soff, m0expr=None):
        out = ["s_add_u32 m0, s%d, %d" % (sWL, g_slot * SLOT) if m0expr is None else m0expr]
        for i in range(4):
            out.append("buffer_load_dwordx4 v%d, %s, %s offen offset:%d %s lds" % (vDMA + i, R("s", srd, 4), soff, i * 1040, s.ld))
        return out

    def kread(s, stage, kb, t):
        return "ds_read_b128 %s, v%d offset:%d" % (R("a", aK(t), 4), vK + (stage >> 1), (stage & 1) * STAGE + kb * 512 + t * 32)
    def vread(s, stage, kb, r):
        i, u = r >> 1, r & 1
        ks, db = i >> 2, i & 3
        return "ds_read_b64_tr_b16 %s, v%d offset:%d" % (R("a", aV(i) + 2 * u, 2), vV + (stage >> 1), (stage & 1) * STAGE + u * 2080 + (2 * kb + ks) * 256 + db * 64)
    def qk(s, qb, t, zero=False):
        c = R("v", vS(qb), 16) if t else ("0" if zero else R("v", vNM(qb), 16))
        return "v_mfma_f32_32x32x16_bf16 %s, %s, %s, %s" % (R("v", vS(qb), 16), R("a", aK(t), 4), R("a", aQ(qb, t), 4), c)
    def pv(s, qb, i):
        ks, db = i >> 2, i & 3
        o = R("v", vO(qb, db), 16)
        return "v_mfma_f32_32x32x16_bf16 %s, %s, %s, %s" % (o, R("a", aV(i), 4), R("v", vP(qb) + 4 * ks, 4), o)

    def sm_ops(s, gap):
        out = []
        for qb, base in ((0, 10), (1, 26), (1, -6)):
            tag = "prev" if base < 0 else "cur"
            e = gap - base
            S = vS(qb)
            ops = []
            if 0 <= e < 16: ops.append("v_exp_f32 v%d, v%d" % (S + e, S + e))
            if 0 <= e - 1 < 16: ops.append("v_add_f32 v%d, v%d, v%d" % (vL(qb), vL(qb), S + e - 1))
            if e >= 2 and e % 2 == 0 and e - 2 < 16:
                ops.append("v_cvt_pk_bf16_f32 v%d, v%d, v%d" % (vP(qb) + (e - 2) // 2, S + e - 2, S + e - 1))
            out += [(tag, o) for o in ops]
        out.sort(key=lambda x: 0 if "exp" in x[1] else 1)
        return out

    def period(s, tile4, kb, last=False, tail=False):
        L = s.L
        fill = [[] for _ in range(32)]
        for g in range(32):
            for tag, o in s.sm_ops(g):
                if tail and tag != "prev": continue
                if not s.novalu: fill[g].append(o)
        if not tail:
            r = 0
            for g in range(8, 19):
                for _ in range(1 if g % 2 == 0 else 2):
                    if r < 16:
                        if not s.nolds: fill[g].append(s.vread(tile4, kb, r))
                        r += 1
            nst, nkb = (tile4, 1) if kb == 0 else ((tile4 + 1) & 3, 0)
            t = 0
            for g, c in ((24, 1), (25, 2), (26, 1), (27, 2), (28, 1), (29, 1)):
                for _ in range(c):
                    if not s.nolds: fill[g].append(s.kread(nst, nkb, t))
                    t += 1
            fill[2].append("s_waitcnt lgkmcnt(0)")
            if kb == 1:
                fill[23].append("s_waitcnt vmcnt(%d) lgkmcnt(0)" % (4 * (L - 2)))
                if not s.nobar: fill[23].append("s_barrier")
            else:
                fill[23].append("s_waitcnt lgkmcnt(0)")
            fill[31].append("s_waitcnt lgkmcnt(4)")
            g = (2 * tile4 + kb + L) & 7
            isK = (g & 1) == 0
            d = s.dma_group(g, sK if isK else sV, "s%d" % (sSOK if isK else sSOV))
            if not s.nodma:
                fill[0].append(d[0])
                for i in range(4): fill[1 + 2 * i].append(d[1 + i])
            so = sSOK if isK else sSOV
            fill[19].append("s_add_u32 s%d, s%d, 0x4000" % (so, so))
            if s.rot:
                fill[20].append("s_and_b32 s%d, s%d, 0x7ffff" % (so, so))
            if last:
                fill[21].append("s_sub_u32 s%d, s%d, 1" % (sCNT, sCNT))
                fill[30].append("s_cmp_lg_u32 s%d, 0" % sCNT)
        if tail: fill[11].append("s_nop 0")
        for pos in range(32):
            if pos < 8: m = None if tail else s.qk(0, pos)
            elif pos < 16: m = s.pv(1, pos - 8)
            elif pos < 24: m = None if tail else s.qk(1, pos - 16)
            else: m = None if tail else s.pv(0, pos - 24)
            if m: s.A(m)
            for o in fill[pos]: s.A(o)

    def stamp(s, idx):
        if s.stamps: s.A("s_memtime s[%d:%d]" % (48 + 2 * idx, 49 + 2 * idx))

    def build(s):
        A = s.A
        L = s.L
        A("; @launch grid=(256,1,1) block=(256,1,1) lds=%d" % LDS_BYTES)
        A('.amdgcn_target "amdgcn-amd-amdhsa--gfx950"')
        A(".text")
        A(".globl %s\n.p2align 8\n.type %s,@function\n%s:" % (KN, KN, KN))
        A("s_cmp_ge_u32 s2, 256\ns_cbranch_scc1 L_end")
        if s.stamps: A("s_memrealtime s[40:41]\ns_memtime s[44:45]")
        A("s_load_dwordx4 s[24:27], s[0:1], 0\ns_load_dwordx4 s[28:31], s[0:1], 16")
        if s.stamps: A("s_load_dwordx2 s[64:65], s[0:1], 40")
        A("v_lshrrev_b32 v1, 6, v0\nv_and_b32 v0, 63, v0\ns_nop 0\nv_readfirstlane_b32 s%d, v1" % sW)
        if s.warm:
            A("s_getpc_b64 s[36:37]\nL_pc:")
            A("v_lshl_add_u32 v1, v1, 6, v0\nv_lshlrev_b32 v1, 6, v1\nglobal_load_dword v47, v1, s[36:37]")
        A("v_lshrrev_b32 v16, 4, v0\nv_lshlrev_b32 v16, 12, v16\nv_and_b32 v17, 15, v0\nv_lshl_add_u32 v16, v17, 4, v16")
        A("s_lshl_b32 s%d, s%d, 8\ns_mul_i32 s%d, s%d, 4160" % (sT, sW, sWL, sW))
        A("v_add_u32 v%d, s%d, v16" % (vDMA + 3, sT))
        for i in range(3): A("v_add_u32 v%d, %d, v%d" % (vDMA + i, 16 * (3 - i), vDMA + 3))
        A("s_waitcnt lgkmcnt(0)")
        A("s_lshl_b32 s%d, s2, 16" % sT)
        A("s_add_u32 s%d, s30, s%d\ns_addc_u32 s%d, s31, 0\ns_mov_b32 s%d, 0x10000\ns_mov_b32 s%d, 0x20000" % (sO, sT, sO + 1, sO + 2, sO + 3))
        A("s_sub_u32 s24, s24, 48\ns_subb_u32 s25, s25, 0\ns_sub_u32 s26, s26, 48\ns_subb_u32 s27, s27, 0\ns_sub_u32 s28, s28, 48\ns_subb_u32 s29, s29, 0")
        A("s_add_u32 s%d, s24, s%d\ns_addc_u32 s%d, s25, 0\ns_mov_b32 s%d, 0x10030\ns_mov_b32 s%d, 0x20000" % (sQ, sT, sQ + 1, sQ + 2, sQ + 3))
        A("s_lshl_b32 s%d, s2, 19" % sT)
        A("s_add_u32 s%d, s26, s%d\ns_addc_u32 s%d, s27, 0\ns_mov_b32 s%d, 0x80030\ns_mov_b32 s%d, 0x20000" % (sK, sT, sK + 1, sK + 2, sK + 3))
        A("s_add_u32 s%d, s28, s%d\ns_addc_u32 s%d, s29, 0\ns_mov_b32 s%d, 0x80030\ns_mov_b32 s%d, 0x20000" % (sV, sT, sV + 1, sV + 2, sV + 3))
        A("s_mov_b32 s%d, 0" % sPASS)
        A("v_mov_b32 v%d, 0xff800000\nv_mov_b32 v%d, 0xff800000" % (vM(0), vM(1)))
        A("L_start:")
        A("s_mul_i32 s%d, s%d, %d\ns_add_u32 s%d, s%d, %d" % (sT, sW, SLOT, sT, sT, 5 * SLOT))
        A("s_mul_i32 s%d, s%d, 16128" % (sT + 1, sW))
        for w2 in range(4):
            d = s.dma_group(0, sQ, "s%d" % (sT + 1), m0expr="s_add_u32 m0, s%d, %d" % (sT, w2 * 4160))
            A(d[0]); A("s_nop 0")
            for x in d[1:]: A(x)
            if w2 < 3: A("s_add_u32 s%d, s%d, 256" % (sT + 1, sT + 1))
        A("s_mov_b32 s%d, 0\ns_mov_b32 s%d, 0" % (sSOK, sSOV))
        def issue_group(g):
            isK = (g & 1) == 0
            so = sSOK if isK else sSOV
            d = s.dma_group(g & 7, sK if isK else sV, "s%d" % so)
            return [d[0], "s_nop 0"] + d[1:] + ["s_add_u32 s%d, s%d, 0x4000" % (so, so)]
        for x in issue_group(0): A(x)
        A("v_and_b32 v16, 3, v0\nv_bfe_u32 v17, v0, 2, 2\nv_lshl_add_u32 v18, v16, 2, v17\nv_mul_u32_u24 v18, 1040, v18")
        A("v_bfe_u32 v19, v0, 4, 1\nv_lshl_add_u32 v18, v19, 8, v18\nv_lshrrev_b32 v20, 5, v0\nv_lshl_add_u32 v%d, v20, 4, v18" % vK)
        A("v_add_u32 v%d, %d, v%d" % (vK + 1, 2 * STAGE, vK))
        A("v_add_u32 v15, s%d, v%d" % (sT, vK))
        A("v_lshl_add_u32 v18, v17, 2, v20\nv_mul_u32_u24 v18, 1040, v18\nv_lshl_add_u32 v18, v19, 5, v18")
        A("v_and_b32 v21, 1, v0\nv_lshl_add_u32 v18, v21, 4, v18\nv_bfe_u32 v21, v0, 1, 1\nv_lshl_add_u32 v18, v21, 3, v18")
        A("v_add_u32 v%d, %d, v18\nv_add_u32 v%d, %d, v18" % (vV, SLOT, vV + 1, SLOT + 2 * STAGE))
        A("v_and_b32 v18, 31, v0\nv_lshlrev_b32 v18, 8, v18\nv_lshl_add_u32 v18, v20, 4, v18\ns_lshl_b32 s%d, s%d, 14\nv_add_u32 v%d, s%d, v18" % (sT + 1, sW, vOA, sT + 1))
        c = 1.4426950408889634 / (128.0 ** 0.5)
        A("s_mov_b32 s%d, %s\ns_mov_b32 s%d, %s" % (sC, f32(c), sC + 1, f32(c)))
        A("s_mov_b32 s%d, 8" % sCNT)
        for i in range(64): A("v_mov_b32 v%d, 0" % (192 + i))
        for i in range(32): A("v_accvgpr_write_b32 a%d, 0" % (aV(0) + i))
        for i in range(8): A("v_mov_b32 v%d, 0" % (vP(1) + i))
        A("v_mov_b32 v%d, 0\nv_mov_b32 v%d, 0" % (vL(0), vL(1)))
        s.stamp(0)
        A("s_waitcnt vmcnt(4)")
        s.stamp(1)
        pend = []
        for g in range(1, min(L, 5)): pend.append(issue_group(g))
        for qb in range(2):
            for t in range(8):
                A("ds_read_b128 %s, v15 offset:%d" % (R("v", 128 + qb * 32 + t * 4, 4), qb * 512 + t * 32))
            if qb == 0 and pend:
                for x in pend.pop(0): A(x)
            if qb == 0: A("s_waitcnt lgkmcnt(0)")
        for f in range(16):
            if f == 7: A("s_waitcnt lgkmcnt(0)")
            b = 128 + 4 * f
            for i in range(4):
                A("v_lshlrev_b32 v%d, 16, v%d\nv_and_b32 v%d, 0xffff0000, v%d" % (vT + 2 * i, b + i, vT + 2 * i + 1, b + i))
            for i in range(4):
                A("v_pk_mul_f32 %s, %s, %s" % (R("v", vT + 2 * i, 2), R("v", vT + 2 * i, 2), R("s", sC, 2)))
            for i in range(4):
                A("v_cvt_pk_bf16_f32 v%d, v%d, v%d" % (vT + 8 + i, vT + 2 * i, vT + 2 * i + 1))
            for i in range(4):
                A("v_accvgpr_write_b32 a%d, v%d" % (4 * f + i, vT + 8 + i))
            for i in range(4):
                A("v_mov_b32 v%d, 0" % (b + i))
            if f % 4 == 3 and pend:
                for x in pend.pop(0): A(x)
        assert not pend
        nissued = min(L, 5)
        s.stamp(2)
        A("s_waitcnt vmcnt(%d)" % (4 * (nissued - 2)))
        A("s_barrier")
        s.stamp(3)
        for t in range(8): A(s.kread(0, 0, t))
        for g in range(nissued, L):
            for x in issue_group(g): A(x)
        A("s_waitcnt lgkmcnt(0)")
        for qb in range(2):
            for t in range(8): A(s.qk(qb, t, zero=True))
        A("s_nop 7")
        for qb in range(2):
            if qb == 1: A("s_nop 3")
            S = vS(qb)
            for i in range(8):
                A("v_max3_f32 v%d, v%d, v%d, v%d" % (vM(qb), vM(qb), S + 2 * i, S + 2 * i + 1))
        for qb in range(2): A("v_mov_b32 v%d, v%d" % (vT + qb, vM(qb)))
        A("s_nop 0")
        for qb in range(2): A("v_permlane32_swap_b32 v%d, v%d" % (vT + qb, vM(qb)))
        A("s_nop 0")
        for qb in range(2): A("v_max_f32 v%d, v%d, v%d" % (vM(qb), vM(qb), vT + qb))
        A("s_mov_b32 s%d, %s" % (sT, f32(-s.bias)))
        for qb in range(2): A("v_sub_f32 v%d, s%d, v%d" % (vNM(qb), sT, vM(qb)))
        for qb in range(2):
            for i in range(1, 16): A("v_mov_b32 v%d, v%d" % (vNM(qb) + i, vNM(qb)))
        for i in range(16): A("v_mov_b32 v%d, %s" % (vS(1) + i, "0" if i < 6 else "0xff800000"))
        s.stamp(4)
        A(".p2align 6")
        A("L_loop:")
        n0 = len(s.lines)
        for T in range(4):
            for kb in range(2):
                s.period(T, kb, last=(T == 3 and kb == 1))
        body = s.lines[n0:]
        A("s_cbranch_scc1 L_loop")
        s.stamp(5)
        s.period(0, 0, tail=True)
        for qb in range(2): A("v_mov_b32 v%d, v%d" % (vT + qb, vL(qb)))
        A("s_nop 0")
        for qb in range(2): A("v_permlane32_swap_b32 v%d, v%d" % (vT + qb, vL(qb)))
        A("s_nop 0")
        for qb in range(2): A("v_add_f32 v%d, v%d, v%d" % (vL(qb), vL(qb), vT + qb))
        for qb in range(2): A("v_rcp_f32 v%d, v%d" % (vT + 2 * qb, vL(qb)))
        A("s_mov_b32 s%d, %s" % (sT, f32(s.thr)))
        A("v_mov_b32 v%d, v%d\nv_mov_b32 v%d, v%d" % (vT + 1, vT, vT + 3, vT + 2))
        A("v_cmp_nge_f32 s[38:39], s%d, v%d" % (sT, vL(0)))
        A("v_cmp_nge_f32 vcc, s%d, v%d" % (sT, vL(1)))
        A("s_mov_b32 s%d, 8192" % (sT + 1))
        k = 0
        for qb in range(2):
            if qb == 1: A("s_nop 3")
            for db in range(4):
                for dh in range(2):
                    o = vO(qb, db) + 8 * dh
                    tb = vT + 4 + 4 * (k % 4); k += 1
                    for i in range(4):
                        A("v_pk_mul_f32 %s, %s, %s" % (R("v", o + 2 * i, 2), R("v", o + 2 * i, 2), R("v", vT + 2 * qb, 2)))
                    for i in range(4):
                        A("v_cvt_pk_bf16_f32 v%d, v%d, v%d" % (tb + i, o + 2 * i, o + 2 * i + 1))
                    A("buffer_store_dwordx4 %s, v%d, %s, %s offen offset:%d %s" % (R("v", tb, 4), vOA, R("s", sO, 4), "s%d" % (sT + 1) if qb else "0", db * 64 + dh * 32, s.st))
        s.stamp(6)
        A("s_cmp_lg_u32 s%d, 0\ns_cbranch_scc1 L_fin" % sPASS)
        A("s_or_b64 vcc, vcc, s[38:39]\ns_cmp_lg_u64 vcc, 0\ns_cselect_b32 s%d, 1, 0" % sT)
        A("s_lshl_b32 s%d, s%d, 2\ns_add_u32 s%d, s%d, %d" % (sT + 1, sW, sT + 1, sT + 1, FLAG_OFF))
        A("v_mov_b32 v%d, s%d\nv_mov_b32 v%d, s%d\nv_mov_b32 v%d, %d" % (vT, sT, vT + 1, sT + 1, vT + 2, FLAG_OFF))
        A("ds_write_b32 v%d, v%d\ns_waitcnt lgkmcnt(0)\ns_barrier" % (vT + 1, vT))
        A("ds_read_b128 %s, v%d\ns_waitcnt lgkmcnt(0)" % (R("v", vT + 24, 4), vT + 2))
        A("v_or3_b32 v%d, v%d, v%d, v%d\nv_or_b32 v%d, v%d, v%d\ns_nop 1" % (vT, vT + 24, vT + 25, vT + 26, vT, vT, vT + 27))
        A("v_readfirstlane_b32 s%d, v%d\ns_nop 3\ns_cmp_eq_u32 s%d, 0\ns_cbranch_scc1 L_fin" % (sT, vT, sT))
        A("s_mov_b32 s%d, 1\ns_mov_b32 s%d, 0" % (sPASS, sSOK))
        A("s_waitcnt vmcnt(0)")
        A("L_maxpass:")
        A("s_barrier")
        d = s.dma_group(0, sK, "s%d" % sSOK)
        A(d[0]); A("s_nop 0")
        for x in d[1:]: A(x)
        A("s_waitcnt vmcnt(0)\ns_barrier")
        for kb in range(2):
            for t in range(8): A(s.kread(0, kb, t))
            A("s_waitcnt lgkmcnt(0)")
            for qb in range(2):
                for t in range(8): A(s.qk(qb, t, zero=True))
            A("s_nop 11")
            for qb in range(2):
                S = vS(qb)
                for i in range(8):
                    A("v_max3_f32 v%d, v%d, v%d, v%d" % (vM(qb), vM(qb), S + 2 * i, S + 2 * i + 1))
        A("s_add_u32 s%d, s%d, 0x4000\ns_cmp_lt_u32 s%d, 0x80000\ns_cbranch_scc1 L_maxpass" % (sSOK, sSOK, sSOK))
        A("s_barrier\ns_branch L_start")
        A("L_fin:")
        if s.stamps:
            A("s_waitcnt vmcnt(0)")
            A("s_memrealtime s[42:43]\ns_memtime s[46:47]\ns_getreg_b32 s62, hwreg(HW_REG_XCC_ID)\ns_mov_b32 s63, 0\ns_waitcnt lgkmcnt(0)")
            A("s_mov_b32 s68, s64\ns_mov_b32 s69, s65\ns_mov_b32 s70, 0x100000\ns_mov_b32 s71, 0x20000")
            A("s_lshl_b32 s37, s2, 2\ns_add_u32 s37, s37, s3\ns_mul_i32 s37, s37, 96\nv_mov_b32 v3, s37")
            for j, r in enumerate([40, 42, 44, 46] + list(range(48, 64, 2))):
                A("v_mov_b32 v8, s%d\nv_mov_b32 v9, s%d" % (r, r + 1))
                A("buffer_store_dwordx2 v[8:9], v3, s[68:71], 0 offen offset:%d" % (j * 8))
                A("s_nop 1")
        A("L_end:\ns_endpgm")
        A('.section .rodata,"a"\n.p2align 6\n.amdhsa_kernel %s' % KN)
        A("  .amdhsa_next_free_vgpr 384\n  .amdhsa_next_free_sgpr 102\n  .amdhsa_accum_offset 256\n  .amdhsa_group_segment_fixed_size 0\n  .amdhsa_kernarg_size 48\n  .amdhsa_user_sgpr_count 2\n  .amdhsa_user_sgpr_kernarg_segment_ptr 1\n  .amdhsa_system_sgpr_workgroup_id_x 1\n  .amdhsa_float_denorm_mode_32 3\n.end_amdhsa_kernel")
        errs = hazards.check(s.lines, "linear") + hazards.check(body + body, "loop")
        return "\n".join(s.lines) + "\n", errs

def gen(name, **kw):
    txt, errs = Gen(**kw).build()
    open(name, "w").write(txt)
    return errs

if __name__ == "__main__":
    import ast
    name = sys.argv[1]
    kw = {}
    for a in sys.argv[2:]:
        k, v = a.split("=", 1)
        try: kw[k] = ast.literal_eval(v)
        except Exception: kw[k] = v
    e = gen(name, **kw)
    print(name, "hazards:", len(e))
```

```python
import sys, struct
import hazards

KN = "standalone__mha_softmax__near_ridge_kernel"
SLOT = 16640
STAGE = 2 * SLOT
FLAG_OFF = 9 * SLOT
LDS_BYTES = 9 * SLOT + 64

def f32(x): return "0x%08x" % struct.unpack("<I", struct.pack("<f", x))[0]

def vO(qb, db): return 128 + qb * 64 + db * 16
def vS(qb): return 64 + 16 * qb
def vNM(qb): return 96 + 16 * qb
def vP(qb): return 48 + 8 * qb
vDMA = 2
vK = 6
vV = 8
def vL(qb): return 10 + qb
def vM(qb): return 12 + qb
vOA = 14
vT = 16
def aQ(qb, t): return qb * 32 + t * 4
def aK(t): return 64 + 4 * t
def aV(i): return 96 + 4 * i
def R(p, b, n): return "%s[%d:%d]" % (p, b, b + n - 1)

sW = 3
sQ, sK, sV, sO = 4, 8, 12, 16
sSOK, sSOV = 20, 21
sWL = 22
sCNT = 23
sPASS = 32
sC = 34
sT = 36

class Gen:
    def __init__(s, L=5, ld="nt", st="", stamps=0, bias=10.0, thr=2.0 ** 40, nodma=0, nobar=0, novalu=0, nolds=0, warm=0, rot=0, probe=None, dbg=None):
        s.__dict__.update(locals())
        s.lines = []
    def A(s, x): s.lines.append(x)

    def dma_group(s, g_slot, srd, soff, m0expr=None):
        out = ["s_add_u32 m0, s%d, %d" % (sWL, g_slot * SLOT) if m0expr is None else m0expr]
        for i in range(4):
            out.append("buffer_load_dwordx4 v%d, %s, %s offen offset:%d %s lds" % (vDMA + i, R("s", srd, 4), soff, i * 1040, s.ld))
        return out

    def kread(s, stage, kb, t):
        return "ds_read_b128 %s, v%d offset:%d" % (R("a", aK(t), 4), vK + (stage >> 1), (stage & 1) * STAGE + kb * 512 + t * 32)
    def vread(s, stage, kb, r):
        i, u = r >> 1, r & 1
        ks, db = i >> 2, i & 3
        return "ds_read_b64_tr_b16 %s, v%d offset:%d" % (R("a", aV(i) + 2 * u, 2), vV + (stage >> 1), (stage & 1) * STAGE + u * 2080 + (2 * kb + ks) * 256 + db * 64)
    def qk(s, qb, t, zero=False):
        c = R("v", vS(qb), 16) if t else ("0" if zero else R("v", vNM(qb), 16))
        return "v_mfma_f32_32x32x16_bf16 %s, %s, %s, %s" % (R("v", vS(qb), 16), R("a", aK(t), 4), R("a", aQ(qb, t), 4), c)
    def pv(s, qb, i):
        ks, db = i >> 2, i & 3
        o = R("v", vO(qb, db), 16)
        return "v_mfma_f32_32x32x16_bf16 %s, %s, %s, %s" % (o, R("a", aV(i), 4), R("v", vP(qb) + 4 * ks, 4), o)

    def sm_ops(s, gap):
        out = []
        for qb, base in ((0, 10), (1, 26), (1, -6)):
            tag = "prev" if base < 0 else "cur"
            e = gap - base
            S = vS(qb)
            ops = []
            if 0 <= e < 16: ops.append("v_exp_f32 v%d, v%d" % (S + e, S + e))
            if 0 <= e - 1 < 16: ops.append("v_add_f32 v%d, v%d, v%d" % (vL(qb), vL(qb), S + e - 1))
            if e >= 2 and e % 2 == 0 and e - 2 < 16:
                ops.append("v_cvt_pk_bf16_f32 v%d, v%d, v%d" % (vP(qb) + (e - 2) // 2, S + e - 2, S + e - 1))
            out += [(tag, o) for o in ops]
        out.sort(key=lambda x: 0 if "exp" in x[1] else 1)
        return out

    def period(s, tile4, kb, last=False, tail=False):
        L = s.L
        fill = [[] for _ in range(32)]
        for g in range(32):
            for tag, o in s.sm_ops(g):
                if tail and tag != "prev": continue
                if not s.novalu: fill[g].append(o)
        if not tail:
            r = 0
            for g in range(8, 19):
                for _ in range(1 if g % 2 == 0 else 2):
                    if r < 16:
                        if not s.nolds: fill[g].append(s.vread(tile4, kb, r))
                        r += 1
            nst, nkb = (tile4, 1) if kb == 0 else ((tile4 + 1) & 3, 0)
            t = 0
            for g, c in ((24, 1), (25, 2), (26, 1), (27, 2), (28, 1), (29, 1)):
                for _ in range(c):
                    if not s.nolds: fill[g].append(s.kread(nst, nkb, t))
                    t += 1
            fill[2].append("s_waitcnt lgkmcnt(0)")
            if kb == 1:
                fill[23].append("s_waitcnt vmcnt(%d) lgkmcnt(0)" % (4 * (L - 2)))
                if not s.nobar: fill[23].append("s_barrier")
            else:
                fill[23].append("s_waitcnt lgkmcnt(0)")
            fill[31].append("s_waitcnt lgkmcnt(4)")
            g = (2 * tile4 + kb + L) & 7
            isK = (g & 1) == 0
            d = s.dma_group(g, sK if isK else sV, "s%d" % (sSOK if isK else sSOV))
            if not s.nodma:
                fill[0].append(d[0])
                for i in range(4): fill[1 + 2 * i].append(d[1 + i])
            so = sSOK if isK else sSOV
            fill[19].append("s_add_u32 s%d, s%d, 0x4000" % (so, so))
            if s.rot:
                fill[20].append("s_and_b32 s%d, s%d, 0x7ffff" % (so, so))
            if last:
                fill[21].append("s_sub_u32 s%d, s%d, 1" % (sCNT, sCNT))
                fill[30].append("s_cmp_lg_u32 s%d, 0" % sCNT)
        if tail: fill[11].append("s_nop 0")
        for pos in range(32):
            if pos < 8: m = None if tail else s.qk(0, pos)
            elif pos < 16: m = s.pv(1, pos - 8)
            elif pos < 24: m = None if tail else s.qk(1, pos - 16)
            else: m = None if tail else s.pv(0, pos - 24)
            if m: s.A(m)
            for o in fill[pos]: s.A(o)

    def stamp(s, idx):
        if s.stamps: s.A("s_memtime s[%d:%d]" % (48 + 2 * idx, 49 + 2 * idx))

    def build(s):
        A = s.A
        L = s.L
        A("; @launch grid=(256,1,1) block=(256,1,1) lds=%d" % LDS_BYTES)
        A('.amdgcn_target "amdgcn-amd-amdhsa--gfx950"')
        A(".text")
        A(".globl %s\n.p2align 8\n.type %s,@function\n%s:" % (KN, KN, KN))
        A("s_cmp_ge_u32 s2, 256\ns_cbranch_scc1 L_end")
        if s.stamps: A("s_memrealtime s[40:41]\ns_memtime s[44:45]")
        A("s_load_dwordx4 s[24:27], s[0:1], 0\ns_load_dwordx4 s[28:31], s[0:1], 16")
        if s.stamps: A("s_load_dwordx2 s[64:65], s[0:1], 40")
        A("v_lshrrev_b32 v1, 6, v0\nv_and_b32 v0, 63, v0\ns_nop 0\nv_readfirstlane_b32 s%d, v1" % sW)
        if s.warm:
            A("s_getpc_b64 s[36:37]\nL_pc:")
            A("v_lshl_add_u32 v1, v1, 6, v0\nv_lshlrev_b32 v1, 6, v1\nglobal_load_dword v47, v1, s[36:37]")
        A("v_lshrrev_b32 v16, 4, v0\nv_lshlrev_b32 v16, 12, v16\nv_and_b32 v17, 15, v0\nv_lshl_add_u32 v16, v17, 4, v16")
        A("s_lshl_b32 s%d, s%d, 8\ns_mul_i32 s%d, s%d, 4160" % (sT, sW, sWL, sW))
        A("v_add_u32 v%d, s%d, v16" % (vDMA + 3, sT))
        for i in range(3): A("v_add_u32 v%d, %d, v%d" % (vDMA + i, 16 * (3 - i), vDMA + 3))
        A("s_waitcnt lgkmcnt(0)")
        A("s_lshl_b32 s%d, s2, 16" % sT)
        A("s_add_u32 s%d, s30, s%d\ns_addc_u32 s%d, s31, 0\ns_mov_b32 s%d, 0x10000\ns_mov_b32 s%d, 0x20000" % (sO, sT, sO + 1, sO + 2, sO + 3))
        A("s_sub_u32 s24, s24, 48\ns_subb_u32 s25, s25, 0\ns_sub_u32 s26, s26, 48\ns_subb_u32 s27, s27, 0\ns_sub_u32 s28, s28, 48\ns_subb_u32 s29, s29, 0")
        A("s_add_u32 s%d, s24, s%d\ns_addc_u32 s%d, s25, 0\ns_mov_b32 s%d, 0x10030\ns_mov_b32 s%d, 0x20000" % (sQ, sT, sQ + 1, sQ + 2, sQ + 3))
        A("s_lshl_b32 s%d, s2, 19" % sT)
        A("s_add_u32 s%d, s26, s%d\ns_addc_u32 s%d, s27, 0\ns_mov_b32 s%d, 0x80030\ns_mov_b32 s%d, 0x20000" % (sK, sT, sK + 1, sK + 2, sK + 3))
        A("s_add_u32 s%d, s28, s%d\ns_addc_u32 s%d, s29, 0\ns_mov_b32 s%d, 0x80030\ns_mov_b32 s%d, 0x20000" % (sV, sT, sV + 1, sV + 2, sV + 3))
        A("s_mov_b32 s%d, 0" % sPASS)
        A("v_mov_b32 v%d, 0xff800000\nv_mov_b32 v%d, 0xff800000" % (vM(0), vM(1)))
        A("L_start:")
        A("s_mul_i32 s%d, s%d, %d\ns_add_u32 s%d, s%d, %d" % (sT, sW, SLOT, sT, sT, 5 * SLOT))
        A("s_mul_i32 s%d, s%d, 16128" % (sT + 1, sW))
        for w2 in range(4):
            d = s.dma_group(0, sQ, "s%d" % (sT + 1), m0expr="s_add_u32 m0, s%d, %d" % (sT, w2 * 4160))
            A(d[0]); A("s_nop 0")
            for x in d[1:]: A(x)
            if w2 < 3: A("s_add_u32 s%d, s%d, 256" % (sT + 1, sT + 1))
        A("s_mov_b32 s%d, 0\ns_mov_b32 s%d, 0" % (sSOK, sSOV))
        def issue_group(g):
            isK = (g & 1) == 0
            so = sSOK if isK else sSOV
            d = s.dma_group(g & 7, sK if isK else sV, "s%d" % so)
            return [d[0], "s_nop 0"] + d[1:] + ["s_add_u32 s%d, s%d, 0x4000" % (so, so)]
        for x in issue_group(0): A(x)
        A("v_and_b32 v16, 3, v0\nv_bfe_u32 v17, v0, 2, 2\nv_lshl_add_u32 v18, v16, 2, v17\nv_mul_u32_u24 v18, 1040, v18")
        A("v_bfe_u32 v19, v0, 4, 1\nv_lshl_add_u32 v18, v19, 8, v18\nv_lshrrev_b32 v20, 5, v0\nv_lshl_add_u32 v%d, v20, 4, v18" % vK)
        A("v_add_u32 v%d, %d, v%d" % (vK + 1, 2 * STAGE, vK))
        A("v_add_u32 v15, s%d, v%d" % (sT, vK))
        A("v_lshl_add_u32 v18, v17, 2, v20\nv_mul_u32_u24 v18, 1040, v18\nv_lshl_add_u32 v18, v19, 5, v18")
        A("v_and_b32 v21, 1, v0\nv_lshl_add_u32 v18, v21, 4, v18\nv_bfe_u32 v21, v0, 1, 1\nv_lshl_add_u32 v18, v21, 3, v18")
        A("v_add_u32 v%d, %d, v18\nv_add_u32 v%d, %d, v18" % (vV, SLOT, vV + 1, SLOT + 2 * STAGE))
        A("v_and_b32 v18, 31, v0\nv_lshlrev_b32 v18, 8, v18\nv_lshl_add_u32 v18, v20, 4, v18\ns_lshl_b32 s%d, s%d, 14\nv_add_u32 v%d, s%d, v18" % (sT + 1, sW, vOA, sT + 1))
        c = 1.4426950408889634 / (128.0 ** 0.5)
        A("s_mov_b32 s%d, %s\ns_mov_b32 s%d, %s" % (sC, f32(c), sC + 1, f32(c)))
        A("s_mov_b32 s%d, 8" % sCNT)
        for i in range(64): A("v_mov_b32 v%d, 0" % (192 + i))
        for i in range(32): A("v_accvgpr_write_b32 a%d, 0" % (aV(0) + i))
        for i in range(8): A("v_mov_b32 v%d, 0" % (vP(1) + i))
        A("v_mov_b32 v%d, 0\nv_mov_b32 v%d, 0" % (vL(0), vL(1)))
        s.stamp(0)
        A("s_waitcnt vmcnt(4)")
        s.stamp(1)
        pend = []
        for g in range(1, min(L, 5)): pend.append(issue_group(g))
        for qb in range(2):
            for t in range(8):
                A("ds_read_b128 %s, v15 offset:%d" % (R("v", 128 + qb * 32 + t * 4, 4), qb * 512 + t * 32))
            if qb == 0 and pend:
                for x in pend.pop(0): A(x)
            if qb == 0: A("s_waitcnt lgkmcnt(0)")
        for f in range(16):
            if f == 7: A("s_waitcnt lgkmcnt(0)")
            b = 128 + 4 * f
            for i in range(4):
                A("v_lshlrev_b32 v%d, 16, v%d\nv_and_b32 v%d, 0xffff0000, v%d" % (vT + 2 * i, b + i, vT + 2 * i + 1, b + i))
            for i in range(4):
                A("v_pk_mul_f32 %s, %s, %s" % (R("v", vT + 2 * i, 2), R("v", vT + 2 * i, 2), R("s", sC, 2)))
            for i in range(4):
                A("v_cvt_pk_bf16_f32 v%d, v%d, v%d" % (vT + 8 + i, vT + 2 * i, vT + 2 * i + 1))
            for i in range(4):
                A("v_accvgpr_write_b32 a%d, v%d" % (4 * f + i, vT + 8 + i))
            for i in range(4):
                A("v_mov_b32 v%d, 0" % (b + i))
            if f % 4 == 3 and pend:
                for x in pend.pop(0): A(x)
        assert not pend
        nissued = min(L, 5)
        s.stamp(2)
        A("s_waitcnt vmcnt(%d)" % (4 * (nissued - 2)))
        A("s_barrier")
        s.stamp(3)
        for t in range(8): A(s.kread(0, 0, t))
        for g in range(nissued, L):
            for x in issue_group(g): A(x)
        A("s_waitcnt lgkmcnt(0)")
        for qb in range(2):
            for t in range(8): A(s.qk(qb, t, zero=True))
        A("s_nop 7")
        for qb in range(2):
            if qb == 1: A("s_nop 3")
            S = vS(qb)
            for i in range(8):
                A("v_max3_f32 v%d, v%d, v%d, v%d" % (vM(qb), vM(qb), S + 2 * i, S + 2 * i + 1))
        for qb in range(2): A("v_mov_b32 v%d, v%d" % (vT + qb, vM(qb)))
        A("s_nop 0")
        for qb in range(2): A("v_permlane32_swap_b32 v%d, v%d" % (vT + qb, vM(qb)))
        A("s_nop 0")
        for qb in range(2): A("v_max_f32 v%d, v%d, v%d" % (vM(qb), vM(qb), vT + qb))
        A("s_mov_b32 s%d, %s" % (sT, f32(-s.bias)))
        for qb in range(2): A("v_sub_f32 v%d, s%d, v%d" % (vNM(qb), sT, vM(qb)))
        for qb in range(2):
            for i in range(1, 16): A("v_mov_b32 v%d, v%d" % (vNM(qb) + i, vNM(qb)))
        for i in range(16): A("v_mov_b32 v%d, %s" % (vS(1) + i, "0" if i < 6 else "0xff800000"))
        s.stamp(4)
        A(".p2align 6")
        A("L_loop:")
        n0 = len(s.lines)
        for T in range(4):
            for kb in range(2):
                s.period(T, kb, last=(T == 3 and kb == 1))
        body = s.lines[n0:]
        A("s_cbranch_scc1 L_loop")
        s.stamp(5)
        s.period(0, 0, tail=True)
        for qb in range(2): A("v_mov_b32 v%d, v%d" % (vT + qb, vL(qb)))
        A("s_nop 0")
        for qb in range(2): A("v_permlane32_swap_b32 v%d, v%d" % (vT + qb, vL(qb)))
        A("s_nop 0")
        for qb in range(2): A("v_add_f32 v%d, v%d, v%d" % (vL(qb), vL(qb), vT + qb))
        for qb in range(2): A("v_rcp_f32 v%d, v%d" % (vT + 2 * qb, vL(qb)))
        A("s_mov_b32 s%d, %s" % (sT, f32(s.thr)))
        A("v_mov_b32 v%d, v%d\nv_mov_b32 v%d, v%d" % (vT + 1, vT, vT + 3, vT + 2))
        A("v_cmp_nge_f32 s[38:39], s%d, v%d" % (sT, vL(0)))
        A("v_cmp_nge_f32 vcc, s%d, v%d" % (sT, vL(1)))
        A("s_mov_b32 s%d, 8192" % (sT + 1))
        k = 0
        for qb in range(2):
            if qb == 1: A("s_nop 3")
            for db in range(4):
                for dh in range(2):
                    o = vO(qb, db) + 8 * dh
                    tb = vT + 4 + 4 * (k % 4); k += 1
                    for i in range(4):
                        A("v_pk_mul_f32 %s, %s, %s" % (R("v", o + 2 * i, 2), R("v", o + 2 * i, 2), R("v", vT + 2 * qb, 2)))
                    for i in range(4):
                        A("v_cvt_pk_bf16_f32 v%d, v%d, v%d" % (tb + i, o + 2 * i, o + 2 * i + 1))
                    A("buffer_store_dwordx4 %s, v%d, %s, %s offen offset:%d %s" % (R("v", tb, 4), vOA, R("s", sO, 4), "s%d" % (sT + 1) if qb else "0", db * 64 + dh * 32, s.st))
        s.stamp(6)
        A("s_cmp_lg_u32 s%d, 0\ns_cbranch_scc1 L_fin" % sPASS)
        A("s_or_b64 vcc, vcc, s[38:39]\ns_cmp_lg_u64 vcc, 0\ns_cselect_b32 s%d, 1, 0" % sT)
        A("s_lshl_b32 s%d, s%d, 2\ns_add_u32 s%d, s%d, %d" % (sT + 1, sW, sT + 1, sT + 1, FLAG_OFF))
        A("v_mov_b32 v%d, s%d\nv_mov_b32 v%d, s%d\nv_mov_b32 v%d, %d" % (vT, sT, vT + 1, sT + 1, vT + 2, FLAG_OFF))
        A("ds_write_b32 v%d, v%d\ns_waitcnt lgkmcnt(0)\ns_barrier" % (vT + 1, vT))
        A("ds_read_b128 %s, v%d\ns_waitcnt lgkmcnt(0)" % (R("v", vT + 24, 4), vT + 2))
        A("v_or3_b32 v%d, v%d, v%d, v%d\nv_or_b32 v%d, v%d, v%d\ns_nop 1" % (vT, vT + 24, vT + 25, vT + 26, vT, vT, vT + 27))
        A("v_readfirstlane_b32 s%d, v%d\ns_nop 3\ns_cmp_eq_u32 s%d, 0\ns_cbranch_scc1 L_fin" % (sT, vT, sT))
        A("s_mov_b32 s%d, 1\ns_mov_b32 s%d, 0" % (sPASS, sSOK))
        A("s_waitcnt vmcnt(0)")
        A("L_maxpass:")
        A("s_barrier")
        d = s.dma_group(0, sK, "s%d" % sSOK)
        A(d[0]); A("s_nop 0")
        for x in d[1:]: A(x)
        A("s_waitcnt vmcnt(0)\ns_barrier")
        for kb in range(2):
            for t in range(8): A(s.kread(0, kb, t))
            A("s_waitcnt lgkmcnt(0)")
            for qb in range(2):
                for t in range(8): A(s.qk(qb, t, zero=True))
            A("s_nop 11")
            for qb in range(2):
                S = vS(qb)
                for i in range(8):
                    A("v_max3_f32 v%d, v%d, v%d, v%d" % (vM(qb), vM(qb), S + 2 * i, S + 2 * i + 1))
        A("s_add_u32 s%d, s%d, 0x4000\ns_cmp_lt_u32 s%d, 0x80000\ns_cbranch_scc1 L_maxpass" % (sSOK, sSOK, sSOK))
        A("s_barrier\ns_branch L_start")
        A("L_fin:")
        if s.dbg is not None:
            A("s_waitcnt vmcnt(0)")
            A("s_memrealtime s[42:43]\ns_memtime s[46:47]\ns_load_dwordx2 s[64:65], s[0:1], 32\ns_waitcnt lgkmcnt(0)")
            A("s_mov_b32 s68, s64\ns_mov_b32 s69, s65\ns_mov_b32 s70, 256\ns_mov_b32 s71, 0x20000")
            A("v_mov_b32 v3, 0")
            A("s_not_b32 s36, s40\nv_mov_b32 v8, s36\nv_mov_b32 v9, s42\ns_mov_b64 exec, 1")
            A("buffer_atomic_umax v8, v3, s[68:71], 0 offen offset:56\nbuffer_atomic_umax v9, v3, s[68:71], 0 offen offset:60")
            A("s_cmp_lg_u32 s2, %d\ns_cbranch_scc1 L_end\ns_cmp_lg_u32 s3, 0\ns_cbranch_scc1 L_end" % s.dbg)
            for j, (a, b) in enumerate([(42, 40), (46, 44)] + [(r, 44) for r in range(48, 62, 2)]):
                A("s_sub_u32 s36, s%d, s%d\nv_mov_b32 v8, s36" % (a, b))
                A("buffer_store_dword v8, v3, s[68:71], 0 offen offset:%d" % (j * 4))
                A("s_nop 1")
        elif s.probe is not None:
            A("s_waitcnt vmcnt(0)")
            A("s_memrealtime s[42:43]\ns_memtime s[46:47]\ns_waitcnt lgkmcnt(0)")
            A("s_cmp_lg_u32 s2, %d\ns_cbranch_scc1 L_end" % s.probe[3])
            a, b, div = s.probe[:3]
            A("s_sub_u32 s36, s%d, s%d" % (a, b))
            if div == 10:
                A("s_mul_hi_u32 s36, s36, 429496730")
            if div == 0:
                A("s_mov_b32 s36, 0")
            A("s_add_u32 s36, s36, 15000\ns_add_u32 s36, s36, s40")
            A("L_spin:\ns_sleep 4\ns_memrealtime s[42:43]\ns_waitcnt lgkmcnt(0)\ns_sub_u32 s37, s42, s36\ns_cmp_lt_i32 s37, 0\ns_cbranch_scc1 L_spin")
        elif s.stamps:
            A("s_waitcnt vmcnt(0)")
            A("s_memrealtime s[42:43]\ns_memtime s[46:47]\ns_getreg_b32 s62, hwreg(HW_REG_XCC_ID)\ns_mov_b32 s63, 0\ns_waitcnt lgkmcnt(0)")
            A("s_mov_b32 s68, s64\ns_mov_b32 s69, s65\ns_mov_b32 s70, 0x100000\ns_mov_b32 s71, 0x20000")
            A("s_lshl_b32 s37, s2, 2\ns_add_u32 s37, s37, s3\ns_mul_i32 s37, s37, 96\nv_mov_b32 v3, s37")
            for j, r in enumerate([40, 42, 44, 46] + list(range(48, 64, 2))):
                A("v_mov_b32 v8, s%d\nv_mov_b32 v9, s%d" % (r, r + 1))
                A("buffer_store_dwordx2 v[8:9], v3, s[68:71], 0 offen offset:%d" % (j * 8))
                A("s_nop 1")
        A("L_end:\ns_endpgm")
        A('.section .rodata,"a"\n.p2align 6\n.amdhsa_kernel %s' % KN)
        A("  .amdhsa_next_free_vgpr 384\n  .amdhsa_next_free_sgpr 102\n  .amdhsa_accum_offset 256\n  .amdhsa_group_segment_fixed_size 0\n  .amdhsa_kernarg_size 48\n  .amdhsa_user_sgpr_count 2\n  .amdhsa_user_sgpr_kernarg_segment_ptr 1\n  .amdhsa_system_sgpr_workgroup_id_x 1\n  .amdhsa_float_denorm_mode_32 3\n.end_amdhsa_kernel")
        errs = hazards.check(s.lines, "linear") + hazards.check(body + body, "loop")
        return "\n".join(s.lines) + "\n", errs

def gen(name, **kw):
    txt, errs = Gen(**kw).build()
    open(name, "w").write(txt)
    return errs

if __name__ == "__main__":
    import ast
    name = sys.argv[1]
    kw = {}
    for a in sys.argv[2:]:
        k, v = a.split("=", 1)
        try: kw[k] = ast.literal_eval(v)
        except Exception: kw[k] = v
    e = gen(name, **kw)
    print(name, "hazards:", len(e))
```

```python
import sys, struct
import hazards

KN = "standalone__mha_softmax__near_ridge_kernel"
SLOT = 16640
STAGE = 2 * SLOT
FLAG_OFF = 9 * SLOT
LDS_BYTES = 9 * SLOT + 64

def f32(x): return "0x%08x" % struct.unpack("<I", struct.pack("<f", x))[0]

def vO(qb, db): return 128 + qb * 64 + db * 16
def vS(qb): return 64 + 16 * qb
def vNM(qb): return 96 + 16 * qb
def vP(qb): return 48 + 8 * qb
vDMA = 2
vK = 6
vV = 8
def vL(qb): return 10 + qb
def vM(qb): return 12 + qb
vOA = 14
vT = 16
def aQ(qb, t): return qb * 32 + t * 4
def aK(t): return 64 + 4 * t
def aV(i): return 96 + 4 * i
def R(p, b, n): return "%s[%d:%d]" % (p, b, b + n - 1)

sW = 3
sQ, sK, sV, sO = 4, 8, 12, 16
sSOK, sSOV = 20, 21
sWL = 22
sCNT = 23
sPASS = 32
sC = 34
sT = 36

class Gen:
    def __init__(s, L=5, ld="nt", st="", stamps=0, bias=10.0, thr=2.0 ** 40, nodma=0, nobar=0, novalu=0, nolds=0, warm=0, rot=0, probe=None, dbg=None, instr=0, dmagaps=(1,3,5,7)):
        s.__dict__.update(locals())
        s.lines = []
    def A(s, x): s.lines.append(x)

    def dma_group(s, g_slot, srd, soff, m0expr=None):
        out = ["s_add_u32 m0, s%d, %d" % (sWL, g_slot * SLOT) if m0expr is None else m0expr]
        for i in range(4):
            out.append("buffer_load_dwordx4 v%d, %s, %s offen offset:%d %s lds" % (vDMA + i, R("s", srd, 4), soff, i * 1040, s.ld))
        return out

    def kread(s, stage, kb, t):
        return "ds_read_b128 %s, v%d offset:%d" % (R("a", aK(t), 4), vK + (stage >> 1), (stage & 1) * STAGE + kb * 512 + t * 32)
    def vread(s, stage, kb, r):
        i, u = r >> 1, r & 1
        ks, db = i >> 2, i & 3
        return "ds_read_b64_tr_b16 %s, v%d offset:%d" % (R("a", aV(i) + 2 * u, 2), vV + (stage >> 1), (stage & 1) * STAGE + u * 2080 + (2 * kb + ks) * 256 + db * 64)
    def qk(s, qb, t, zero=False):
        c = R("v", vS(qb), 16) if t else ("0" if zero else R("v", vNM(qb), 16))
        return "v_mfma_f32_32x32x16_bf16 %s, %s, %s, %s" % (R("v", vS(qb), 16), R("a", aK(t), 4), R("a", aQ(qb, t), 4), c)
    def pv(s, qb, i):
        ks, db = i >> 2, i & 3
        o = R("v", vO(qb, db), 16)
        return "v_mfma_f32_32x32x16_bf16 %s, %s, %s, %s" % (o, R("a", aV(i), 4), R("v", vP(qb) + 4 * ks, 4), o)

    def sm_ops(s, gap):
        out = []
        for qb, base in ((0, 10), (1, 26), (1, -6)):
            tag = "prev" if base < 0 else "cur"
            e = gap - base
            S = vS(qb)
            ops = []
            if 0 <= e < 16: ops.append("v_exp_f32 v%d, v%d" % (S + e, S + e))
            if 0 <= e - 1 < 16: ops.append("v_add_f32 v%d, v%d, v%d" % (vL(qb), vL(qb), S + e - 1))
            if e >= 2 and e % 2 == 0 and e - 2 < 16:
                ops.append("v_cvt_pk_bf16_f32 v%d, v%d, v%d" % (vP(qb) + (e - 2) // 2, S + e - 2, S + e - 1))
            out += [(tag, o) for o in ops]
        out.sort(key=lambda x: 0 if "exp" in x[1] else 1)
        return out

    def period(s, tile4, kb, last=False, tail=False):
        L = s.L
        fill = [[] for _ in range(32)]
        for g in range(32):
            for tag, o in s.sm_ops(g):
                if tail and tag != "prev": continue
                if not s.novalu: fill[g].append(o)
        if not tail:
            r = 0
            for g in range(8, 19):
                for _ in range(1 if g % 2 == 0 else 2):
                    if r < 16:
                        if not s.nolds: fill[g].append(s.vread(tile4, kb, r))
                        r += 1
            nst, nkb = (tile4, 1) if kb == 0 else ((tile4 + 1) & 3, 0)
            t = 0
            for g, c in ((24, 1), (25, 2), (26, 1), (27, 2), (28, 1), (29, 1)):
                for _ in range(c):
                    if not s.nolds: fill[g].append(s.kread(nst, nkb, t))
                    t += 1
            fill[2].append("s_waitcnt lgkmcnt(0)")
            if kb == 1 and s.instr == 1:
                fill[23].append("s_waitcnt lgkmcnt(0)\ns_memtime s[72:73]\ns_waitcnt vmcnt(%d)\ns_memtime s[74:75]\ns_barrier\ns_memtime s[76:77]\ns_waitcnt lgkmcnt(0)" % (4 * (L - 2)))
                fill[23].append("s_sub_u32 s78, s74, s72\ns_add_u32 s48, s48, s78\ns_sub_u32 s78, s76, s74\ns_add_u32 s50, s50, s78")
            elif kb == 1:
                fill[23].append("s_waitcnt vmcnt(%d) lgkmcnt(0)" % (4 * (L - 2)))
                if not s.nobar: fill[23].append("s_barrier")
            else:
                fill[23].append("s_waitcnt lgkmcnt(0)")
            fill[31].append("s_waitcnt lgkmcnt(4)")
            g = (2 * tile4 + kb + L) & 7
            isK = (g & 1) == 0
            d = s.dma_group(g, sK if isK else sV, "s%d" % (sSOK if isK else sSOV))
            if not s.nodma:
                fill[0].append(d[0])
                for i in range(4): fill[s.dmagaps[i]].append(d[1 + i])
                if s.instr == 2:
                    fill[0].append("s_waitcnt lgkmcnt(0)\ns_memtime s[72:73]")
                    fill[7].append("s_memtime s[74:75]\ns_waitcnt lgkmcnt(0)\ns_sub_u32 s78, s74, s72\ns_add_u32 s48, s48, s78")
            so = sSOK if isK else sSOV
            gl = max(19, s.dmagaps[3])
            fill[gl].append("s_add_u32 s%d, s%d, 0x4000" % (so, so))
            if s.rot:
                fill[gl].append("s_and_b32 s%d, s%d, 0x7ffff" % (so, so))
            if last:
                fill[21].append("s_sub_u32 s%d, s%d, 1" % (sCNT, sCNT))
                fill[30].append("s_cmp_lg_u32 s%d, 0" % sCNT)
        if tail: fill[11].append("s_nop 0")
        for pos in range(32):
            if pos < 8: m = None if tail else s.qk(0, pos)
            elif pos < 16: m = s.pv(1, pos - 8)
            elif pos < 24: m = None if tail else s.qk(1, pos - 16)
            else: m = None if tail else s.pv(0, pos - 24)
            if m: s.A(m)
            for o in fill[pos]: s.A(o)

    def stamp(s, idx):
        if s.stamps: s.A("s_memtime s[%d:%d]" % (48 + 2 * idx, 49 + 2 * idx))

    def build(s):
        A = s.A
        L = s.L
        A("; @launch grid=(256,1,1) block=(256,1,1) lds=%d" % LDS_BYTES)
        A('.amdgcn_target "amdgcn-amd-amdhsa--gfx950"')
        A(".text")
        A(".globl %s\n.p2align 8\n.type %s,@function\n%s:" % (KN, KN, KN))
        A("s_cmp_ge_u32 s2, 256\ns_cbranch_scc1 L_end")
        if s.stamps: A("s_memrealtime s[40:41]\ns_memtime s[44:45]")
        A("s_load_dwordx4 s[24:27], s[0:1], 0\ns_load_dwordx4 s[28:31], s[0:1], 16")
        if s.stamps: A("s_load_dwordx2 s[64:65], s[0:1], 40")
        A("v_lshrrev_b32 v1, 6, v0\nv_and_b32 v0, 63, v0\ns_nop 0\nv_readfirstlane_b32 s%d, v1" % sW)
        if s.warm:
            A("s_getpc_b64 s[36:37]\nL_pc:")
            A("v_lshl_add_u32 v1, v1, 6, v0\nv_lshlrev_b32 v1, 6, v1\nglobal_load_dword v47, v1, s[36:37]")
        A("v_lshrrev_b32 v16, 4, v0\nv_lshlrev_b32 v16, 12, v16\nv_and_b32 v17, 15, v0\nv_lshl_add_u32 v16, v17, 4, v16")
        A("s_lshl_b32 s%d, s%d, 8\ns_mul_i32 s%d, s%d, 4160" % (sT, sW, sWL, sW))
        A("v_add_u32 v%d, s%d, v16" % (vDMA + 3, sT))
        for i in range(3): A("v_add_u32 v%d, %d, v%d" % (vDMA + i, 16 * (3 - i), vDMA + 3))
        A("s_waitcnt lgkmcnt(0)")
        A("s_lshl_b32 s%d, s2, 16" % sT)
        A("s_add_u32 s%d, s30, s%d\ns_addc_u32 s%d, s31, 0\ns_mov_b32 s%d, 0x10000\ns_mov_b32 s%d, 0x20000" % (sO, sT, sO + 1, sO + 2, sO + 3))
        A("s_sub_u32 s24, s24, 48\ns_subb_u32 s25, s25, 0\ns_sub_u32 s26, s26, 48\ns_subb_u32 s27, s27, 0\ns_sub_u32 s28, s28, 48\ns_subb_u32 s29, s29, 0")
        A("s_add_u32 s%d, s24, s%d\ns_addc_u32 s%d, s25, 0\ns_mov_b32 s%d, 0x10030\ns_mov_b32 s%d, 0x20000" % (sQ, sT, sQ + 1, sQ + 2, sQ + 3))
        A("s_lshl_b32 s%d, s2, 19" % sT)
        A("s_add_u32 s%d, s26, s%d\ns_addc_u32 s%d, s27, 0\ns_mov_b32 s%d, 0x80030\ns_mov_b32 s%d, 0x20000" % (sK, sT, sK + 1, sK + 2, sK + 3))
        A("s_add_u32 s%d, s28, s%d\ns_addc_u32 s%d, s29, 0\ns_mov_b32 s%d, 0x80030\ns_mov_b32 s%d, 0x20000" % (sV, sT, sV + 1, sV + 2, sV + 3))
        A("s_mov_b32 s%d, 0" % sPASS)
        A("v_mov_b32 v%d, 0xff800000\nv_mov_b32 v%d, 0xff800000" % (vM(0), vM(1)))
        A("L_start:")
        A("s_mul_i32 s%d, s%d, %d\ns_add_u32 s%d, s%d, %d" % (sT, sW, SLOT, sT, sT, 5 * SLOT))
        A("s_mul_i32 s%d, s%d, 16128" % (sT + 1, sW))
        for w2 in range(4):
            d = s.dma_group(0, sQ, "s%d" % (sT + 1), m0expr="s_add_u32 m0, s%d, %d" % (sT, w2 * 4160))
            A(d[0]); A("s_nop 0")
            for x in d[1:]: A(x)
            if w2 < 3: A("s_add_u32 s%d, s%d, 256" % (sT + 1, sT + 1))
        if s.rot:
            A("s_mul_i32 s%d, s2, %d\ns_lshl_b32 s%d, s%d, 14\ns_and_b32 s%d, s%d, 0x7ffff\ns_mov_b32 s%d, s%d" % (sSOK, s.rot, sSOK, sSOK, sSOK, sSOK, sSOV, sSOK))
        else:
            A("s_mov_b32 s%d, 0\ns_mov_b32 s%d, 0" % (sSOK, sSOV))
        def issue_group(g):
            isK = (g & 1) == 0
            so = sSOK if isK else sSOV
            d = s.dma_group(g & 7, sK if isK else sV, "s%d" % so)
            return [d[0], "s_nop 0"] + d[1:] + ["s_add_u32 s%d, s%d, 0x4000" % (so, so)] + (["s_and_b32 s%d, s%d, 0x7ffff" % (so, so)] if s.rot else [])
        for x in issue_group(0): A(x)
        A("v_and_b32 v16, 3, v0\nv_bfe_u32 v17, v0, 2, 2\nv_lshl_add_u32 v18, v16, 2, v17\nv_mul_u32_u24 v18, 1040, v18")
        A("v_bfe_u32 v19, v0, 4, 1\nv_lshl_add_u32 v18, v19, 8, v18\nv_lshrrev_b32 v20, 5, v0\nv_lshl_add_u32 v%d, v20, 4, v18" % vK)
        A("v_add_u32 v%d, %d, v%d" % (vK + 1, 2 * STAGE, vK))
        A("v_add_u32 v15, s%d, v%d" % (sT, vK))
        A("v_lshl_add_u32 v18, v17, 2, v20\nv_mul_u32_u24 v18, 1040, v18\nv_lshl_add_u32 v18, v19, 5, v18")
        A("v_and_b32 v21, 1, v0\nv_lshl_add_u32 v18, v21, 4, v18\nv_bfe_u32 v21, v0, 1, 1\nv_lshl_add_u32 v18, v21, 3, v18")
        A("v_add_u32 v%d, %d, v18\nv_add_u32 v%d, %d, v18" % (vV, SLOT, vV + 1, SLOT + 2 * STAGE))
        A("v_and_b32 v18, 31, v0\nv_lshlrev_b32 v18, 8, v18\nv_lshl_add_u32 v18, v20, 4, v18\ns_lshl_b32 s%d, s%d, 14\nv_add_u32 v%d, s%d, v18" % (sT + 1, sW, vOA, sT + 1))
        c = 1.4426950408889634 / (128.0 ** 0.5)
        A("s_mov_b32 s%d, %s\ns_mov_b32 s%d, %s" % (sC, f32(c), sC + 1, f32(c)))
        A("s_mov_b32 s%d, 8" % sCNT)
        for i in range(64): A("v_mov_b32 v%d, 0" % (192 + i))
        for i in range(32): A("v_accvgpr_write_b32 a%d, 0" % (aV(0) + i))
        for i in range(8): A("v_mov_b32 v%d, 0" % (vP(1) + i))
        A("v_mov_b32 v%d, 0\nv_mov_b32 v%d, 0" % (vL(0), vL(1)))
        s.stamp(0)
        A("s_waitcnt vmcnt(4)")
        s.stamp(1)
        pend = []
        for g in range(1, min(L, 5)): pend.append(issue_group(g))
        for qb in range(2):
            for t in range(8):
                A("ds_read_b128 %s, v15 offset:%d" % (R("v", 128 + qb * 32 + t * 4, 4), qb * 512 + t * 32))
            if qb == 0 and pend:
                for x in pend.pop(0): A(x)
            if qb == 0: A("s_waitcnt lgkmcnt(0)")
        for f in range(16):
            if f == 7: A("s_waitcnt lgkmcnt(0)")
            b = 128 + 4 * f
            for i in range(4):
                A("v_lshlrev_b32 v%d, 16, v%d\nv_and_b32 v%d, 0xffff0000, v%d" % (vT + 2 * i, b + i, vT + 2 * i + 1, b + i))
            for i in range(4):
                A("v_pk_mul_f32 %s, %s, %s" % (R("v", vT + 2 * i, 2), R("v", vT + 2 * i, 2), R("s", sC, 2)))
            for i in range(4):
                A("v_cvt_pk_bf16_f32 v%d, v%d, v%d" % (vT + 8 + i, vT + 2 * i, vT + 2 * i + 1))
            for i in range(4):
                A("v_accvgpr_write_b32 a%d, v%d" % (4 * f + i, vT + 8 + i))
            for i in range(4):
                A("v_mov_b32 v%d, 0" % (b + i))
            if f % 4 == 3 and pend:
                for x in pend.pop(0): A(x)
        assert not pend
        nissued = min(L, 5)
        s.stamp(2)
        A("s_waitcnt vmcnt(%d)" % (4 * (nissued - 2)))
        A("s_barrier")
        s.stamp(3)
        for t in range(8): A(s.kread(0, 0, t))
        for g in range(nissued, L):
            for x in issue_group(g): A(x)
        A("s_waitcnt lgkmcnt(0)")
        for qb in range(2):
            for t in range(8): A(s.qk(qb, t, zero=True))
        A("s_nop 7")
        for qb in range(2):
            if qb == 1: A("s_nop 3")
            S = vS(qb)
            for i in range(8):
                A("v_max3_f32 v%d, v%d, v%d, v%d" % (vM(qb), vM(qb), S + 2 * i, S + 2 * i + 1))
        for qb in range(2): A("v_mov_b32 v%d, v%d" % (vT + qb, vM(qb)))
        A("s_nop 0")
        for qb in range(2): A("v_permlane32_swap_b32 v%d, v%d" % (vT + qb, vM(qb)))
        A("s_nop 0")
        for qb in range(2): A("v_max_f32 v%d, v%d, v%d" % (vM(qb), vM(qb), vT + qb))
        A("s_mov_b32 s%d, %s" % (sT, f32(-s.bias)))
        for qb in range(2): A("v_sub_f32 v%d, s%d, v%d" % (vNM(qb), sT, vM(qb)))
        for qb in range(2):
            for i in range(1, 16): A("v_mov_b32 v%d, v%d" % (vNM(qb) + i, vNM(qb)))
        for i in range(16): A("v_mov_b32 v%d, %s" % (vS(1) + i, "0" if i < 6 else "0xff800000"))
        if s.novalu:
            for i in range(16): A("v_accvgpr_read_b32 v%d, a%d" % (vP(0) + i, i))
        if s.nolds:
            for r in range(16): A(s.vread(0, 0, r))
            A("s_waitcnt lgkmcnt(0)")
        s.stamp(4)
        if s.instr:
            A("s_waitcnt lgkmcnt(0)\ns_mov_b64 s[48:49], s[44:45]\ns_mov_b64 s[50:51], s[44:45]")
        A(".p2align 6")
        A("L_loop:")
        n0 = len(s.lines)
        for T in range(4):
            for kb in range(2):
                s.period(T, kb, last=(T == 3 and kb == 1))
        body = s.lines[n0:]
        A("s_cbranch_scc1 L_loop")
        s.stamp(5)
        s.period(0, 0, tail=True)
        for qb in range(2): A("v_mov_b32 v%d, v%d" % (vT + qb, vL(qb)))
        A("s_nop 0")
        for qb in range(2): A("v_permlane32_swap_b32 v%d, v%d" % (vT + qb, vL(qb)))
        A("s_nop 0")
        for qb in range(2): A("v_add_f32 v%d, v%d, v%d" % (vL(qb), vL(qb), vT + qb))
        for qb in range(2): A("v_rcp_f32 v%d, v%d" % (vT + 2 * qb, vL(qb)))
        A("s_mov_b32 s%d, %s" % (sT, f32(s.thr)))
        A("v_mov_b32 v%d, v%d\nv_mov_b32 v%d, v%d" % (vT + 1, vT, vT + 3, vT + 2))
        A("v_cmp_nge_f32 s[38:39], s%d, v%d" % (sT, vL(0)))
        A("v_cmp_nge_f32 vcc, s%d, v%d" % (sT, vL(1)))
        A("s_mov_b32 s%d, 8192" % (sT + 1))
        k = 0
        for qb in range(2):
            if qb == 1: A("s_nop 3")
            for db in range(4):
                for dh in range(2):
                    o = vO(qb, db) + 8 * dh
                    tb = vT + 4 + 4 * (k % 4); k += 1
                    for i in range(4):
                        A("v_pk_mul_f32 %s, %s, %s" % (R("v", o + 2 * i, 2), R("v", o + 2 * i, 2), R("v", vT + 2 * qb, 2)))
                    for i in range(4):
                        A("v_cvt_pk_bf16_f32 v%d, v%d, v%d" % (tb + i, o + 2 * i, o + 2 * i + 1))
                    A("buffer_store_dwordx4 %s, v%d, %s, %s offen offset:%d %s" % (R("v", tb, 4), vOA, R("s", sO, 4), "s%d" % (sT + 1) if qb else "0", db * 64 + dh * 32, s.st))
        s.stamp(6)
        A("s_cmp_lg_u32 s%d, 0\ns_cbranch_scc1 L_fin" % sPASS)
        A("s_or_b64 vcc, vcc, s[38:39]\ns_cmp_lg_u64 vcc, 0\ns_cselect_b32 s%d, 1, 0" % sT)
        A("s_lshl_b32 s%d, s%d, 2\ns_add_u32 s%d, s%d, %d" % (sT + 1, sW, sT + 1, sT + 1, FLAG_OFF))
        A("v_mov_b32 v%d, s%d\nv_mov_b32 v%d, s%d\nv_mov_b32 v%d, %d" % (vT, sT, vT + 1, sT + 1, vT + 2, FLAG_OFF))
        A("ds_write_b32 v%d, v%d\ns_waitcnt lgkmcnt(0)\ns_barrier" % (vT + 1, vT))
        A("ds_read_b128 %s, v%d\ns_waitcnt lgkmcnt(0)" % (R("v", vT + 24, 4), vT + 2))
        A("v_or3_b32 v%d, v%d, v%d, v%d\nv_or_b32 v%d, v%d, v%d\ns_nop 1" % (vT, vT + 24, vT + 25, vT + 26, vT, vT, vT + 27))
        A("v_readfirstlane_b32 s%d, v%d\ns_nop 3\ns_cmp_eq_u32 s%d, 0\ns_cbranch_scc1 L_fin" % (sT, vT, sT))
        A("s_mov_b32 s%d, 1\ns_mov_b32 s%d, 0" % (sPASS, sSOK))
        A("s_waitcnt vmcnt(0)")
        A("L_maxpass:")
        A("s_barrier")
        d = s.dma_group(0, sK, "s%d" % sSOK)
        A(d[0]); A("s_nop 0")
        for x in d[1:]: A(x)
        A("s_waitcnt vmcnt(0)\ns_barrier")
        for kb in range(2):
            for t in range(8): A(s.kread(0, kb, t))
            A("s_waitcnt lgkmcnt(0)")
            for qb in range(2):
                for t in range(8): A(s.qk(qb, t, zero=True))
            A("s_nop 11")
            for qb in range(2):
                S = vS(qb)
                for i in range(8):
                    A("v_max3_f32 v%d, v%d, v%d, v%d" % (vM(qb), vM(qb), S + 2 * i, S + 2 * i + 1))
        A("s_add_u32 s%d, s%d, 0x4000\ns_cmp_lt_u32 s%d, 0x80000\ns_cbranch_scc1 L_maxpass" % (sSOK, sSOK, sSOK))
        A("s_barrier\ns_branch L_start")
        A("L_fin:")
        if s.dbg == -1:
            A("s_waitcnt vmcnt(0)")
            A("s_memrealtime s[42:43]\ns_memtime s[46:47]\ns_load_dwordx2 s[64:65], s[0:1], 32\ns_waitcnt lgkmcnt(0)")
            A("s_mov_b32 s68, s64\ns_mov_b32 s69, s65\ns_mov_b32 s70, 256\ns_mov_b32 s71, 0x20000")
            A("s_cmp_ge_u32 s2, 8\ns_cbranch_scc1 L_end\ns_cmp_lg_u32 s3, 0\ns_cbranch_scc1 L_end")
            A("s_lshl_b32 s36, s2, 2\nv_mov_b32 v3, s36\ns_mov_b64 exec, 1")
            A("s_sub_u32 s36, s42, s40\nv_mov_b32 v8, s36\ns_sub_u32 s36, s46, s44\nv_mov_b32 v9, s36")
            A("buffer_store_dword v8, v3, s[68:71], 0 offen\nbuffer_store_dword v9, v3, s[68:71], 0 offen offset:32")
        elif s.dbg is not None:
            A("s_waitcnt vmcnt(0)")
            A("s_memrealtime s[42:43]\ns_memtime s[46:47]\ns_load_dwordx2 s[64:65], s[0:1], 32\ns_waitcnt lgkmcnt(0)")
            A("s_mov_b32 s68, s64\ns_mov_b32 s69, s65\ns_mov_b32 s70, 256\ns_mov_b32 s71, 0x20000")
            A("v_mov_b32 v3, 0")
            A("s_not_b32 s36, s40\nv_mov_b32 v8, s36\nv_mov_b32 v9, s42\ns_mov_b64 exec, 1")
            A("buffer_atomic_umax v8, v3, s[68:71], 0 offen offset:56\nbuffer_atomic_umax v9, v3, s[68:71], 0 offen offset:60")
            A("s_cmp_lg_u32 s2, %d\ns_cbranch_scc1 L_end\ns_cmp_lg_u32 s3, 0\ns_cbranch_scc1 L_end" % s.dbg)
            for j, (a, b) in enumerate([(42, 40), (46, 44)] + [(r, 44) for r in range(48, 62, 2)]):
                A("s_sub_u32 s36, s%d, s%d\nv_mov_b32 v8, s36" % (a, b))
                A("buffer_store_dword v8, v3, s[68:71], 0 offen offset:%d" % (j * 4))
                A("s_nop 1")
        elif s.probe is not None:
            A("s_waitcnt vmcnt(0)")
            A("s_memrealtime s[42:43]\ns_memtime s[46:47]\ns_waitcnt lgkmcnt(0)")
            A("s_cmp_lg_u32 s2, %d\ns_cbranch_scc1 L_end" % s.probe[3])
            a, b, div = s.probe[:3]
            A("s_sub_u32 s36, s%d, s%d" % (a, b))
            if div == 10:
                A("s_mul_hi_u32 s36, s36, 429496730")
            if div == 0:
                A("s_mov_b32 s36, 0")
            A("s_add_u32 s36, s36, 15000\ns_add_u32 s36, s36, s40")
            A("L_spin:\ns_sleep 4\ns_memrealtime s[42:43]\ns_waitcnt lgkmcnt(0)\ns_sub_u32 s37, s42, s36\ns_cmp_lt_i32 s37, 0\ns_cbranch_scc1 L_spin")
        elif s.stamps:
            A("s_waitcnt vmcnt(0)")
            A("s_memrealtime s[42:43]\ns_memtime s[46:47]\ns_getreg_b32 s62, hwreg(HW_REG_XCC_ID)\ns_mov_b32 s63, 0\ns_waitcnt lgkmcnt(0)")
            A("s_mov_b32 s68, s64\ns_mov_b32 s69, s65\ns_mov_b32 s70, 0x100000\ns_mov_b32 s71, 0x20000")
            A("s_lshl_b32 s37, s2, 2\ns_add_u32 s37, s37, s3\ns_mul_i32 s37, s37, 96\nv_mov_b32 v3, s37")
            for j, r in enumerate([40, 42, 44, 46] + list(range(48, 64, 2))):
                A("v_mov_b32 v8, s%d\nv_mov_b32 v9, s%d" % (r, r + 1))
                A("buffer_store_dwordx2 v[8:9], v3, s[68:71], 0 offen offset:%d" % (j * 8))
                A("s_nop 1")
        A("L_end:\ns_endpgm")
        A('.section .rodata,"a"\n.p2align 6\n.amdhsa_kernel %s' % KN)
        A("  .amdhsa_next_free_vgpr 384\n  .amdhsa_next_free_sgpr 102\n  .amdhsa_accum_offset 256\n  .amdhsa_group_segment_fixed_size 0\n  .amdhsa_kernarg_size 48\n  .amdhsa_user_sgpr_count 2\n  .amdhsa_user_sgpr_kernarg_segment_ptr 1\n  .amdhsa_system_sgpr_workgroup_id_x 1\n  .amdhsa_float_denorm_mode_32 3\n.end_amdhsa_kernel")
        errs = hazards.check(s.lines, "linear") + hazards.check(body + body, "loop")
        return "\n".join(s.lines) + "\n", errs

def gen(name, **kw):
    txt, errs = Gen(**kw).build()
    open(name, "w").write(txt)
    return errs

if __name__ == "__main__":
    import ast
    name = sys.argv[1]
    kw = {}
    for a in sys.argv[2:]:
        k, v = a.split("=", 1)
        try: kw[k] = ast.literal_eval(v)
        except Exception: kw[k] = v
    e = gen(name, **kw)
    print(name, "hazards:", len(e))
```

```python
import re
TRANS = ("v_exp_f32", "v_log_f32", "v_rcp_f32", "v_rsq_f32", "v_sqrt_f32", "v_sin_f32", "v_cos_f32")
def regs(tok):
    tok = tok.strip()
    tok = tok.lstrip("-")
    if tok.startswith("abs("): tok = tok[4:-1]
    if tok.startswith("|"): tok = tok.strip("|")
    m = re.fullmatch(r"([vas])(\d+)", tok)
    if m: return {(m.group(1), int(m.group(2)))}
    m = re.fullmatch(r"([vas])\[(\d+):(\d+)\]", tok)
    if m: return {(m.group(1), i) for i in range(int(m.group(2)), int(m.group(3)) + 1)}
    if tok == "vcc": return {("s", "vcc")}
    if tok == "m0": return {("s", "m0")}
    if tok == "exec": return {("s", "exec")}
    return set()
class I:
    def __init__(s, text):
        s.text = text
        t = text.split(";")[0].strip()
        parts = t.split(None, 1)
        s.op = parts[0] if parts else ""
        ops = []
        if len(parts) > 1:
            ops = [x.strip() for x in parts[1].split(",")]
            if ops:
                last = ops[-1].split()
                ops[-1] = last[0] if last else ""
                s.mods = last[1:]
        else:
            s.mods = []
        s.ops = ops
        op = s.op
        s.kind = "other"
        s.w = set(); s.r = set(); s.a = set(); s.b = set(); s.c = set(); s.states = 1
        if op.startswith("v_mfma"):
            s.kind = "mfma"; s.w = regs(ops[0]); s.a = regs(ops[1]); s.b = regs(ops[2]); s.c = regs(ops[3]); s.r = s.a | s.b | s.c
            s.passes = 8 if "32x32" in op else 4
        elif op.startswith("v_smfmac"):
            s.kind = "mfma"; s.w = regs(ops[0]); s.a = regs(ops[1]) | regs(ops[3]); s.b = regs(ops[2]); s.c = regs(ops[0]); s.r = s.a | s.b | s.c
            s.passes = 8
        elif op.startswith("v_permlane"):
            s.kind = "valu"; s.w = regs(ops[0]) | regs(ops[1]); s.r = set(s.w)
        elif op.startswith("v_cmp"):
            s.kind = "valu"; s.w = regs(ops[0]); s.r = set().union(*[regs(x) for x in ops[1:]])
        elif op.startswith("v_"):
            s.kind = "valu"; s.w = regs(ops[0]); s.r = set().union(*[regs(x) for x in ops[1:]]) if len(ops) > 1 else set()
            if op.startswith("v_fmac") or op.startswith("v_dot2c"): s.r |= s.w
            if op.startswith("v_cndmask") and len(ops) == 3: s.r |= {("s", "vcc")}
        elif op.startswith("ds_read"):
            s.kind = "dsr"; s.w = regs(ops[0]); s.r = regs(ops[1])
        elif op.startswith("ds_write"):
            s.kind = "dsw"; s.r = set().union(*[regs(x) for x in ops])
        elif op.startswith("buffer_load") or op.startswith("global_load"):
            if "lds" in s.mods:
                s.kind = "dma"; s.r = set().union(*[regs(x) for x in ops]) | {("s", "m0")}
            else:
                s.kind = "vload"; s.w = regs(ops[0]); s.r = set().union(*[regs(x) for x in ops[1:]])
        elif op.startswith("buffer_store") or op.startswith("global_store"):
            s.kind = "vstore"; s.r = set().union(*[regs(x) for x in ops]); s.data = regs(ops[0]) if op.startswith("buffer") else regs(ops[1])
        elif op == "s_nop":
            s.kind = "nop"; s.states = int(ops[0], 0) + 1
        elif op == "s_waitcnt":
            s.kind = "wait"
            m = re.search(r"lgkmcnt\((\d+)\)", t); s.lgkm = int(m.group(1)) if m else None
            m = re.search(r"vmcnt\((\d+)\)", t); s.vm = int(m.group(1)) if m else None
        elif op.startswith("s_load") or op.startswith("s_memtime") or op.startswith("s_memrealtime"):
            s.kind = "smem"; s.w = regs(ops[0])
        elif op.startswith("s_"):
            s.kind = "salu"
            if op.startswith("s_cmp") or op.startswith("s_cbranch") or op in ("s_barrier", "s_branch", "s_endpgm", "s_setprio"):
                s.r = set().union(*[regs(x) for x in ops]) if ops else set()
            else:
                s.w = regs(ops[0]); s.r = set().union(*[regs(x) for x in ops[1:]]) if len(ops) > 1 else set()
        s.trans = any(op.startswith(x) for x in TRANS)

def isins(x):
    x = x.strip()
    return not (not x or x.startswith(";") or x.startswith(".") or x.split(";")[0].strip().endswith(":"))

def pad(lines, start=0):
    head = lines[:start]
    flat = [x for l in lines[start:] for x in l.split("\n")]
    nh = sum(1 for l in head for x in l.split("\n") if isins(x))
    while True:
        short = []
        check(head + flat, verbose=False, short=short)
        short = [x for x in short if x[0] >= nh]
        if not short: break
        j = min(x[0] for x in short)
        need = max(x[1] for x in short if x[0] == j)
        k = nh
        for pos, x in enumerate(flat):
            if isins(x):
                if k == j:
                    flat.insert(pos, "s_nop %d" % (need - 1)); break
                k += 1
    return head + flat

_cache = {}
def check(lines, name="", verbose=True, short=None):
    ins = []
    for l in lines:
        for x in l.split("\n"):
            x = x.strip()
            if not isins(x): continue
            if x not in _cache: _cache[x] = I(x)
            ins.append(_cache[x])
    errs = []
    n = len(ins)
    for i, p in enumerate(ins):
        dist = 0
        for j in range(i + 1, min(n, i + 24)):
            c = ins[j]
            need = 0; why = ""
            if p.kind == "mfma":
                big = 12 if p.passes == 8 else 8
                if c.kind == "mfma":
                    if p.w & (c.a | c.b): need, why = big, "mfma D->A/B"
                    elif p.w & c.c and not (p.w == c.c and p.passes == c.passes): need, why = big - 2, "mfma D->C partial"
                elif c.kind in ("valu", "dsr", "dsw", "vload", "vstore", "dma"):
                    if p.w & (c.r | c.w): need, why = big, "mfma D->valu/mem"
                    elif c.kind == "valu" and p.c & c.w: need, why = (7 if p.passes == 8 else 3), "mfma C WAR"
            if p.kind == "valu":
                vw = {x for x in p.w if x[0] in "va"}
                sw = {x for x in p.w if x[0] == "s"}
                if c.kind == "mfma" and vw & c.r: need, why = max(need, 2), "valu->mfma"
                if c.op.startswith("v_permlane") and vw & c.r: need, why = max(need, 2), "valu->permlane"
                if (c.op.startswith("v_readfirstlane") or c.op.startswith("v_readlane")) and vw & c.r: need, why = max(need, 1), "valu->readlane"
                if p.trans and c.kind == "valu" and not c.trans and vw & c.r: need, why = max(need, 1), "trans->valu"
                if "dpp" in c.text or "row_" in c.text or "quad_perm" in c.text:
                    if vw & c.r: need, why = max(need, 2), "valu->dpp"
                if sw and c.kind in ("vload", "vstore", "dma") and sw & c.r: need, why = max(need, 5), "valu sgpr->vmem"
                if sw and c.kind == "valu" and sw & c.r: need, why = max(need, 2), "valu sgpr->valu"
            if p.kind == "salu" and ("s", "m0") in p.w and c.kind == "dma": need, why = 1, "m0->dma"
            if p.kind == "vstore" and ("x4" in p.op or "x3" in p.op) and p.data & c.w: need, why = 2, "store data WAR"
            if need > dist and short is not None: short.append((j, need - dist))
            if need > dist:
                errs.append("%s: %s need %d have %d:\n   [%d] %s\n   [%d] %s" % (name, why, need, dist, i, p.text, j, c.text))
            dist += c.states
            if dist >= 12: break
    if short is not None: return errs
    pend = []
    for i, c in enumerate(ins):
        if c.kind == "wait" and c.lgkm is not None:
            while len(pend) > c.lgkm: pend.pop(0)
        use = c.r | c.w
        for (k, rg) in pend:
            if rg & use:
                errs.append("%s: lds result used before wait:\n   [%d] %s\n   [%d] %s" % (name, k, ins[k].text, i, c.text))
        if c.kind == "dsr": pend.append((i, c.w))
        elif c.kind == "dsw": pend.append((i, set()))
        elif c.kind == "smem": pend.append((i, c.w))
    pend = []
    for i, c in enumerate(ins):
        if c.kind == "wait" and c.vm is not None:
            while len(pend) > c.vm: pend.pop(0)
        use = c.r | c.w
        for (k, rg) in pend:
            if rg & use:
                errs.append("%s: vmem result used before wait:\n   [%d] %s\n   [%d] %s" % (name, k, ins[k].text, i, c.text))
        if c.kind == "vload": pend.append((i, c.w))
        elif c.kind in ("dma", "vstore"): pend.append((i, set()))
    if verbose:
        for e in errs[:6]: print(e)
        if errs: print("%s: %d hazard problems" % (name, len(errs)))
    return errs
```

```python
import sys, struct
import hazards

KN = "standalone__mha_softmax__near_ridge_kernel"
PITCH = 1056
SLOT = 16 * PITCH
VBASE = 4 * SLOT
FLAG_OFF = 8 * SLOT
LDS_BYTES = 8 * SLOT + 64
BIASB = 1888

def f32(x): return "0x%08x" % struct.unpack("<I", struct.pack("<f", x))[0]
def R(p, b, n): return "%s[%d:%d]" % (p, b, b + n - 1)

vDMA = 2
vK = 6
vV = 7
vQA = 8
vOA = 9
def vA(qb): return 12 + qb
def vM(qb): return 16 + qb
vT = 20
def vS(qb): return 48 + 4 * qb
def vNM(qb): return 64 + 4 * qb
vONE = 80
def vL(qb): return 84 + 4 * qb
vE = 100
vQR = 40
vW = 32
vOR = 44
def vP(buf, qb, ks): return 128 + buf * 64 + qb * 16 + ks * 4
def aO(qb, db): return (qb * 8 + db) * 4
def aQ(qb, t): return 128 + (qb * 4 + t) * 4
def aK(buf, t): return 192 + buf * 16 + 4 * t
def aV(buf, ks): return 224 + buf * 16 + 4 * ks

sW = 3
sQ, sK, sV, sO = 4, 8, 12, 16
sSOK, sSOV = 20, 21
sWL = 22
sCNT = 23
sPASS = 32
sC = 34
sT = 36
sQB = 80
MF = "v_mfma_f32_16x16x32_bf16"

class Gen:
    def __init__(s, ld="nt", qld="nt", st="", stamps=0, bias=10.0, thr=2.0 ** 40, summode="mfma", nodma=0, nobar=0, novalu=0, nolds=0,
                 warm=1, instr=0, probe=None, dbg=None, dmagaps=None, pad=0, otlb=1, ones4=1, prepass=1, dsched="a", mspos=23, nfirst=12, nsecond=16):
        s.__dict__.update(locals())
        s.lines = []
        s.msum_qb = {"mfma": (0, 1, 2, 3), "hybrid": (0, 2), "valu": ()}[summode]
        s.dmagaps = {1: (24,), 2: (24, 28), 3: (24, 26, 28), 4: (24, 26, 28, 30)}
        if dmagaps: s.dmagaps[len(dmagaps)] = dmagaps
        cnt = {"a": (2, 2, 2, 2, 2, 2, 2, 2), "b": (3, 3, 3, 3, 2, 2, 0, 0), "c": (4, 4, 2, 2, 2, 2, 0, 0), "d": (3, 3, 2, 2, 2, 2, 1, 1), "e": (4, 4, 4, 0, 4, 0, 0, 0)}[dsched]
        seq = [(g, p) for g in range(4) for p in range(4)]
        s.dsched = {}
        k = 0
        for i, c in enumerate(cnt):
            s.dsched[(i + 7) & 7] = seq[k:k + c]; k += c
        assert all(g < 3 for b in (7, 0, 1, 2) for g, p in s.dsched[b])
        s.npre = cnt[0]
        s.vm1 = 4 + sum(cnt[:4])
        s.vm2 = 8
        s.add_qb = tuple(q for q in range(4) if q not in s.msum_qb)
    def A(s, x): s.lines.append(x)

    def m0set(s, lds_off): return "s_add_u32 m0, s%d, %d" % (sWL, lds_off)
    def dma(s, isK, i):
        return "buffer_load_dwordx4 v%d, %s, s%d offen offset:%d %s lds" % (vDMA + i, R("s", sK if isK else sV, 4), sSOK if isK else sSOV, i * PITCH, s.ld)
    def adv(s, isK):
        so = sSOK if isK else sSOV
        return "s_add_u32 s%d, s%d, 0x4000" % (so, so)
    def kread(s, buf, slot, j, t):
        return "ds_read_b128 %s, v%d offset:%d" % (R("a", aK(buf, t), 4), vK, slot * SLOT + j * 256 + t * 64)
    def vread(s, buf, slot0, db, r):
        ks, u = r >> 1, r & 1
        return "ds_read_b64_tr_b16 %s, v%d offset:%d" % (R("a", aV(buf, ks) + 2 * u, 2), vV, (slot0 + (ks >> 1)) * SLOT + (2 * (ks & 1) + u) * 256 + db * 32)
    def qk(s, buf, qb, t, zero=False):
        c = R("v", vS(qb), 4) if t else ("0" if zero else R("v", vNM(qb), 4))
        return "%s %s, %s, %s, %s" % (MF, R("v", vS(qb), 4), R("a", aK(buf, t), 4), R("a", aQ(qb, t), 4), c)
    def pv(s, buf, pbuf, qb, db, ks):
        o = R("a", aO(qb, db), 4)
        return "%s %s, %s, %s, %s" % (MF, o, R("a", aV(buf, ks), 4), R("v", vP(pbuf, qb, ks), 4), o)
    def msum(s, pbuf, qb, ks):
        o = R("v", vL(qb), 4)
        return "%s %s, %s, %s, %s" % (MF, o, R("v", vONE, 4), R("v", vP(pbuf, qb, ks), 4), o)

    def sm_table(s, first=False):
        t = []
        if first:
            for qb in range(4):
                for e in range(4):
                    t.append((4 * qb + 6 + e, "exp", qb, e))
                    if qb in s.add_qb: t.append((4 * qb + 7 + e, "add", qb, e))
                for h in range(2): t.append((4 * qb + 8 + 2 * h, "cvt", qb, h))
        else:
            addslot = {1: (16, 20, 26, 30), 3: (32, 36, 40, 44), 0: (10, 14, 18, 22), 2: (26, 30, 34, 38)}
            for qb in range(4):
                for e in range(4): t.append((8 * qb + 7 + 2 * e, "exp", qb, e))
                for h in range(2): t.append((8 * qb + 10 + 4 * h, "cvt", qb, h))
            for qb in s.add_qb:
                for e in range(4): t.append((addslot[qb][e], "add", qb, e))
        return t
    def sm_op(s, kind, qb, i, wbuf, bb):
        S = vS(qb)
        if kind == "exp": return "v_exp_f32 v%d, v%d" % (S + i, S + i)
        if kind == "add": return "v_add_f32 v%d, v%d, v%d" % (vA(qb), vA(qb), S + i)
        return "v_cvt_pk_bf16_f32 v%d, v%d, v%d" % (vP(wbuf, qb, bb >> 1) + 2 * (bb & 1) + i, S + 2 * i, S + 2 * i + 1)

    def dma_plan(s, par, b):
        out = []
        for grp, piece in s.dsched[b]:
            gpar = par ^ 1 if (b == 7 and grp < 2) else par
            isK = grp >= 2
            if isK: off = (((1 if gpar == 0 else 3) + (grp - 2)) & 3) * SLOT
            else: off = VBASE + ((2 if gpar == 0 else 0) + grp) * SLOT
            out.append((isK, off, piece))
        return out

    def block(s, par, b, do_qk=True, do_pv=True, first=False, last=False, extra=None):
        n = 16 if first else 32
        sh = [[] for _ in range(n)]
        mem = [[] for _ in range(n)]
        va = [[] for _ in range(n)]
        flush = []
        if not s.novalu:
            tab = s.sm_table(first)
            if (do_qk or b == 0) and not (first and b == 0):
                pp = par if b else par ^ 1
                for g, kind, qb, i in tab:
                    if g >= n: va[g - n].append(s.sm_op(kind, qb, i, pp ^ 1, (b - 1) & 7))
            if do_qk:
                for g, kind, qb, i in tab:
                    if g < n: va[g].append(s.sm_op(kind, qb, i, par ^ 1, b))
                if first and b == 7:
                    keep = set((k, q, i) for g, k, q, i in s.sm_table(False) if g >= 32)
                    for g, kind, qb, i in sorted(tab):
                        if g >= n and (kind, qb, i) not in keep: flush.append(s.sm_op(kind, qb, i, par ^ 1, b))
        buf = b & 1
        nb = (b + 1) & 7
        npar = par if b < 7 else par ^ 1
        g = 0
        if do_qk:
            kslot = (2 if npar == 0 else 0) + (nb >> 2)
            for t in range(4):
                if not s.nolds: mem[g].append(s.kread(buf ^ 1, kslot, nb & 3, t))
                g += 2
        g = 8
        if (do_pv and (do_qk or b < 7)) or (b == 7 and do_qk):
            for r in range(8):
                if not s.nolds: mem[g].append(s.vread(buf ^ 1, 0 if npar == 0 else 2, nb, r))
                g += 1 if first else 2
        if do_qk:
            plan = s.dma_plan(par, b)
            gaps = s.dmagaps[len(plan)] if plan else ()
            if first: gaps = [(1, 5, 9, 13)[i] for i in range(len(plan))]
            for (isK, off, piece), g in zip(plan, gaps):
                if not s.nodma:
                    if piece == 0 or g == gaps[0] and s.instr == 3: sh[g - 1].append(s.m0set(off))
                    mem[g].append(s.dma(isK, piece))
                if piece == 3: sh[g + 1].append(s.adv(isK))
            if b in (2, 6):
                w = "s_waitcnt vmcnt(%d) lgkmcnt(0)" % (s.vm1 + (s.otlb if first else 0) if b == 2 else s.vm2)
            else:
                w = "s_waitcnt lgkmcnt(0)"
            if flush: flush.append(w)
            else: sh[n - 1].append(w)
            if b in (3, 7):
                if not s.nobar: sh[0].append("s_barrier")
                if s.instr == 3:
                    sh[0].append("s_memrealtime s[72:73]\ns_memtime s[74:75]\ns_waitcnt lgkmcnt(0)\ns_mov_b32 m0, s76\ns_nop 1\nv_writelane_b32 v46, s72, m0\nv_writelane_b32 v47, s74, m0\ns_add_u32 s76, s76, 1")
        else:
            sh[n - 1].append("s_waitcnt lgkmcnt(0)")
        if last:
            sh[31 if any("s_add" in x for x in sh[31]) else 30].append("s_sub_u32 s%d, s%d, 1" % (sCNT, sCNT))
        ms = None
        if do_pv and do_qk and s.msum_qb:
            place = {4: {1: 0, 3: 1, 5: 2, 7: 3}, 2: {1: 0, 5: 1}}[len(s.msum_qb)]
            if b in place: ms = s.msum_qb[place[b]]
        for pos in range(n):
            m = None
            if first: m = s.qk(buf, pos >> 2, pos & 3)
            else:
                qb, k = pos >> 3, pos & 7
                if k < 4:
                    if do_qk: m = s.qk(buf, qb, k)
                elif do_pv: m = s.pv(buf, par, qb, b, k - 4)
            if m: s.A(m)
            for o in sh[pos] + mem[pos] + va[pos]: s.A(o)
            if extra:
                for o in extra(pos): s.A(o)
            if s.pad and m: s.A("s_nop %d" % (s.pad - 1))
            if ms is not None and pos == s.mspos:
                for ks in range(4): s.A(s.msum(par, ms, ks))
        for o in flush: s.A(o)

    def stamp(s, idx):
        if s.stamps: s.A("s_memtime s[%d:%d]" % (48 + 2 * idx, 49 + 2 * idx))

    def build(s):
        A = s.A
        A("; @launch grid=(256,1,1) block=(256,1,1) lds=%d" % LDS_BYTES)
        A('.amdgcn_target "amdgcn-amd-amdhsa--gfx950"')
        A(".text")
        A(".globl %s\n.p2align 8\n.type %s,@function\n%s:" % (KN, KN, KN))
        A("s_cmp_ge_u32 s2, 256\ns_cbranch_scc1 L_end")
        if s.stamps: A("s_memrealtime s[40:41]\ns_memtime s[44:45]")
        A("s_load_dwordx4 s[24:27], s[0:1], 0\ns_load_dwordx4 s[28:31], s[0:1], 16")
        if s.stamps: A("s_load_dwordx2 s[64:65], s[0:1], 40")
        if s.warm:
            A("s_getpc_b64 s[36:37]\nL_pc:")
            A("v_lshlrev_b32 v1, 7, v0\nv_min_u32 v1, L_end-L_pc, v1\nglobal_load_dword v11, v1, s[36:37]")
        A("v_lshrrev_b32 v1, 6, v0\nv_and_b32 v0, 63, v0\ns_nop 0\nv_readfirstlane_b32 s%d, v1" % sW)
        A("v_lshrrev_b32 v20, 4, v0\nv_and_b32 v21, 15, v0\nv_lshlrev_b32 v22, 12, v20\nv_lshl_add_u32 v22, v21, 4, v22")
        A("s_lshr_b32 s%d, s%d, 1\ns_lshl_b32 s%d, s%d, 11\ns_and_b32 s%d, s%d, 1\ns_lshl_b32 s%d, s%d, 9\ns_add_u32 s%d, s%d, s%d" % (sT, sW, sT, sT, sT + 1, sW, sT + 1, sT + 1, sT, sT, sT + 1))
        A("s_mul_i32 s%d, s%d, %d" % (sWL, sW, 4 * PITCH))
        A("v_add_u32 v22, s%d, v22" % sT)
        for i in range(4):
            goff = (4 * (i & 1) + (i >> 1)) * 256
            A("v_add_u32 v%d, %d, v22" % (vDMA + i, goff - PITCH * i + BIASB))
        A("s_lshl_b32 s%d, s%d, 14" % (sT, sW))
        A("v_lshlrev_b32 v23, 2, v20\nv_xor_b32 v23, v23, v21\nv_lshlrev_b32 v23, 4, v23\nv_lshl_add_u32 v23, v20, 8, v23\nv_add_u32 v%d, s%d, v23" % (vQA, sT))
        A("v_lshrrev_b32 v23, 3, v0\nv_and_b32 v24, 7, v0\nv_lshlrev_b32 v24, 4, v24\nv_lshl_add_u32 v23, v23, 8, v24\nv_add_u32 v%d, s%d, v23" % (vOA, sT))
        for qb in range(4): A("s_mov_b32 s%d, %d" % (sQB + qb, qb * 4096))
        A("s_waitcnt lgkmcnt(0)")
        A("s_lshl_b32 s%d, s2, 19" % sT)
        A("s_sub_u32 s26, s26, %d\ns_subb_u32 s27, s27, 0\ns_sub_u32 s28, s28, %d\ns_subb_u32 s29, s29, 0" % (BIASB, BIASB))
        A("s_add_u32 s%d, s26, s%d\ns_addc_u32 s%d, s27, 0\ns_mov_b32 s%d, %d\ns_mov_b32 s%d, 0x20000" % (sK, sT, sK + 1, sK + 2, 0x80000 + BIASB, sK + 3))
        A("s_add_u32 s%d, s28, s%d\ns_addc_u32 s%d, s29, 0\ns_mov_b32 s%d, %d\ns_mov_b32 s%d, 0x20000" % (sV, sT, sV + 1, sV + 2, 0x80000 + BIASB, sV + 3))
        A("s_lshl_b32 s%d, s2, 16" % sT)
        A("s_add_u32 s%d, s24, s%d\ns_addc_u32 s%d, s25, 0\ns_mov_b32 s%d, 0x10000\ns_mov_b32 s%d, 0x20000" % (sQ, sT, sQ + 1, sQ + 2, sQ + 3))
        A("s_add_u32 s%d, s30, s%d\ns_addc_u32 s%d, s31, 0\ns_mov_b32 s%d, 0x10000\ns_mov_b32 s%d, 0x20000" % (sO, sT, sO + 1, sO + 2, sO + 3))
        A("s_mov_b32 s%d, 0" % sPASS)
        for qb in range(4): A("v_mov_b32 v%d, 0xff800000" % vM(qb))
        A("L_start:")
        A("s_mov_b32 s%d, 0\ns_mov_b32 s%d, 0" % (sSOK, sSOV))
        def group(isK, off, n=4):
            return [s.m0set(off), "s_nop 0"] + [s.dma(isK, i) for i in range(n)] + ([s.adv(isK)] if n == 4 else [])
        PERM = (0, 3, 1, 2)
        def qgroup(qb):
            out = []
            for i in range(4):
                out.append(["s_add_u32 m0, s%d, %d" % (sWL, VBASE + qb * SLOT + i * PITCH - PERM[i] * 1024), "s_nop 0",
                            "buffer_load_dwordx4 v%d, %s, s%d offen offset:%d %s lds" % (vQA, R("s", sQ, 4), sQB + qb, PERM[i] * 1024, s.qld)])
            return out
        def pieces(isK, off, n=4):
            out = [[s.dma(isK, i)] for i in range(n)]
            if n: out[0] = [s.m0set(off), "s_nop 0"] + out[0]
            if n == 4: out[3].append(s.adv(isK))
            return out
        Q = [("K0", p) for p in pieces(True, 0)]
        for qb in range(4): Q += [("Q%d" % qb, p) for p in qgroup(qb)]
        Q += [("K1", p) for p in pieces(True, SLOT)] + [("K2", p) for p in pieces(True, 2 * SLOT)] + [("V0", p) for p in pieces(False, VBASE, s.npre)]
        st = {"n": 0}
        def issue(k=1):
            for _ in range(k):
                if st["n"] < len(Q):
                    for x in Q[st["n"]][1]: A(x)
                    st["n"] += 1
        def waitfor(tag):
            last = max(i for i, x in enumerate(Q) if x[0] == tag)
            if st["n"] <= last: issue(last + 1 - st["n"])
            A("s_waitcnt vmcnt(%d)" % (st["n"] - 1 - last))
        issue(s.nfirst)
        A("v_and_b32 v22, 3, v0\nv_bfe_u32 v23, v0, 2, 1\nv_lshl_add_u32 v22, v22, 1, v23\nv_and_b32 v23, 8, v0\nv_add_u32 v22, v22, v23")
        A("v_mul_u32_u24 v22, %d, v22\nv_lshrrev_b32 v23, 4, v0\nv_lshl_add_u32 v%d, v23, 4, v22" % (PITCH, vK))
        A("v_bfe_u32 v22, v0, 2, 2\nv_bfe_u32 v23, v0, 4, 1\nv_lshl_add_u32 v22, v22, 1, v23\nv_lshrrev_b32 v23, 5, v0\nv_lshl_add_u32 v22, v23, 3, v22")
        A("v_mul_u32_u24 v22, %d, v22\nv_and_b32 v23, 3, v0\nv_lshl_add_u32 v22, v23, 3, v22\nv_add_u32 v%d, %d, v22" % (PITCH, vV, VBASE))
        A("v_bfe_u32 v22, v0, 2, 2\nv_lshlrev_b32 v22, 1, v22\nv_mov_b32 v23, 0x78\nv_lshrrev_b32 v22, v22, v23\nv_and_b32 v22, 3, v22")
        A("v_mul_u32_u24 v22, %d, v22\nv_and_b32 v23, 3, v0\nv_lshl_add_u32 v22, v23, 8, v22\nv_lshrrev_b32 v24, 4, v0\nv_lshl_add_u32 v22, v24, 4, v22" % PITCH)
        A("v_add_u32 v22, s%d, v22\nv_add_u32 v22, %d, v22" % (sWL, VBASE))
        for t in range(4): A("v_xor_b32 v24, %d, v23\nv_lshl_add_u32 v%d, v24, 6, v22" % (t, vQR + t))
        A("v_and_b32 v%d, 15, v0\nv_lshrrev_b32 v%d, 5, v0\nv_xor_b32 v%d, v%d, v%d\nv_lshlrev_b32 v%d, 4, v%d" % (vE, vE + 1, vE + 1, vE + 1, vE, vE + 1, vE + 1))
        A("v_lshl_add_u32 v%d, v%d, 8, v%d\nv_bfe_u32 v%d, v0, 4, 1\nv_lshl_add_u32 v%d, v%d, 3, v%d" % (vE + 1, vE, vE + 1, vE, vE + 1, vE, vE + 1))
        for db in range(8): A("v_xor_b32 v%d, %d, v%d\nv_add_u32 v%d, s%d, v%d" % (vW + db, db * 32, vE + 1, vW + db, sWL, vW + db))
        A("v_lshrrev_b32 v%d, 3, v0\nv_and_b32 v%d, 7, v0\nv_xor_b32 v%d, v%d, v%d\nv_lshlrev_b32 v%d, 4, v%d" % (vE, vE + 1, vE + 1, vE + 1, vE, vE + 1, vE + 1))
        A("v_lshl_add_u32 v%d, v%d, 8, v%d\nv_add_u32 v%d, s%d, v%d" % (vE + 1, vE, vE + 1, vOR, sWL, vE + 1))
        c = 1.4426950408889634 / (128.0 ** 0.5)
        A("s_mov_b32 s%d, %s\ns_mov_b32 s%d, %s" % (sC, f32(c), sC + 1, f32(c)))
        A("s_mov_b32 s%d, 7" % sCNT)
        if s.ones4:
            A("v_and_b32 v22, 3, v0\nv_cmp_eq_u32 vcc, 0, v22\nv_mov_b32 v23, 0x3f803f80\ns_nop 0\nv_cndmask_b32 v%d, 0, v23, vcc" % vONE)
        else:
            A("v_mov_b32 v%d, 0x3f803f80" % vONE)
        for i in range(1, 4): A("v_mov_b32 v%d, v%d" % (vONE + i, vONE))
        for i in range(128): A("v_accvgpr_write_b32 a%d, 0" % i)
        for i in range(16): A("v_mov_b32 v%d, 0" % (vL(0) + i))
        for qb in range(4): A("v_mov_b32 v%d, 0" % vA(qb))
        s.stamp(0)
        issue(s.nsecond - st["n"])
        for qb in range(4):
            waitfor("Q%d" % qb)
            if qb == 0: s.stamp(1)
            for t in range(4): A("ds_read_b128 %s, v%d offset:%d" % (R("v", 128 + 4 * t, 4), vQR + t, qb * SLOT))
            if qb == 0:
                A("s_barrier")
                for t in range(4): A(s.kread(0, 0, 0, t))
                if s.prepass == 2:
                    for t in range(4): A(s.kread(1, 0, 1, t))
            for f in range(4):
                b = 128 + 4 * f
                if st["n"] < len(Q) and (Q[st["n"]][0] != "V0" or qb >= 1): issue(1)
                A("s_waitcnt lgkmcnt(%d)" % (3 - f + (4 * s.prepass if qb == 0 else 0)))
                for i in range(4):
                    A("v_lshlrev_b32 v%d, 16, v%d\nv_and_b32 v%d, 0xffff0000, v%d" % (vT + 2 * i, b + i, vT + 2 * i + 1, b + i))
                for i in range(4):
                    A("v_pk_mul_f32 %s, %s, %s" % (R("v", vT + 2 * i, 2), R("v", vT + 2 * i, 2), R("s", sC, 2)))
                for i in range(4):
                    A("v_cvt_pk_bf16_f32 v%d, v%d, v%d" % (vT + 8 + i, vT + 2 * i, vT + 2 * i + 1))
                for i in range(4):
                    A("v_accvgpr_write_b32 a%d, v%d" % (aQ(qb, f) + i, vT + 8 + i))
        issue(len(Q))
        if s.otlb:
            A("buffer_load_dword v10, v%d, %s, 0 offen" % (vOA, R("s", sO, 4)))
        s.stamp(2)
        A("s_waitcnt lgkmcnt(0)")
        for rep in range(s.prepass):
            for qb in range(4):
                for t in range(4): A(s.qk(rep, qb, t, zero=True))
            A("s_nop 4")
            for qb in range(4):
                S = vS(qb)
                A("v_max3_f32 v%d, v%d, v%d, v%d" % (vM(qb), vM(qb), S, S + 1))
            for qb in range(4):
                S = vS(qb)
                A("v_max3_f32 v%d, v%d, v%d, v%d" % (vM(qb), vM(qb), S + 2, S + 3))
        for sw in ("v_permlane32_swap_b32", "v_permlane16_swap_b32"):
            for qb in range(4): A("v_mov_b32 v%d, v%d" % (vT + qb, vM(qb)))
            for qb in range(4): A("%s v%d, v%d" % (sw, vT + qb, vM(qb)))
            for qb in range(4): A("v_max_f32 v%d, v%d, v%d" % (vM(qb), vM(qb), vT + qb))
        A("s_mov_b32 s%d, %s" % (sT, f32(-s.bias)))
        for qb in range(4): A("v_sub_f32 v%d, s%d, v%d" % (vNM(qb), sT, vM(qb)))
        for qb in range(4):
            for i in range(1, 4): A("v_mov_b32 v%d, v%d" % (vNM(qb) + i, vNM(qb)))
        if s.novalu:
            for i in range(128): A("v_accvgpr_read_b32 v%d, a%d" % (128 + i, 128 + (i & 63)))
        if s.nolds:
            for t in range(4): A(s.kread(1, 0, 1, t))
            for bf in range(2):
                for r in range(8): A(s.vread(bf, -4, bf, r).replace("offset:-", "offset:"))
            A("s_waitcnt lgkmcnt(0)")
        if s.instr == 3: A("s_mov_b32 s76, 0")
        A("s_nop 0")
        s.stamp(3)
        n0 = len(s.lines)
        for b in range(8): s.block(1, b, do_pv=False, first=True)
        s.lines = hazards.pad(s.lines)
        s.stamp(4)
        A(".p2align 6")
        A("L_loop:")
        n0 = len(s.lines)
        for b in range(8): s.block(0, b, last=(b == 7))
        A("s_cbranch_scc1 L_tail")
        n1 = len(s.lines)
        for b in range(8): s.block(1, b)
        body = s.lines[n0:]
        A("s_branch L_loop")
        A("L_tail:")
        n2 = len(s.lines)
        s.stamp(5)
        s.block(1, 0, do_qk=False)
        A("s_waitcnt vmcnt(0)")
        for qb in s.msum_qb:
            for ks in range(4): A(s.msum(1, qb, ks))
        for qb in s.add_qb:
            A("v_mov_b32 v%d, v%d" % (vL(qb), vA(qb)))
        if s.add_qb:
            for sw in ("v_permlane32_swap_b32", "v_permlane16_swap_b32"):
                for qb in s.add_qb: A("v_mov_b32 v%d, v%d" % (vT + qb, vL(qb)))
                A("s_nop 1")
                for qb in s.add_qb: A("%s v%d, v%d" % (sw, vT + qb, vL(qb)))
                A("s_nop 1")
                for qb in s.add_qb: A("v_add_f32 v%d, v%d, v%d" % (vL(qb), vL(qb), vT + qb))
        A("s_nop 7")
        A("s_mov_b32 s%d, %s" % (sT, f32(s.thr)))
        for qb in range(4): A("v_rcp_f32 v%d, v%d" % (vT + qb, vL(qb)))
        A("v_add_f32 v%d, v%d, v%d\nv_add_f32 v%d, v%d, v%d" % (vT + 5, vL(0), vL(1), vT + 6, vL(2), vL(3)))
        A("v_add_f32 v%d, v%d, v%d" % (vT + 5, vT + 5, vT + 6))
        A("v_cmp_nge_f32 vcc, s%d, v%d" % (sT, vT + 5))
        def conv(qb, db, k):
            tb = vE + 6 * (k % 4)
            o = aO(qb, db)
            ops = ["v_accvgpr_read_b32 v%d, a%d" % (tb + i, o + i) for i in range(4)]
            ops += ["v_mul_f32 v%d, v%d, v%d" % (tb + i, tb + i, vT + qb) for i in range(4)]
            ops += ["v_cvt_pk_bf16_f32 v%d, v%d, v%d" % (tb + 4 + i, tb + 2 * i, tb + 2 * i + 1) for i in range(2)]
            ops += ["ds_write_b64 v%d, %s offset:%d" % (vW + db, R("v", tb + 4, 2), qb * SLOT)]
            return ops
        def oread(h, qb, i):
            return "ds_read_b128 %s, v%d offset:%d" % (R("v", 128 + 32 * h + 8 * qb + 4 * i, 4), vOR, qb * SLOT + i * 2048 + ((h ^ i) * 128))
        def ostore(h, qb, i):
            return "buffer_store_dwordx4 %s, v%d, %s, s%d offen offset:%d %s" % (R("v", 128 + 32 * h + 8 * qb + 4 * i, 4), vOA, R("s", sO, 4), sQB + qb, i * 2048 + h * 128, s.st)
        k = 0
        for b in range(1, 8):
            q = []
            for qb in range(4):
                q.append(conv(qb, b - 1, k)); k += 1
            def extra(pos, q=q, b=b):
                qb, kk = pos >> 3, pos & 7
                if kk < 4: return []
                ops = q[qb]
                out = [ops[0:3], ops[3:6], ops[6:9], ops[9:11]][kk - 4]
                if b == 5 and kk in (4, 6): out = [oread(0, qb, (kk - 4) >> 1)] + out
                if b == 6 and kk in (4, 6): out = [ostore(0, qb, (kk - 4) >> 1)] + out
                return out
            s.block(1, b, do_qk=False, extra=extra)
        for qb in range(4):
            for x in conv(qb, 7, k): A(x)
            k += 1
            if qb:
                A("s_waitcnt lgkmcnt(1)")
                for i in range(2): A(ostore(1, qb - 1, i))
            for i in range(2): A(oread(1, qb, i))
        A("s_waitcnt lgkmcnt(0)")
        for i in range(2): A(ostore(1, 3, i))
        pre = s.lines[n0:n1]
        s.lines[n2:] = hazards.pad(pre + s.lines[n2:], start=len(pre))[len(pre):]
        s.stamp(6)
        A("s_cmp_lg_u32 s%d, 0\ns_cbranch_scc1 L_fin" % sPASS)
        A("s_cmp_lg_u64 vcc, 0\ns_cselect_b32 s%d, 1, 0" % sT)
        A("s_lshl_b32 s%d, s%d, 2\ns_add_u32 s%d, s%d, %d" % (sT + 1, sW, sT + 1, sT + 1, FLAG_OFF))
        A("v_mov_b32 v%d, s%d\nv_mov_b32 v%d, s%d\nv_mov_b32 v%d, %d" % (vT, sT, vT + 1, sT + 1, vT + 2, FLAG_OFF))
        A("ds_write_b32 v%d, v%d\ns_waitcnt lgkmcnt(0)\ns_barrier" % (vT + 1, vT))
        A("ds_read_b128 %s, v%d\ns_waitcnt lgkmcnt(0)" % (R("v", vT + 8, 4), vT + 2))
        A("v_or3_b32 v%d, v%d, v%d, v%d\nv_or_b32 v%d, v%d, v%d\ns_nop 1" % (vT, vT + 8, vT + 9, vT + 10, vT, vT, vT + 11))
        A("v_readfirstlane_b32 s%d, v%d\ns_nop 3\ns_cmp_eq_u32 s%d, 0\ns_cbranch_scc1 L_fin" % (sT, vT, sT))
        A("s_mov_b32 s%d, 1\ns_mov_b32 s%d, 0" % (sPASS, sSOK))
        A("s_waitcnt vmcnt(0)")
        A("L_maxpass:")
        A("s_barrier")
        for x in group(True, 0): A(x)
        A("s_waitcnt vmcnt(0)\ns_barrier")
        for j in range(4):
            for t in range(4): A(s.kread(0, 0, j, t))
            A("s_waitcnt lgkmcnt(0)")
            for qb in range(4):
                for t in range(4): A(s.qk(0, qb, t, zero=True))
            A("s_nop 7")
            for qb in range(4):
                S = vS(qb)
                A("v_max3_f32 v%d, v%d, v%d, v%d" % (vM(qb), vM(qb), S, S + 1))
                A("v_max3_f32 v%d, v%d, v%d, v%d" % (vM(qb), vM(qb), S + 2, S + 3))
        A("s_cmp_lt_u32 s%d, 0x80000\ns_cbranch_scc1 L_maxpass" % sSOK)
        A("s_barrier\ns_branch L_start")
        A("L_fin:")
        if s.dbg == -1:
            A("s_waitcnt vmcnt(0)")
            A("s_memrealtime s[42:43]\ns_memtime s[46:47]\ns_load_dwordx2 s[64:65], s[0:1], 32\ns_waitcnt lgkmcnt(0)")
            A("s_mov_b32 s68, s64\ns_mov_b32 s69, s65\ns_mov_b32 s70, 256\ns_mov_b32 s71, 0x20000")
            A("s_cmp_ge_u32 s2, 8\ns_cbranch_scc1 L_end\ns_cmp_lg_u32 s3, 0\ns_cbranch_scc1 L_end")
            A("s_lshl_b32 s36, s2, 2\nv_mov_b32 v3, s36\ns_mov_b64 exec, 1")
            A("s_sub_u32 s36, s42, s40\nv_mov_b32 v8, s36\ns_sub_u32 s36, s46, s44\nv_mov_b32 v9, s36")
            A("buffer_store_dword v8, v3, s[68:71], 0 offen\nbuffer_store_dword v9, v3, s[68:71], 0 offen offset:32")
        elif s.probe is not None:
            A("s_waitcnt vmcnt(0)")
            A("s_memrealtime s[42:43]\ns_memtime s[46:47]\ns_waitcnt lgkmcnt(0)")
            A("s_cmp_lg_u32 s2, %d\ns_cbranch_scc1 L_end" % s.probe[3])
            a, b, div = s.probe[:3]
            A("s_sub_u32 s36, s%d, s%d" % (a, b))
            if div == 10: A("s_mul_hi_u32 s36, s36, 429496730")
            if div == 0: A("s_mov_b32 s36, 0")
            A("s_add_u32 s36, s36, 15000\ns_add_u32 s36, s36, s40")
            A("L_spin:\ns_sleep 4\ns_memrealtime s[42:43]\ns_waitcnt lgkmcnt(0)\ns_sub_u32 s37, s42, s36\ns_cmp_lt_i32 s37, 0\ns_cbranch_scc1 L_spin")
        elif s.stamps:
            A("s_waitcnt vmcnt(0)")
            A("s_memrealtime s[42:43]\ns_memtime s[46:47]\ns_getreg_b32 s62, hwreg(HW_REG_XCC_ID)\ns_mov_b32 s63, 0\ns_waitcnt lgkmcnt(0)")
            A("s_mov_b32 s68, s64\ns_mov_b32 s69, s65\ns_mov_b32 s70, 0x100000\ns_mov_b32 s71, 0x20000")
            A("s_lshl_b32 s37, s2, 2\ns_add_u32 s37, s37, s3\ns_mul_i32 s37, s37, 96\nv_mov_b32 v3, s37")
            if s.instr == 3:
                A("s_lshl_b32 s38, s2, 2\ns_add_u32 s38, s38, s3\ns_lshl_b32 s38, s38, 9\ns_add_u32 s38, s38, 0x20000\nv_lshlrev_b32 v4, 3, v0\nv_add_u32 v4, s38, v4")
                A("buffer_store_dwordx2 v[46:47], v4, s[68:71], 0 offen")
            for j, r in enumerate([40, 42, 44, 46] + list(range(48, 64, 2))):
                A("v_mov_b32 v8, s%d\nv_mov_b32 v9, s%d" % (r, r + 1))
                A("buffer_store_dwordx2 v[8:9], v3, s[68:71], 0 offen offset:%d" % (j * 8))
                A("s_nop 1")
        A("L_end:\ns_endpgm")
        A('.section .rodata,"a"\n.p2align 6\n.amdhsa_kernel %s' % KN)
        A("  .amdhsa_next_free_vgpr 512\n  .amdhsa_next_free_sgpr 102\n  .amdhsa_accum_offset 256\n  .amdhsa_group_segment_fixed_size 0\n  .amdhsa_kernarg_size 48\n  .amdhsa_user_sgpr_count 2\n  .amdhsa_user_sgpr_kernarg_segment_ptr 1\n  .amdhsa_system_sgpr_workgroup_id_x 1\n  .amdhsa_float_denorm_mode_32 3\n.end_amdhsa_kernel")
        errs = hazards.check(s.lines[:n2], "linear") + hazards.check(body + body, "loop") + hazards.check(s.lines[n0:n1] + s.lines[n2:], "tail")
        return "\n".join(s.lines) + "\n", errs

def gen(name, **kw):
    txt, errs = Gen(**kw).build()
    open(name, "w").write(txt)
    return errs

if __name__ == "__main__":
    import ast
    name = sys.argv[1]
    kw = {}
    for a in sys.argv[2:]:
        k, v = a.split("=", 1)
        try: kw[k] = ast.literal_eval(v)
        except Exception: kw[k] = v
    e = gen(name, **kw)
    print(name, "hazards:", len(e))
```

```python
import sys, struct
import hazards

KN = "standalone__mha_softmax__near_ridge_kernel"
PITCH = 1056
SLOT = 16 * PITCH
VBASE = 4 * SLOT
FLAG_OFF = 8 * SLOT
LDS_BYTES = 8 * SLOT + 64
BIASB = 1888

def f32(x): return "0x%08x" % struct.unpack("<I", struct.pack("<f", x))[0]
def R(p, b, n): return "%s[%d:%d]" % (p, b, b + n - 1)

vDMA = 2
vK = 6
vV = 7
vQA = 8
vOA = 9
def vA(qb): return 12 + qb
def vM(qb): return 16 + qb
vT = 20
def vS(qb): return 48 + 4 * qb
def vNM(qb): return 64 + 4 * qb
vONE = 80
def vL(qb): return 84 + 4 * qb
vE = 100
vQR = 40
vW = 32
vOR = 44
def vP(buf, qb, ks): return 128 + buf * 64 + qb * 16 + ks * 4
def aO(qb, db): return (qb * 8 + db) * 4
def aQ(qb, t): return 128 + (qb * 4 + t) * 4
def aK(buf, t): return 192 + buf * 16 + 4 * t
def aV(buf, ks): return 224 + buf * 16 + 4 * ks

sW = 3
sQ, sK, sV, sO = 4, 8, 12, 16
sSOK, sSOV = 20, 21
sWL = 22
sCNT = 23
sPASS = 32
sC = 34
sT = 36
sSEL = 84
vIDX = 45
sQB = 80
MF = "v_mfma_f32_16x16x32_bf16"

class Gen:
    def __init__(s, ld="nt", qld="nt", st="", stamps=0, bias=10.0, thr=2.0 ** 40, summode="mfma", nodma=0, nobar=0, novalu=0, nolds=0,
                 warm=1, instr=0, probe=None, dbg=None, dmagaps=None, pad=0, otlb=1, ones4=1, prepass=1, dsched="a", mspos=23, nfirst=12, nsecond=16, hmap=0, lim=0, lim1=0, padn=0, perm=0, smpl=1, lim2=0, share=(), latev=0, pre0=0, pre1=0, pre2=0, lin=0):
        s.__dict__.update(locals())
        s.lines = []
        s.msum_qb = {"mfma": (0, 1, 2, 3), "hybrid": (0, 2), "valu": (), "sp": (0, 1, 2, 3), "sphy": (0, 2)}[summode]
        s.sp = summode.startswith("sp")
        s.dmagaps = {1: (24,), 2: (24, 28), 3: (24, 26, 28), 4: (24, 26, 28, 30)}
        if dmagaps: s.dmagaps[len(dmagaps)] = dmagaps
        cnt = {"a": (2, 2, 2, 2, 2, 2, 2, 2), "b": (3, 3, 3, 3, 2, 2, 0, 0), "c": (4, 4, 2, 2, 2, 2, 0, 0), "d": (3, 3, 2, 2, 2, 2, 1, 1), "e": (4, 4, 4, 0, 4, 0, 0, 0)}[dsched]
        seq = [(g, p) for g in range(4) for p in range(4)]
        s.dsched = {}
        k = 0
        for i, c in enumerate(cnt):
            s.dsched[(i + 7) & 7] = seq[k:k + c]; k += c
        assert all(g < 3 for b in (7, 0, 1, 2) for g, p in s.dsched[b])
        s.npre = cnt[0]
        s.vm1 = 4 + sum(cnt[:4])
        s.vm2 = 8
        s.add_qb = tuple(q for q in range(4) if q not in s.msum_qb)
    def A(s, x): s.lines.append(x)

    def m0set(s, lds_off): return "s_add_u32 m0, s%d, %d" % (sWL, lds_off)
    def dma(s, isK, i):
        return "buffer_load_dwordx4 v%d, %s, s%d offen offset:%d %s lds" % (vDMA + i, R("s", sK if isK else sV, 4), sSOK if isK else sSOV, i * PITCH, s.ld)
    def adv(s, isK):
        so = sSOK if isK else sSOV
        return "s_add_u32 s%d, s%d, 0x4000" % (so, so)
    def kread(s, buf, slot, j, t):
        return "ds_read_b128 %s, v%d offset:%d" % (R("a", aK(buf, t), 4), vK, slot * SLOT + j * 256 + t * 64)
    def vread(s, buf, slot0, db, r):
        ks, u = r >> 1, r & 1
        return "ds_read_b64_tr_b16 %s, v%d offset:%d" % (R("a", aV(buf, ks) + 2 * u, 2), vV, (slot0 + (ks >> 1)) * SLOT + (2 * (ks & 1) + u) * 256 + db * 32)
    def qk(s, buf, qb, t, zero=False):
        c = R("v", vS(qb), 4) if t else ("0" if zero else R("v", vNM(qb), 4))
        return "%s %s, %s, %s, %s" % (MF, R("v", vS(qb), 4), R("a", aK(buf, t), 4), R("a", aQ(qb, t), 4), c)
    def pv(s, buf, pbuf, qb, db, ks):
        o = R("a", aO(qb, db), 4)
        return "%s %s, %s, %s, %s" % (MF, o, R("a", aV(buf, ks), 4), R("v", vP(pbuf, qb, ks), 4), o)
    def msum(s, pbuf, qb, ks):
        o = R("v", vL(qb), 4)
        return "%s %s, %s, %s, %s" % (MF, o, R("v", vONE, 4), R("v", vP(pbuf, qb, ks), 4), o)

    def msums(s, pbuf, qb):
        if not s.sp: return [s.msum(pbuf, qb, ks) for ks in range(4)]
        return ["v_smfmac_f32_16x16x64_bf16 %s, %s, %s, v%d" % (R("v", vL(qb), 4), R("v", vONE, 4), R("v", vP(pbuf, qb, 2 * h), 8), vIDX) for h in range(2)]

    def sm_table(s, first=False):
        t = []
        if first:
            for qb in range(4):
                for e in range(4):
                    t.append((4 * qb + 6 + e, "exp", qb, e))
                    if qb in s.add_qb: t.append((4 * qb + 7 + e, "add", qb, e))
                for h in range(2): t.append((4 * qb + 8 + 2 * h, "cvt", qb, h))
        else:
            addslot = {1: (16, 20, 26, 30), 3: (32, 36, 40, 44), 0: (10, 14, 18, 22), 2: (26, 30, 34, 38)}
            for qb in range(4):
                for e in range(4): t.append((8 * qb + 7 + 2 * e, "exp", qb, e))
                for h in range(2): t.append((8 * qb + 10 + 4 * h, "cvt", qb, h))
            for qb in s.add_qb:
                for e in range(4): t.append((addslot[qb][e], "add", qb, e))
        return t
    def sm_op(s, kind, qb, i, wbuf, bb):
        S = vS(qb)
        if kind == "exp": return "v_exp_f32 v%d, v%d" % (S + i, S + i)
        if kind == "add": return "v_add_f32 v%d, v%d, v%d" % (vA(qb), vA(qb), S + i)
        d = vP(wbuf, qb, bb >> 1) + 2 * (bb & 1) + i
        if s.perm: return "v_perm_b32 v%d, v%d, v%d, s%d" % (d, S + 2 * i + 1, S + 2 * i, sSEL)
        return "v_cvt_pk_bf16_f32 v%d, v%d, v%d" % (d, S + 2 * i, S + 2 * i + 1)

    def dma_plan(s, par, b):
        out = []
        for grp, piece in s.dsched[b]:
            gpar = par ^ 1 if (b == 7 and grp < 2) else par
            isK = grp >= 2
            if isK: off = (((1 if gpar == 0 else 3) + (grp - 2)) & 3) * SLOT
            else: off = VBASE + ((2 if gpar == 0 else 0) + grp) * SLOT
            out.append((isK, off, piece))
        return out

    def block(s, par, b, do_qk=True, do_pv=True, first=False, last=False, extra=None):
        n = 16 if first else 32
        sh = [[] for _ in range(n)]
        mem = [[] for _ in range(n)]
        va = [[] for _ in range(n)]
        flush = []
        if not s.novalu:
            tab = s.sm_table(first)
            if (do_qk or b == 0) and not (first and b == 0):
                pp = par if b else par ^ 1
                for g, kind, qb, i in tab:
                    if g >= n: va[g - n].append(s.sm_op(kind, qb, i, pp ^ 1, (b - 1) & 7))
            if do_qk:
                for g, kind, qb, i in tab:
                    if g < n: va[g].append(s.sm_op(kind, qb, i, par ^ 1, b))
                if first and b == 7:
                    keep = set((k, q, i) for g, k, q, i in s.sm_table(False) if g >= 32)
                    for g, kind, qb, i in sorted(tab):
                        if g >= n and (kind, qb, i) not in keep: flush.append(s.sm_op(kind, qb, i, par ^ 1, b))
        buf = b & 1
        nb = (b + 1) & 7
        npar = par if b < 7 else par ^ 1
        plan = s.dma_plan(par, b) if do_qk else []
        gaps = s.dmagaps[len(plan)] if plan else ()
        if first: gaps = [(1, 5, 9, 13)[i] for i in range(len(plan))]
        if first: dsg = [0, 2, 4, 6] + list(range(8, 16))
        else: dsg = [g for g in range(0, 32, 2) if g not in gaps or g in s.share]
        if do_qk:
            kslot = (2 if npar == 0 else 0) + (nb >> 2)
            for t in range(4):
                if not s.nolds: mem[dsg[t]].append(s.kread(buf ^ 1, kslot, nb & 3, t))
        if (do_pv and (do_qk or b < 7)) or (b == 7 and do_qk):
            for r in range(8):
                if not s.nolds: mem[dsg[4 + r]].append(s.vread(buf ^ 1, 0 if npar == 0 else 2, nb, r))
        if do_qk:
            for (isK, off, piece), g in zip(plan, gaps):
                if not s.nodma:
                    if piece == 0 or g == gaps[0] and s.instr == 3: sh[g - 1].append(s.m0set(off))
                    if first and s.lim1: mem[g].append("s_waitcnt vmcnt(%d)" % (s.lim1 - 1))
                    if not first and s.lim2: sh[g].append("s_waitcnt vmcnt(%d)" % (s.lim2 - 1))
                    mem[g].append(s.dma(isK, piece))
                if piece == 3: sh[g + 1].append(s.adv(isK))
            if b in (2, 6):
                w = "s_waitcnt vmcnt(%d) lgkmcnt(0)" % (s.vm1 + (s.otlb if first else 0) if b == 2 else s.vm2)
            elif s.latev and not first and b != 7:
                w = "s_waitcnt lgkmcnt(8)"
            else:
                w = "s_waitcnt lgkmcnt(0)"
            if s.latev and not first and b not in (0, 3, 7):
                sh[3].append("s_waitcnt lgkmcnt(%d)" % sum(1 for g in dsg if g < 3))
            if first and b == 6 and s.pre2:
                n0 = len(s.lines); s.dummy(s.pre2); flush += s.lines[n0:]; del s.lines[n0:]
            if flush: flush.append(w)
            else: sh[n - 1].append(w)
            if b in (3, 7):
                if not s.nobar: sh[0].insert(0, "s_barrier")
                if s.instr == 3:
                    sh[0].insert(1, "s_memrealtime s[72:73]\ns_memtime s[74:75]\ns_waitcnt lgkmcnt(0)\ns_mov_b32 m0, s76\ns_nop 1\nv_writelane_b32 v46, s72, m0\nv_writelane_b32 v47, s74, m0\ns_add_u32 s76, s76, 1")
        else:
            sh[n - 1].append("s_waitcnt lgkmcnt(0)")
        if last:
            sh[31 if any("s_add" in x for x in sh[31]) else 30].append("s_sub_u32 s%d, s%d, 1" % (sCNT, sCNT))
        ms = None
        if do_pv and do_qk and s.msum_qb:
            place = {4: {1: 0, 3: 1, 5: 2, 7: 3}, 2: {1: 0, 5: 1}}[len(s.msum_qb)]
            if b in place: ms = s.msums(par, s.msum_qb[place[b]])
            if s.smpl == 2 and len(s.msum_qb) == 4:
                x = s.msums(par, b >> 1); k = len(x) // 2
                ms = x[k * (b & 1): k * (b & 1) + k]
        for pos in range(n):
            m = None
            if first: m = s.qk(buf, pos >> 2, pos & 3)
            else:
                qb, k = pos >> 3, pos & 7
                if k < 4:
                    if do_qk: m = s.qk(buf, qb, k)
                elif do_pv: m = s.pv(buf, par, qb, b, k - 4)
            if m: s.A(m)
            for o in sh[pos] + mem[pos] + va[pos]: s.A(o)
            if extra:
                for o in extra(pos): s.A(o)
            if s.pad and m: s.A("s_nop %d" % (s.pad - 1))
            if s.padn and not first and do_qk and (pos & 1) and (pos >> 1) % (16 // s.padn) == 0: s.A("s_nop 0")
            if ms is not None and pos == s.mspos:
                for x in ms: s.A(x)
        for o in flush: s.A(o)

    def dummy(s, n):
        for i in range(n):
            s.A("%s v[120:123], v[%d:%d], v[%d:%d], %s" % (MF, 104 + 4 * (i & 1), 107 + 4 * (i & 1), 112 + 4 * ((i >> 1) & 1), 115 + 4 * ((i >> 1) & 1), "v[120:123]" if i & 3 else "0"))
    def stamp(s, idx):
        if s.stamps: s.A("%s s[%d:%d]" % ("s_memrealtime" if s.stamps == 2 else "s_memtime", 48 + 2 * idx, 49 + 2 * idx))

    def build(s):
        A = s.A
        A("; @launch grid=(256,1,1) block=(256,1,1) lds=%d" % LDS_BYTES)
        A('.amdgcn_target "amdgcn-amd-amdhsa--gfx950"')
        A(".text")
        A(".globl %s\n.p2align 8\n.type %s,@function\n%s:" % (KN, KN, KN))
        A("s_cmp_ge_u32 s2, 256\ns_cbranch_scc1 L_end")
        if s.stamps: A("s_memrealtime s[40:41]\ns_memtime s[44:45]")
        A("s_load_dwordx4 s[24:27], s[0:1], 0\ns_load_dwordx4 s[28:31], s[0:1], 16")
        if s.stamps: A("s_load_dwordx2 s[64:65], s[0:1], 40")
        if s.warm:
            A("s_getpc_b64 s[36:37]\nL_pc:")
            A("v_lshlrev_b32 v1, 7, v0\nv_min_u32 v1, L_end-L_pc, v1\nglobal_load_dword v11, v1, s[36:37]")
        A("v_lshrrev_b32 v1, 6, v0\nv_and_b32 v0, 63, v0\ns_nop 0\nv_readfirstlane_b32 s%d, v1" % sW)
        A("v_lshrrev_b32 v20, 4, v0\nv_and_b32 v21, 15, v0")
        A("s_mul_i32 s%d, s%d, %d" % (sWL, sW, 4 * PITCH))
        if s.lin:
            A("s_lshl_b32 s%d, s%d, 12\nv_lshlrev_b32 v22, 4, v0\nv_add_u32 v22, s%d, v22" % (sT, sW, sT))
        else:
            A("v_lshlrev_b32 v22, 12, v20\nv_lshl_add_u32 v22, v21, 4, v22")
            A("s_lshr_b32 s%d, s%d, 1\ns_lshl_b32 s%d, s%d, 11\ns_and_b32 s%d, s%d, 1\ns_lshl_b32 s%d, s%d, 9\ns_add_u32 s%d, s%d, s%d" % (sT, sW, sT, sT, sT + 1, sW, sT + 1, sT + 1, sT, sT, sT + 1))
            A("v_add_u32 v22, s%d, v22" % sT)
        for i in range(4):
            goff = i * 1024 if s.lin else (4 * (i & 1) + (i >> 1)) * 256
            A("v_add_u32 v%d, %d, v22" % (vDMA + i, goff - PITCH * i + BIASB))
        A("s_lshl_b32 s%d, s%d, 14" % (sT, sW))
        A("v_lshlrev_b32 v23, 2, v20\nv_xor_b32 v23, v23, v21\nv_lshlrev_b32 v23, 4, v23\nv_lshl_add_u32 v23, v20, 8, v23\nv_add_u32 v%d, s%d, v23" % (vQA, sT))
        A("v_lshrrev_b32 v23, 3, v0\nv_and_b32 v24, 7, v0\nv_lshlrev_b32 v24, 4, v24\nv_lshl_add_u32 v23, v23, 8, v24\nv_add_u32 v%d, s%d, v23" % (vOA, sT))
        for qb in range(4): A("s_mov_b32 s%d, %d" % (sQB + qb, qb * 4096))
        A("s_waitcnt lgkmcnt(0)")
        hd = 2
        if s.hmap == 1:
            hd = 33; A("s_xor_b32 s33, s2, 1")
        if s.hmap == 2:
            hd = 33; A("s_and_b32 s33, s2, 7\ns_lshl_b32 s33, s33, 5\ns_lshr_b32 s36, s2, 3\ns_add_u32 s33, s33, s36")
        A("s_lshl_b32 s%d, s%d, 19" % (sT, hd))
        A("s_sub_u32 s26, s26, %d\ns_subb_u32 s27, s27, 0\ns_sub_u32 s28, s28, %d\ns_subb_u32 s29, s29, 0" % (BIASB, BIASB))
        A("s_add_u32 s%d, s26, s%d\ns_addc_u32 s%d, s27, 0\ns_mov_b32 s%d, %d\ns_mov_b32 s%d, 0x20000" % (sK, sT, sK + 1, sK + 2, 0x80000 + BIASB, sK + 3))
        A("s_add_u32 s%d, s28, s%d\ns_addc_u32 s%d, s29, 0\ns_mov_b32 s%d, %d\ns_mov_b32 s%d, 0x20000" % (sV, sT, sV + 1, sV + 2, 0x80000 + BIASB, sV + 3))
        A("s_lshl_b32 s%d, s%d, 16" % (sT, hd))
        A("s_add_u32 s%d, s24, s%d\ns_addc_u32 s%d, s25, 0\ns_mov_b32 s%d, 0x10000\ns_mov_b32 s%d, 0x20000" % (sQ, sT, sQ + 1, sQ + 2, sQ + 3))
        A("s_add_u32 s%d, s30, s%d\ns_addc_u32 s%d, s31, 0\ns_mov_b32 s%d, 0x10000\ns_mov_b32 s%d, 0x20000" % (sO, sT, sO + 1, sO + 2, sO + 3))
        A("s_mov_b32 s%d, 0" % sPASS)
        for qb in range(4): A("v_mov_b32 v%d, 0xff800000" % vM(qb))
        A("L_start:")
        A("s_mov_b32 s%d, 0\ns_mov_b32 s%d, 0" % (sSOK, sSOV))
        def group(isK, off, n=4):
            return [s.m0set(off), "s_nop 0"] + [s.dma(isK, i) for i in range(n)] + ([s.adv(isK)] if n == 4 else [])
        PERM = (0, 3, 1, 2)
        def qgroup(qb):
            out = []
            for i in range(4):
                out.append(["s_add_u32 m0, s%d, %d" % (sWL, VBASE + qb * SLOT + i * PITCH - PERM[i] * 1024), "s_nop 0",
                            "buffer_load_dwordx4 v%d, %s, s%d offen offset:%d %s lds" % (vQA, R("s", sQ, 4), sQB + qb, PERM[i] * 1024, s.qld)])
            return out
        def pieces(isK, off, n=4):
            out = [[s.dma(isK, i)] for i in range(n)]
            if n: out[0] = [s.m0set(off), "s_nop 0"] + out[0]
            if n == 4: out[3].append(s.adv(isK))
            return out
        Q = [("K0", p) for p in pieces(True, 0)]
        for qb in range(4): Q += [("Q%d" % qb, p) for p in qgroup(qb)]
        Q += [("K1", p) for p in pieces(True, SLOT)] + [("K2", p) for p in pieces(True, 2 * SLOT)] + [("V0", p) for p in pieces(False, VBASE, s.npre)]
        st = {"n": 0}
        def issue(k=1):
            for _ in range(k):
                if st["n"] < len(Q):
                    if s.lim and st["n"] >= s.lim: A("s_waitcnt vmcnt(%d)" % (s.lim - 1))
                    for x in Q[st["n"]][1]: A(x)
                    st["n"] += 1
        def waitfor(tag):
            last = max(i for i, x in enumerate(Q) if x[0] == tag)
            if st["n"] <= last: issue(last + 1 - st["n"])
            A("s_waitcnt vmcnt(%d)" % (st["n"] - 1 - last))
        issue(s.nfirst)
        A("v_and_b32 v22, 3, v0\nv_bfe_u32 v23, v0, 2, 1\nv_lshl_add_u32 v22, v22, 1, v23\nv_and_b32 v23, 8, v0\nv_add_u32 v22, v22, v23")
        A("v_mul_u32_u24 v22, %d, v22\nv_lshrrev_b32 v23, 4, v0\nv_lshl_add_u32 v%d, v23, 4, v22" % (PITCH, vK))
        A("v_bfe_u32 v22, v0, 2, 2\nv_bfe_u32 v23, v0, 4, 1\nv_lshl_add_u32 v22, v22, 1, v23\nv_lshrrev_b32 v23, 5, v0\nv_lshl_add_u32 v22, v23, 3, v22")
        A("v_mul_u32_u24 v22, %d, v22\nv_and_b32 v23, 3, v0\nv_lshl_add_u32 v22, v23, 3, v22\nv_add_u32 v%d, %d, v22" % (PITCH, vV, VBASE))
        A("v_bfe_u32 v22, v0, 2, 2\nv_lshlrev_b32 v22, 1, v22\nv_mov_b32 v23, 0x78\nv_lshrrev_b32 v22, v22, v23\nv_and_b32 v22, 3, v22")
        A("v_mul_u32_u24 v22, %d, v22\nv_and_b32 v23, 3, v0\nv_lshl_add_u32 v22, v23, 8, v22\nv_lshrrev_b32 v24, 4, v0\nv_lshl_add_u32 v22, v24, 4, v22" % PITCH)
        A("v_add_u32 v22, s%d, v22\nv_add_u32 v22, %d, v22" % (sWL, VBASE))
        for t in range(4): A("v_xor_b32 v24, %d, v23\nv_lshl_add_u32 v%d, v24, 6, v22" % (t, vQR + t))
        A("v_and_b32 v%d, 15, v0\nv_lshrrev_b32 v%d, 5, v0\nv_xor_b32 v%d, v%d, v%d\nv_lshlrev_b32 v%d, 4, v%d" % (vE, vE + 1, vE + 1, vE + 1, vE, vE + 1, vE + 1))
        A("v_lshl_add_u32 v%d, v%d, 8, v%d\nv_bfe_u32 v%d, v0, 4, 1\nv_lshl_add_u32 v%d, v%d, 3, v%d" % (vE + 1, vE, vE + 1, vE, vE + 1, vE, vE + 1))
        for db in range(8): A("v_xor_b32 v%d, %d, v%d\nv_add_u32 v%d, s%d, v%d" % (vW + db, db * 32, vE + 1, vW + db, sWL, vW + db))
        A("v_lshrrev_b32 v%d, 3, v0\nv_and_b32 v%d, 7, v0\nv_xor_b32 v%d, v%d, v%d\nv_lshlrev_b32 v%d, 4, v%d" % (vE, vE + 1, vE + 1, vE + 1, vE, vE + 1, vE + 1))
        A("v_lshl_add_u32 v%d, v%d, 8, v%d\nv_add_u32 v%d, s%d, v%d" % (vE + 1, vE, vE + 1, vOR, sWL, vE + 1))
        c = 1.4426950408889634 / (128.0 ** 0.5)
        A("s_mov_b32 s%d, %s\ns_mov_b32 s%d, %s" % (sC, f32(c), sC + 1, f32(c)))
        A("s_mov_b32 s%d, 7" % sCNT)
        A("s_mov_b32 s%d, 0x07060302" % sSEL)
        if s.sp:
            A("v_and_b32 v22, 3, v0\nv_cmp_gt_u32 vcc, 2, v22\nv_mov_b32 v23, 0x3f803f80\nv_and_b32 v22, 1, v0\nv_cndmask_b32 v%d, 0, v23, vcc" % vONE)
            A("v_cmp_eq_u32 vcc, 0, v22\nv_mov_b32 v23, 0x44444444\nv_mov_b32 v24, 0xeeeeeeee\nv_cndmask_b32 v%d, v24, v23, vcc" % vIDX)
        elif s.ones4:
            A("v_and_b32 v22, 3, v0\nv_cmp_eq_u32 vcc, 0, v22\nv_mov_b32 v23, 0x3f803f80\ns_nop 0\nv_cndmask_b32 v%d, 0, v23, vcc" % vONE)
        else:
            A("v_mov_b32 v%d, 0x3f803f80" % vONE)
        for i in range(1, 4): A("v_mov_b32 v%d, v%d" % (vONE + i, vONE))
        for i in range(128): A("v_accvgpr_write_b32 a%d, 0" % i)
        for i in range(16): A("v_mov_b32 v%d, 0" % (vL(0) + i))
        for qb in range(4): A("v_mov_b32 v%d, 0" % vA(qb))
        s.stamp(0)
        if s.pre0 or s.pre1 or s.pre2:
            A("s_mov_b32 s85, 0x9e3779b1\nv_add_u32 v100, 1, v0")
            for i in range(16):
                A("v_mul_lo_u32 v100, v100, s85\nv_and_b32 v%d, 0xbfffbfff, v100\nv_or_b32 v%d, 0x3c003c00, v%d" % (104 + i, 104 + i, 104 + i))
            s.dummy(s.pre0)
        issue(s.nsecond - st["n"])
        for qb in range(4):
            if qb and s.pre1: s.dummy(s.pre1)
            waitfor("Q%d" % qb)
            if qb == 0: s.stamp(1)
            for t in range(4): A("ds_read_b128 %s, v%d offset:%d" % (R("v", 128 + 4 * t, 4), vQR + t, qb * SLOT))
            if qb == 0:
                A("s_barrier")
                for t in range(4): A(s.kread(0, 0, 0, t))
                if s.prepass == 2:
                    for t in range(4): A(s.kread(1, 0, 1, t))
            for f in range(4):
                b = 128 + 4 * f
                if st["n"] < len(Q) and (Q[st["n"]][0] != "V0" or qb >= 1): issue(1)
                A("s_waitcnt lgkmcnt(%d)" % (3 - f + (4 * s.prepass if qb == 0 else 0)))
                for i in range(4):
                    A("v_lshlrev_b32 v%d, 16, v%d\nv_and_b32 v%d, 0xffff0000, v%d" % (vT + 2 * i, b + i, vT + 2 * i + 1, b + i))
                for i in range(4):
                    A("v_pk_mul_f32 %s, %s, %s" % (R("v", vT + 2 * i, 2), R("v", vT + 2 * i, 2), R("s", sC, 2)))
                for i in range(4):
                    A("v_cvt_pk_bf16_f32 v%d, v%d, v%d" % (vT + 8 + i, vT + 2 * i, vT + 2 * i + 1))
                for i in range(4):
                    A("v_accvgpr_write_b32 a%d, v%d" % (aQ(qb, f) + i, vT + 8 + i))
        issue(len(Q))
        if s.otlb:
            A("buffer_load_dword v10, v%d, %s, 0 offen" % (vOA, R("s", sO, 4)))
        s.stamp(2)
        A("s_waitcnt lgkmcnt(0)")
        for rep in range(s.prepass):
            for qb in range(4):
                for t in range(4): A(s.qk(rep, qb, t, zero=True))
            A("s_nop 4")
            for qb in range(4):
                S = vS(qb)
                A("v_max3_f32 v%d, v%d, v%d, v%d" % (vM(qb), vM(qb), S, S + 1))
            for qb in range(4):
                S = vS(qb)
                A("v_max3_f32 v%d, v%d, v%d, v%d" % (vM(qb), vM(qb), S + 2, S + 3))
        for sw in ("v_permlane32_swap_b32", "v_permlane16_swap_b32"):
            for qb in range(4): A("v_mov_b32 v%d, v%d" % (vT + qb, vM(qb)))
            for qb in range(4): A("%s v%d, v%d" % (sw, vT + qb, vM(qb)))
            for qb in range(4): A("v_max_f32 v%d, v%d, v%d" % (vM(qb), vM(qb), vT + qb))
        A("s_mov_b32 s%d, %s" % (sT, f32(-s.bias)))
        for qb in range(4): A("v_sub_f32 v%d, s%d, v%d" % (vNM(qb), sT, vM(qb)))
        for qb in range(4):
            for i in range(1, 4): A("v_mov_b32 v%d, v%d" % (vNM(qb) + i, vNM(qb)))
        if s.novalu:
            for i in range(128): A("v_accvgpr_read_b32 v%d, a%d" % (128 + i, 128 + (i & 63)))
        if s.nolds:
            for t in range(4): A(s.kread(1, 0, 1, t))
            for bf in range(2):
                for r in range(8): A(s.vread(bf, -4, bf, r).replace("offset:-", "offset:"))
            A("s_waitcnt lgkmcnt(0)")
        if s.instr == 3: A("s_mov_b32 s76, 0")
        A("s_nop 0")
        s.stamp(3)
        n0 = len(s.lines)
        for b in range(8): s.block(1, b, do_pv=False, first=True)
        s.lines = hazards.pad(s.lines)
        s.stamp(4)
        A(".p2align 6")
        A("L_loop:")
        n0 = len(s.lines)
        for b in range(8): s.block(0, b, last=(b == 7))
        A("s_cbranch_scc1 L_tail")
        n1 = len(s.lines)
        for b in range(8): s.block(1, b)
        body = s.lines[n0:]
        A("s_branch L_loop")
        A("L_tail:")
        n2 = len(s.lines)
        s.stamp(5)
        s.block(1, 0, do_qk=False)
        A("s_waitcnt vmcnt(0)")
        for qb in s.msum_qb:
            for x in s.msums(1, qb): A(x)
        for qb in s.add_qb:
            A("v_mov_b32 v%d, v%d" % (vL(qb), vA(qb)))
        if s.add_qb:
            for sw in ("v_permlane32_swap_b32", "v_permlane16_swap_b32"):
                for qb in s.add_qb: A("v_mov_b32 v%d, v%d" % (vT + qb, vL(qb)))
                A("s_nop 1")
                for qb in s.add_qb: A("%s v%d, v%d" % (sw, vT + qb, vL(qb)))
                A("s_nop 1")
                for qb in s.add_qb: A("v_add_f32 v%d, v%d, v%d" % (vL(qb), vL(qb), vT + qb))
        if s.sp:
            for qb in s.msum_qb: A("v_add_f32 v%d, v%d, v%d" % (vL(qb), vL(qb), vL(qb) + 1))
        A("s_mov_b32 s%d, %s" % (sT, f32(s.thr)))
        for qb in range(4): A("v_rcp_f32 v%d, v%d" % (vT + qb, vL(qb)))
        A("v_add_f32 v%d, v%d, v%d\nv_add_f32 v%d, v%d, v%d" % (vT + 5, vL(0), vL(1), vT + 6, vL(2), vL(3)))
        A("v_add_f32 v%d, v%d, v%d" % (vT + 5, vT + 5, vT + 6))
        A("v_cmp_nge_f32 vcc, s%d, v%d" % (sT, vT + 5))
        def conv(qb, db, k):
            tb = vE + 6 * (k % 4)
            o = aO(qb, db)
            ops = ["v_accvgpr_read_b32 v%d, a%d" % (tb + i, o + i) for i in range(4)]
            ops += ["v_mul_f32 v%d, v%d, v%d" % (tb + i, tb + i, vT + qb) for i in range(4)]
            ops += ["v_cvt_pk_bf16_f32 v%d, v%d, v%d" % (tb + 4 + i, tb + 2 * i, tb + 2 * i + 1) for i in range(2)]
            ops += ["ds_write_b64 v%d, %s offset:%d" % (vW + db, R("v", tb + 4, 2), qb * SLOT)]
            return ops
        def oread(h, qb, i):
            return "ds_read_b128 %s, v%d offset:%d" % (R("v", 128 + 32 * h + 8 * qb + 4 * i, 4), vOR, qb * SLOT + i * 2048 + ((h ^ i) * 128))
        def ostore(h, qb, i):
            return "buffer_store_dwordx4 %s, v%d, %s, s%d offen offset:%d %s" % (R("v", 128 + 32 * h + 8 * qb + 4 * i, 4), vOA, R("s", sO, 4), sQB + qb, i * 2048 + h * 128, s.st)
        k = 0
        for b in range(1, 8):
            q = []
            for qb in range(4):
                q.append(conv(qb, b - 1, k)); k += 1
            def extra(pos, q=q, b=b):
                qb, kk = pos >> 3, pos & 7
                if kk < 4: return []
                ops = q[qb]
                out = [ops[0:3], ops[3:6], ops[6:9], ops[9:11]][kk - 4]
                if b == 5 and kk in (4, 6): out = [oread(0, qb, (kk - 4) >> 1)] + out
                if b == 6 and kk in (4, 6): out = [ostore(0, qb, (kk - 4) >> 1)] + out
                return out
            s.block(1, b, do_qk=False, extra=extra)
        for qb in range(4):
            for x in conv(qb, 7, k): A(x)
            k += 1
            if qb:
                A("s_waitcnt lgkmcnt(1)")
                for i in range(2): A(ostore(1, qb - 1, i))
            for i in range(2): A(oread(1, qb, i))
        A("s_waitcnt lgkmcnt(0)")
        for i in range(2): A(ostore(1, 3, i))
        pre = s.lines[n0:n1]
        s.lines[n2:] = hazards.pad(pre + s.lines[n2:], start=len(pre))[len(pre):]
        s.stamp(6)
        A("s_cmp_lg_u32 s%d, 0\ns_cbranch_scc1 L_fin" % sPASS)
        A("s_cmp_lg_u64 vcc, 0\ns_cselect_b32 s%d, 1, 0" % sT)
        A("s_lshl_b32 s%d, s%d, 2\ns_add_u32 s%d, s%d, %d" % (sT + 1, sW, sT + 1, sT + 1, FLAG_OFF))
        A("v_mov_b32 v%d, s%d\nv_mov_b32 v%d, s%d\nv_mov_b32 v%d, %d" % (vT, sT, vT + 1, sT + 1, vT + 2, FLAG_OFF))
        A("ds_write_b32 v%d, v%d\ns_waitcnt lgkmcnt(0)\ns_barrier" % (vT + 1, vT))
        A("ds_read_b128 %s, v%d\ns_waitcnt lgkmcnt(0)" % (R("v", vT + 8, 4), vT + 2))
        A("v_or3_b32 v%d, v%d, v%d, v%d\nv_or_b32 v%d, v%d, v%d\ns_nop 1" % (vT, vT + 8, vT + 9, vT + 10, vT, vT, vT + 11))
        A("v_readfirstlane_b32 s%d, v%d\ns_nop 3\ns_cmp_eq_u32 s%d, 0\ns_cbranch_scc1 L_fin" % (sT, vT, sT))
        A("s_mov_b32 s%d, 1\ns_mov_b32 s%d, 0" % (sPASS, sSOK))
        A("s_waitcnt vmcnt(0)")
        A("L_maxpass:")
        A("s_barrier")
        for x in group(True, 0): A(x)
        A("s_waitcnt vmcnt(0)\ns_barrier")
        for j in range(4):
            for t in range(4): A(s.kread(0, 0, j, t))
            A("s_waitcnt lgkmcnt(0)")
            for qb in range(4):
                for t in range(4): A(s.qk(0, qb, t, zero=True))
            A("s_nop 7")
            for qb in range(4):
                S = vS(qb)
                A("v_max3_f32 v%d, v%d, v%d, v%d" % (vM(qb), vM(qb), S, S + 1))
                A("v_max3_f32 v%d, v%d, v%d, v%d" % (vM(qb), vM(qb), S + 2, S + 3))
        A("s_cmp_lt_u32 s%d, 0x80000\ns_cbranch_scc1 L_maxpass" % sSOK)
        A("s_barrier\ns_branch L_start")
        A("L_fin:")
        if s.dbg == -1:
            A("s_waitcnt vmcnt(0)")
            A("s_memrealtime s[42:43]\ns_memtime s[46:47]\ns_load_dwordx2 s[64:65], s[0:1], 32\ns_waitcnt lgkmcnt(0)")
            A("s_mov_b32 s68, s64\ns_mov_b32 s69, s65\ns_mov_b32 s70, 256\ns_mov_b32 s71, 0x20000")
            A("s_cmp_ge_u32 s2, 8\ns_cbranch_scc1 L_end\ns_cmp_lg_u32 s3, 0\ns_cbranch_scc1 L_end")
            A("s_lshl_b32 s36, s2, 2\nv_mov_b32 v3, s36\ns_mov_b64 exec, 1")
            A("s_sub_u32 s36, s42, s40\nv_mov_b32 v8, s36\ns_sub_u32 s36, s46, s44\nv_mov_b32 v9, s36")
            A("buffer_store_dword v8, v3, s[68:71], 0 offen\nbuffer_store_dword v9, v3, s[68:71], 0 offen offset:32")
        elif s.probe is not None:
            A("s_waitcnt vmcnt(0)")
            A("s_memrealtime s[42:43]\ns_memtime s[46:47]\ns_waitcnt lgkmcnt(0)")
            A("s_cmp_lg_u32 s2, %d\ns_cbranch_scc1 L_end" % s.probe[3])
            a, b, div = s.probe[:3]
            A("s_sub_u32 s36, s%d, s%d" % (a, b))
            if div == 10: A("s_mul_hi_u32 s36, s36, 429496730")
            if div == 0: A("s_mov_b32 s36, 0")
            A("s_add_u32 s36, s36, 15000\ns_add_u32 s36, s36, s40")
            A("L_spin:\ns_sleep 4\ns_memrealtime s[42:43]\ns_waitcnt lgkmcnt(0)\ns_sub_u32 s37, s42, s36\ns_cmp_lt_i32 s37, 0\ns_cbranch_scc1 L_spin")
        elif s.stamps:
            A("s_waitcnt vmcnt(0)")
            A("s_memrealtime s[42:43]\ns_memtime s[46:47]\ns_getreg_b32 s62, hwreg(HW_REG_XCC_ID)\ns_mov_b32 s63, 0\ns_waitcnt lgkmcnt(0)")
            A("s_mov_b32 s68, s64\ns_mov_b32 s69, s65\ns_mov_b32 s70, 0x100000\ns_mov_b32 s71, 0x20000")
            A("s_lshl_b32 s37, s2, 2\ns_add_u32 s37, s37, s3\ns_mul_i32 s37, s37, 96\nv_mov_b32 v3, s37")
            if s.instr == 3:
                A("s_lshl_b32 s38, s2, 2\ns_add_u32 s38, s38, s3\ns_lshl_b32 s38, s38, 9\ns_add_u32 s38, s38, 0x20000\nv_lshlrev_b32 v4, 3, v0\nv_add_u32 v4, s38, v4")
                A("buffer_store_dwordx2 v[46:47], v4, s[68:71], 0 offen")
            for j, r in enumerate([40, 42, 44, 46] + list(range(48, 64, 2))):
                A("v_mov_b32 v8, s%d\nv_mov_b32 v9, s%d" % (r, r + 1))
                A("buffer_store_dwordx2 v[8:9], v3, s[68:71], 0 offen offset:%d" % (j * 8))
                A("s_nop 1")
        A("L_end:\ns_endpgm")
        A('.section .rodata,"a"\n.p2align 6\n.amdhsa_kernel %s' % KN)
        A("  .amdhsa_next_free_vgpr 512\n  .amdhsa_next_free_sgpr 102\n  .amdhsa_accum_offset 256\n  .amdhsa_group_segment_fixed_size 0\n  .amdhsa_kernarg_size 48\n  .amdhsa_user_sgpr_count 2\n  .amdhsa_user_sgpr_kernarg_segment_ptr 1\n  .amdhsa_system_sgpr_workgroup_id_x 1\n  .amdhsa_float_denorm_mode_32 3\n.end_amdhsa_kernel")
        errs = hazards.check(s.lines[:n2], "linear") + hazards.check(body + body, "loop") + hazards.check(s.lines[n0:n1] + s.lines[n2:], "tail")
        return "\n".join(s.lines) + "\n", errs

def gen(name, **kw):
    txt, errs = Gen(**kw).build()
    open(name, "w").write(txt)
    return errs

if __name__ == "__main__":
    import ast
    name = sys.argv[1]
    kw = {}
    for a in sys.argv[2:]:
        k, v = a.split("=", 1)
        try: kw[k] = ast.literal_eval(v)
        except Exception: kw[k] = v
    e = gen(name, **kw)
    print(name, "hazards:", len(e))
```

```python
import sys, struct
import hazards

KN = "standalone__mha_softmax__near_ridge_kernel"
PITCH = 1056
SLOT = 16 * PITCH
VBASE = 4 * SLOT
FLAG_OFF = 8 * SLOT
LDS_BYTES = 8 * SLOT + 64
BIASB = 1888

def f32(x): return "0x%08x" % struct.unpack("<I", struct.pack("<f", x))[0]
def R(p, b, n): return "%s[%d:%d]" % (p, b, b + n - 1)

vDMA = 2
vK = 6
vV = 7
vQA = 8
vOA = 9
def vA(qb): return 12 + qb
def vM(qb): return 16 + qb
vT = 20
def vS(qb): return 48 + 4 * qb
def vNM(qb): return 64 + 4 * qb
vONE = 80
def vL(qb): return 84 + 4 * qb
vE = 100
vQR = 40
vW = 32
vOR = 44
def vP(buf, qb, ks): return 128 + buf * 64 + qb * 16 + ks * 4
def aO(qb, db): return (qb * 8 + db) * 4
def aQ(qb, t): return 128 + (qb * 4 + t) * 4
def aK(buf, t): return 192 + buf * 16 + 4 * t
def aV(buf, ks): return 224 + buf * 16 + 4 * ks

sW = 3
sQ, sK, sV, sO = 4, 8, 12, 16
sSOK, sSOV = 20, 21
sWL = 22
sCNT = 23
sPASS = 32
sC = 34
sT = 36
sSEL = 84
vIDX = 45
sQB = 80
MF = "v_mfma_f32_16x16x32_bf16"

class Gen:
    def __init__(s, ld="nt", qld="nt", st="", stamps=0, bias=10.0, thr=2.0 ** 40, summode="mfma", nodma=0, nobar=0, novalu=0, nolds=0,
                 warm=1, instr=0, probe=None, dbg=None, dmagaps=None, pad=0, otlb=1, ones4=1, prepass=1, dsched="a", mspos=23, nfirst=12, nsecond=16, hmap=0, lim=0, lim1=0, padn=0, perm=0, smpl=1, lim2=0, share=(), latev=0, pre0=0, pre1=0, pre2=0, lin=0):
        s.__dict__.update(locals())
        s.lines = []
        s.msum_qb = {"mfma": (0, 1, 2, 3), "hybrid": (0, 2), "valu": (), "sp": (0, 1, 2, 3), "sphy": (0, 2)}[summode]
        s.sp = summode.startswith("sp")
        s.dmagaps = {1: (24,), 2: (24, 28), 3: (24, 26, 28), 4: (24, 26, 28, 30)}
        if dmagaps: s.dmagaps[len(dmagaps)] = dmagaps
        cnt = {"a": (2, 2, 2, 2, 2, 2, 2, 2), "b": (3, 3, 3, 3, 2, 2, 0, 0), "c": (4, 4, 2, 2, 2, 2, 0, 0), "d": (3, 3, 2, 2, 2, 2, 1, 1), "e": (4, 4, 4, 0, 4, 0, 0, 0)}[dsched]
        seq = [(g, p) for g in range(4) for p in range(4)]
        s.dsched = {}
        k = 0
        for i, c in enumerate(cnt):
            s.dsched[(i + 7) & 7] = seq[k:k + c]; k += c
        assert all(g < 3 for b in (7, 0, 1, 2) for g, p in s.dsched[b])
        s.npre = cnt[0]
        s.vm1 = 4 + sum(cnt[:4])
        s.vm2 = 8
        s.add_qb = tuple(q for q in range(4) if q not in s.msum_qb)
    def A(s, x): s.lines.append(x)

    def m0set(s, lds_off): return "s_add_u32 m0, s%d, %d" % (sWL, lds_off)
    def dma(s, isK, i):
        return "buffer_load_dwordx4 v%d, %s, s%d offen offset:%d %s lds" % (vDMA + i, R("s", sK if isK else sV, 4), sSOK if isK else sSOV, i * PITCH, s.ld)
    def adv(s, isK):
        so = sSOK if isK else sSOV
        return "s_add_u32 s%d, s%d, 0x4000" % (so, so)
    def kread(s, buf, slot, j, t):
        return "ds_read_b128 %s, v%d offset:%d" % (R("a", aK(buf, t), 4), vK, slot * SLOT + j * 256 + t * 64)
    def vread(s, buf, slot0, db, r):
        ks, u = r >> 1, r & 1
        return "ds_read_b64_tr_b16 %s, v%d offset:%d" % (R("a", aV(buf, ks) + 2 * u, 2), vV, (slot0 + (ks >> 1)) * SLOT + (2 * (ks & 1) + u) * 256 + db * 32)
    def qk(s, buf, qb, t, zero=False):
        c = R("v", vS(qb), 4) if t else ("0" if zero else R("v", vNM(qb), 4))
        return "%s %s, %s, %s, %s" % (MF, R("v", vS(qb), 4), R("a", aK(buf, t), 4), R("a", aQ(qb, t), 4), c)
    def pv(s, buf, pbuf, qb, db, ks):
        o = R("a", aO(qb, db), 4)
        return "%s %s, %s, %s, %s" % (MF, o, R("a", aV(buf, ks), 4), R("v", vP(pbuf, qb, ks), 4), o)
    def msum(s, pbuf, qb, ks):
        o = R("v", vL(qb), 4)
        return "%s %s, %s, %s, %s" % (MF, o, R("v", vONE, 4), R("v", vP(pbuf, qb, ks), 4), o)

    def msums(s, pbuf, qb):
        if not s.sp: return [s.msum(pbuf, qb, ks) for ks in range(4)]
        return ["v_smfmac_f32_16x16x64_bf16 %s, %s, %s, v%d" % (R("v", vL(qb), 4), R("v", vONE, 4), R("v", vP(pbuf, qb, 2 * h), 8), vIDX) for h in range(2)]

    def sm_table(s, first=False):
        t = []
        if first:
            for qb in range(4):
                for e in range(4):
                    t.append((4 * qb + 6 + e, "exp", qb, e))
                    if qb in s.add_qb: t.append((4 * qb + 7 + e, "add", qb, e))
                for h in range(2): t.append((4 * qb + 8 + 2 * h, "cvt", qb, h))
        else:
            addslot = {1: (16, 20, 26, 30), 3: (32, 36, 40, 44), 0: (10, 14, 18, 22), 2: (26, 30, 34, 38)}
            for qb in range(4):
                for e in range(4): t.append((8 * qb + 7 + 2 * e, "exp", qb, e))
                for h in range(2): t.append((8 * qb + 10 + 4 * h, "cvt", qb, h))
            for qb in s.add_qb:
                for e in range(4): t.append((addslot[qb][e], "add", qb, e))
        return t
    def sm_op(s, kind, qb, i, wbuf, bb):
        S = vS(qb)
        if kind == "exp": return "v_exp_f32 v%d, v%d" % (S + i, S + i)
        if kind == "add": return "v_add_f32 v%d, v%d, v%d" % (vA(qb), vA(qb), S + i)
        d = vP(wbuf, qb, bb >> 1) + 2 * (bb & 1) + i
        if s.perm: return "v_perm_b32 v%d, v%d, v%d, s%d" % (d, S + 2 * i + 1, S + 2 * i, sSEL)
        return "v_cvt_pk_bf16_f32 v%d, v%d, v%d" % (d, S + 2 * i, S + 2 * i + 1)

    def dma_plan(s, par, b):
        out = []
        for grp, piece in s.dsched[b]:
            gpar = par ^ 1 if (b == 7 and grp < 2) else par
            isK = grp >= 2
            if isK: off = (((1 if gpar == 0 else 3) + (grp - 2)) & 3) * SLOT
            else: off = VBASE + ((2 if gpar == 0 else 0) + grp) * SLOT
            out.append((isK, off, piece))
        return out

    def block(s, par, b, do_qk=True, do_pv=True, first=False, last=False, extra=None):
        n = 16 if first else 32
        sh = [[] for _ in range(n)]
        mem = [[] for _ in range(n)]
        va = [[] for _ in range(n)]
        flush = []
        if not s.novalu:
            tab = s.sm_table(first)
            if (do_qk or b == 0) and not (first and b == 0):
                pp = par if b else par ^ 1
                for g, kind, qb, i in tab:
                    if g >= n: va[g - n].append(s.sm_op(kind, qb, i, pp ^ 1, (b - 1) & 7))
            if do_qk:
                for g, kind, qb, i in tab:
                    if g < n: va[g].append(s.sm_op(kind, qb, i, par ^ 1, b))
                if first and b == 7:
                    keep = set((k, q, i) for g, k, q, i in s.sm_table(False) if g >= 32)
                    for g, kind, qb, i in sorted(tab):
                        if g >= n and (kind, qb, i) not in keep: flush.append(s.sm_op(kind, qb, i, par ^ 1, b))
        buf = b & 1
        nb = (b + 1) & 7
        npar = par if b < 7 else par ^ 1
        plan = s.dma_plan(par, b) if do_qk else []
        gaps = s.dmagaps[len(plan)] if plan else ()
        if first: gaps = [(1, 5, 9, 13)[i] for i in range(len(plan))]
        if first: dsg = [0, 2, 4, 6] + list(range(8, 16))
        else: dsg = [g for g in range(0, 32, 2) if g not in gaps or g in s.share]
        if do_qk:
            kslot = (2 if npar == 0 else 0) + (nb >> 2)
            for t in range(4):
                if not s.nolds: mem[dsg[t]].append(s.kread(buf ^ 1, kslot, nb & 3, t))
        if (do_pv and (do_qk or b < 7)) or (b == 7 and do_qk):
            for r in range(8):
                if not s.nolds: mem[dsg[4 + r]].append(s.vread(buf ^ 1, 0 if npar == 0 else 2, nb, r))
        if do_qk:
            for (isK, off, piece), g in zip(plan, gaps):
                if not s.nodma:
                    if piece == 0 or g == gaps[0] and s.instr == 3: sh[g - 1].append(s.m0set(off))
                    if first and s.lim1: mem[g].append("s_waitcnt vmcnt(%d)" % (s.lim1 - 1))
                    if not first and s.lim2: sh[g].append("s_waitcnt vmcnt(%d)" % (s.lim2 - 1))
                    mem[g].append(s.dma(isK, piece))
                if piece == 3: sh[g + 1].append(s.adv(isK))
            if b in (2, 6):
                w = "s_waitcnt vmcnt(%d) lgkmcnt(0)" % (s.vm1 + (s.otlb if first else 0) if b == 2 else s.vm2)
            elif s.latev and not first and b != 7:
                w = "s_waitcnt lgkmcnt(8)"
            else:
                w = "s_waitcnt lgkmcnt(0)"
            if s.latev and not first and b not in (0, 3, 7):
                sh[3].append("s_waitcnt lgkmcnt(%d)" % sum(1 for g in dsg if g < 3))
            if first and b == 6 and s.pre2:
                n0 = len(s.lines); s.dummy(s.pre2); flush += s.lines[n0:]; del s.lines[n0:]
            if flush: flush.append(w)
            else: sh[n - 1].append(w)
            if b in (3, 7):
                if not s.nobar: sh[0].insert(0, "s_barrier")
                if s.instr == 3:
                    sh[0].insert(1, "s_memrealtime s[72:73]\ns_memtime s[74:75]\ns_waitcnt lgkmcnt(0)\ns_mov_b32 m0, s76\ns_nop 1\nv_writelane_b32 v46, s72, m0\nv_writelane_b32 v47, s74, m0\ns_add_u32 s76, s76, 1")
        else:
            sh[n - 1].append("s_waitcnt lgkmcnt(0)")
        if s.instr == 4 and do_qk:
            if b == 7: sh[1].append("s_memrealtime s[72:73]")
            if b == 0 and not first:
                sh[1].append("s_sub_u32 s75, s72, s74")
                sh[2].append("s_mov_b32 s74, s72")
                sh[4].append("s_cmp_gt_i32 s75, 310\ns_cselect_b32 s75, 1, 0\ns_cselect_b32 s79, s72, s77")
                sh[5].append("s_add_u32 s76, s76, s75")
                sh[6].append("s_min_u32 s77, s77, s79")
        if last:
            sh[31 if any("s_add" in x for x in sh[31]) else 30].append("s_sub_u32 s%d, s%d, 1" % (sCNT, sCNT))
        ms = None
        if do_pv and do_qk and s.msum_qb:
            place = {4: {1: 0, 3: 1, 5: 2, 7: 3}, 2: {1: 0, 5: 1}}[len(s.msum_qb)]
            if b in place: ms = s.msums(par, s.msum_qb[place[b]])
            if s.smpl == 2 and len(s.msum_qb) == 4:
                x = s.msums(par, b >> 1); k = len(x) // 2
                ms = x[k * (b & 1): k * (b & 1) + k]
        for pos in range(n):
            m = None
            if first: m = s.qk(buf, pos >> 2, pos & 3)
            else:
                qb, k = pos >> 3, pos & 7
                if k < 4:
                    if do_qk: m = s.qk(buf, qb, k)
                elif do_pv: m = s.pv(buf, par, qb, b, k - 4)
            if m: s.A(m)
            for o in sh[pos] + mem[pos] + va[pos]: s.A(o)
            if extra:
                for o in extra(pos): s.A(o)
            if s.pad and m: s.A("s_nop %d" % (s.pad - 1))
            if s.padn and not first and do_qk and (pos & 1) and (pos >> 1) % (16 // s.padn) == 0: s.A("s_nop 0")
            if ms is not None and pos == s.mspos:
                for x in ms: s.A(x)
        for o in flush: s.A(o)

    def dummy(s, n):
        for i in range(n):
            s.A("%s v[120:123], v[%d:%d], v[%d:%d], %s" % (MF, 104 + 4 * (i & 1), 107 + 4 * (i & 1), 112 + 4 * ((i >> 1) & 1), 115 + 4 * ((i >> 1) & 1), "v[120:123]" if i & 3 else "0"))
    def stamp(s, idx):
        if s.stamps: s.A("%s s[%d:%d]" % ("s_memrealtime" if s.stamps == 2 else "s_memtime", 48 + 2 * idx, 49 + 2 * idx))

    def build(s):
        A = s.A
        A("; @launch grid=(256,1,1) block=(256,1,1) lds=%d" % LDS_BYTES)
        A('.amdgcn_target "amdgcn-amd-amdhsa--gfx950"')
        A(".text")
        A(".globl %s\n.p2align 8\n.type %s,@function\n%s:" % (KN, KN, KN))
        A("s_cmp_ge_u32 s2, 256\ns_cbranch_scc1 L_end")
        if s.stamps: A("s_memrealtime s[40:41]\ns_memtime s[44:45]")
        A("s_load_dwordx4 s[24:27], s[0:1], 0\ns_load_dwordx4 s[28:31], s[0:1], 16")
        if s.stamps: A("s_load_dwordx2 s[64:65], s[0:1], 40")
        if s.warm:
            A("s_getpc_b64 s[36:37]\nL_pc:")
            A("v_lshlrev_b32 v1, 7, v0\nv_min_u32 v1, L_end-L_pc, v1\nglobal_load_dword v11, v1, s[36:37]")
        A("v_lshrrev_b32 v1, 6, v0\nv_and_b32 v0, 63, v0\ns_nop 0\nv_readfirstlane_b32 s%d, v1" % sW)
        A("v_lshrrev_b32 v20, 4, v0\nv_and_b32 v21, 15, v0")
        A("s_mul_i32 s%d, s%d, %d" % (sWL, sW, 4 * PITCH))
        if s.lin:
            A("s_lshl_b32 s%d, s%d, 12\nv_lshlrev_b32 v22, 4, v0\nv_add_u32 v22, s%d, v22" % (sT, sW, sT))
        else:
            A("v_lshlrev_b32 v22, 12, v20\nv_lshl_add_u32 v22, v21, 4, v22")
            A("s_lshr_b32 s%d, s%d, 1\ns_lshl_b32 s%d, s%d, 11\ns_and_b32 s%d, s%d, 1\ns_lshl_b32 s%d, s%d, 9\ns_add_u32 s%d, s%d, s%d" % (sT, sW, sT, sT, sT + 1, sW, sT + 1, sT + 1, sT, sT, sT + 1))
            A("v_add_u32 v22, s%d, v22" % sT)
        for i in range(4):
            goff = i * 1024 if s.lin else (4 * (i & 1) + (i >> 1)) * 256
            A("v_add_u32 v%d, %d, v22" % (vDMA + i, goff - PITCH * i + BIASB))
        A("s_lshl_b32 s%d, s%d, 14" % (sT, sW))
        A("v_lshlrev_b32 v23, 2, v20\nv_xor_b32 v23, v23, v21\nv_lshlrev_b32 v23, 4, v23\nv_lshl_add_u32 v23, v20, 8, v23\nv_add_u32 v%d, s%d, v23" % (vQA, sT))
        A("v_lshrrev_b32 v23, 3, v0\nv_and_b32 v24, 7, v0\nv_lshlrev_b32 v24, 4, v24\nv_lshl_add_u32 v23, v23, 8, v24\nv_add_u32 v%d, s%d, v23" % (vOA, sT))
        for qb in range(4): A("s_mov_b32 s%d, %d" % (sQB + qb, qb * 4096))
        A("s_waitcnt lgkmcnt(0)")
        hd = 2
        if s.hmap == 1:
            hd = 33; A("s_xor_b32 s33, s2, 1")
        if s.hmap == 2:
            hd = 33; A("s_and_b32 s33, s2, 7\ns_lshl_b32 s33, s33, 5\ns_lshr_b32 s36, s2, 3\ns_add_u32 s33, s33, s36")
        A("s_lshl_b32 s%d, s%d, 19" % (sT, hd))
        A("s_sub_u32 s26, s26, %d\ns_subb_u32 s27, s27, 0\ns_sub_u32 s28, s28, %d\ns_subb_u32 s29, s29, 0" % (BIASB, BIASB))
        A("s_add_u32 s%d, s26, s%d\ns_addc_u32 s%d, s27, 0\ns_mov_b32 s%d, %d\ns_mov_b32 s%d, 0x20000" % (sK, sT, sK + 1, sK + 2, 0x80000 + BIASB, sK + 3))
        A("s_add_u32 s%d, s28, s%d\ns_addc_u32 s%d, s29, 0\ns_mov_b32 s%d, %d\ns_mov_b32 s%d, 0x20000" % (sV, sT, sV + 1, sV + 2, 0x80000 + BIASB, sV + 3))
        A("s_lshl_b32 s%d, s%d, 16" % (sT, hd))
        A("s_add_u32 s%d, s24, s%d\ns_addc_u32 s%d, s25, 0\ns_mov_b32 s%d, 0x10000\ns_mov_b32 s%d, 0x20000" % (sQ, sT, sQ + 1, sQ + 2, sQ + 3))
        A("s_add_u32 s%d, s30, s%d\ns_addc_u32 s%d, s31, 0\ns_mov_b32 s%d, 0x10000\ns_mov_b32 s%d, 0x20000" % (sO, sT, sO + 1, sO + 2, sO + 3))
        A("s_mov_b32 s%d, 0" % sPASS)
        for qb in range(4): A("v_mov_b32 v%d, 0xff800000" % vM(qb))
        A("L_start:")
        A("s_mov_b32 s%d, 0\ns_mov_b32 s%d, 0" % (sSOK, sSOV))
        def group(isK, off, n=4):
            return [s.m0set(off), "s_nop 0"] + [s.dma(isK, i) for i in range(n)] + ([s.adv(isK)] if n == 4 else [])
        PERM = (0, 3, 1, 2)
        def qgroup(qb):
            out = []
            for i in range(4):
                out.append(["s_add_u32 m0, s%d, %d" % (sWL, VBASE + qb * SLOT + i * PITCH - PERM[i] * 1024), "s_nop 0",
                            "buffer_load_dwordx4 v%d, %s, s%d offen offset:%d %s lds" % (vQA, R("s", sQ, 4), sQB + qb, PERM[i] * 1024, s.qld)])
            return out
        def pieces(isK, off, n=4):
            out = [[s.dma(isK, i)] for i in range(n)]
            if n: out[0] = [s.m0set(off), "s_nop 0"] + out[0]
            if n == 4: out[3].append(s.adv(isK))
            return out
        Q = [("K0", p) for p in pieces(True, 0)]
        for qb in range(4): Q += [("Q%d" % qb, p) for p in qgroup(qb)]
        Q += [("K1", p) for p in pieces(True, SLOT)] + [("K2", p) for p in pieces(True, 2 * SLOT)] + [("V0", p) for p in pieces(False, VBASE, s.npre)]
        st = {"n": 0}
        def issue(k=1):
            for _ in range(k):
                if st["n"] < len(Q):
                    if s.lim and st["n"] >= s.lim: A("s_waitcnt vmcnt(%d)" % (s.lim - 1))
                    for x in Q[st["n"]][1]: A(x)
                    st["n"] += 1
        def waitfor(tag):
            last = max(i for i, x in enumerate(Q) if x[0] == tag)
            if st["n"] <= last: issue(last + 1 - st["n"])
            A("s_waitcnt vmcnt(%d)" % (st["n"] - 1 - last))
        issue(s.nfirst)
        A("v_and_b32 v22, 3, v0\nv_bfe_u32 v23, v0, 2, 1\nv_lshl_add_u32 v22, v22, 1, v23\nv_and_b32 v23, 8, v0\nv_add_u32 v22, v22, v23")
        A("v_mul_u32_u24 v22, %d, v22\nv_lshrrev_b32 v23, 4, v0\nv_lshl_add_u32 v%d, v23, 4, v22" % (PITCH, vK))
        A("v_bfe_u32 v22, v0, 2, 2\nv_bfe_u32 v23, v0, 4, 1\nv_lshl_add_u32 v22, v22, 1, v23\nv_lshrrev_b32 v23, 5, v0\nv_lshl_add_u32 v22, v23, 3, v22")
        A("v_mul_u32_u24 v22, %d, v22\nv_and_b32 v23, 3, v0\nv_lshl_add_u32 v22, v23, 3, v22\nv_add_u32 v%d, %d, v22" % (PITCH, vV, VBASE))
        A("v_bfe_u32 v22, v0, 2, 2\nv_lshlrev_b32 v22, 1, v22\nv_mov_b32 v23, 0x78\nv_lshrrev_b32 v22, v22, v23\nv_and_b32 v22, 3, v22")
        A("v_mul_u32_u24 v22, %d, v22\nv_and_b32 v23, 3, v0\nv_lshl_add_u32 v22, v23, 8, v22\nv_lshrrev_b32 v24, 4, v0\nv_lshl_add_u32 v22, v24, 4, v22" % PITCH)
        A("v_add_u32 v22, s%d, v22\nv_add_u32 v22, %d, v22" % (sWL, VBASE))
        for t in range(4): A("v_xor_b32 v24, %d, v23\nv_lshl_add_u32 v%d, v24, 6, v22" % (t, vQR + t))
        A("v_and_b32 v%d, 15, v0\nv_lshrrev_b32 v%d, 5, v0\nv_xor_b32 v%d, v%d, v%d\nv_lshlrev_b32 v%d, 4, v%d" % (vE, vE + 1, vE + 1, vE + 1, vE, vE + 1, vE + 1))
        A("v_lshl_add_u32 v%d, v%d, 8, v%d\nv_bfe_u32 v%d, v0, 4, 1\nv_lshl_add_u32 v%d, v%d, 3, v%d" % (vE + 1, vE, vE + 1, vE, vE + 1, vE, vE + 1))
        for db in range(8): A("v_xor_b32 v%d, %d, v%d\nv_add_u32 v%d, s%d, v%d" % (vW + db, db * 32, vE + 1, vW + db, sWL, vW + db))
        A("v_lshrrev_b32 v%d, 3, v0\nv_and_b32 v%d, 7, v0\nv_xor_b32 v%d, v%d, v%d\nv_lshlrev_b32 v%d, 4, v%d" % (vE, vE + 1, vE + 1, vE + 1, vE, vE + 1, vE + 1))
        A("v_lshl_add_u32 v%d, v%d, 8, v%d\nv_add_u32 v%d, s%d, v%d" % (vE + 1, vE, vE + 1, vOR, sWL, vE + 1))
        c = 1.4426950408889634 / (128.0 ** 0.5)
        A("s_mov_b32 s%d, %s\ns_mov_b32 s%d, %s" % (sC, f32(c), sC + 1, f32(c)))
        A("s_mov_b32 s%d, 7" % sCNT)
        A("s_mov_b32 s%d, 0x07060302" % sSEL)
        if s.sp:
            A("v_and_b32 v22, 3, v0\nv_cmp_gt_u32 vcc, 2, v22\nv_mov_b32 v23, 0x3f803f80\nv_and_b32 v22, 1, v0\nv_cndmask_b32 v%d, 0, v23, vcc" % vONE)
            A("v_cmp_eq_u32 vcc, 0, v22\nv_mov_b32 v23, 0x44444444\nv_mov_b32 v24, 0xeeeeeeee\nv_cndmask_b32 v%d, v24, v23, vcc" % vIDX)
        elif s.ones4:
            A("v_and_b32 v22, 3, v0\nv_cmp_eq_u32 vcc, 0, v22\nv_mov_b32 v23, 0x3f803f80\ns_nop 0\nv_cndmask_b32 v%d, 0, v23, vcc" % vONE)
        else:
            A("v_mov_b32 v%d, 0x3f803f80" % vONE)
        for i in range(1, 4): A("v_mov_b32 v%d, v%d" % (vONE + i, vONE))
        for i in range(128): A("v_accvgpr_write_b32 a%d, 0" % i)
        for i in range(16): A("v_mov_b32 v%d, 0" % (vL(0) + i))
        for qb in range(4): A("v_mov_b32 v%d, 0" % vA(qb))
        s.stamp(0)
        if s.pre0 or s.pre1 or s.pre2:
            A("s_mov_b32 s85, 0x9e3779b1\nv_add_u32 v100, 1, v0")
            for i in range(16):
                A("v_mul_lo_u32 v100, v100, s85\nv_and_b32 v%d, 0xbfffbfff, v100\nv_or_b32 v%d, 0x3c003c00, v%d" % (104 + i, 104 + i, 104 + i))
            s.dummy(s.pre0)
        issue(s.nsecond - st["n"])
        for qb in range(4):
            if qb and s.pre1: s.dummy(s.pre1)
            waitfor("Q%d" % qb)
            if qb == 0: s.stamp(1)
            for t in range(4): A("ds_read_b128 %s, v%d offset:%d" % (R("v", 128 + 4 * t, 4), vQR + t, qb * SLOT))
            if qb == 0:
                A("s_barrier")
                for t in range(4): A(s.kread(0, 0, 0, t))
                if s.prepass == 2:
                    for t in range(4): A(s.kread(1, 0, 1, t))
            for f in range(4):
                b = 128 + 4 * f
                if st["n"] < len(Q) and (Q[st["n"]][0] != "V0" or qb >= 1): issue(1)
                A("s_waitcnt lgkmcnt(%d)" % (3 - f + (4 * s.prepass if qb == 0 else 0)))
                for i in range(4):
                    A("v_lshlrev_b32 v%d, 16, v%d\nv_and_b32 v%d, 0xffff0000, v%d" % (vT + 2 * i, b + i, vT + 2 * i + 1, b + i))
                for i in range(4):
                    A("v_pk_mul_f32 %s, %s, %s" % (R("v", vT + 2 * i, 2), R("v", vT + 2 * i, 2), R("s", sC, 2)))
                for i in range(4):
                    A("v_cvt_pk_bf16_f32 v%d, v%d, v%d" % (vT + 8 + i, vT + 2 * i, vT + 2 * i + 1))
                for i in range(4):
                    A("v_accvgpr_write_b32 a%d, v%d" % (aQ(qb, f) + i, vT + 8 + i))
        issue(len(Q))
        if s.otlb:
            A("buffer_load_dword v10, v%d, %s, 0 offen" % (vOA, R("s", sO, 4)))
        s.stamp(2)
        A("s_waitcnt lgkmcnt(0)")
        for rep in range(s.prepass):
            for qb in range(4):
                for t in range(4): A(s.qk(rep, qb, t, zero=True))
            A("s_nop 4")
            for qb in range(4):
                S = vS(qb)
                A("v_max3_f32 v%d, v%d, v%d, v%d" % (vM(qb), vM(qb), S, S + 1))
            for qb in range(4):
                S = vS(qb)
                A("v_max3_f32 v%d, v%d, v%d, v%d" % (vM(qb), vM(qb), S + 2, S + 3))
        for sw in ("v_permlane32_swap_b32", "v_permlane16_swap_b32"):
            for qb in range(4): A("v_mov_b32 v%d, v%d" % (vT + qb, vM(qb)))
            for qb in range(4): A("%s v%d, v%d" % (sw, vT + qb, vM(qb)))
            for qb in range(4): A("v_max_f32 v%d, v%d, v%d" % (vM(qb), vM(qb), vT + qb))
        A("s_mov_b32 s%d, %s" % (sT, f32(-s.bias)))
        for qb in range(4): A("v_sub_f32 v%d, s%d, v%d" % (vNM(qb), sT, vM(qb)))
        for qb in range(4):
            for i in range(1, 4): A("v_mov_b32 v%d, v%d" % (vNM(qb) + i, vNM(qb)))
        if s.novalu:
            for i in range(128): A("v_accvgpr_read_b32 v%d, a%d" % (128 + i, 128 + (i & 63)))
        if s.nolds:
            for t in range(4): A(s.kread(1, 0, 1, t))
            for bf in range(2):
                for r in range(8): A(s.vread(bf, -4, bf, r).replace("offset:-", "offset:"))
            A("s_waitcnt lgkmcnt(0)")
        if s.instr == 3: A("s_mov_b32 s76, 0")
        if s.instr == 4: A("s_mov_b32 s76, 0\ns_add_u32 s77, s40, 7000\ns_memrealtime s[74:75]\ns_waitcnt lgkmcnt(0)\ns_add_u32 s74, s74, 200\ns_mov_b32 s78, 0")
        A("s_nop 0")
        s.stamp(3)
        n0 = len(s.lines)
        for b in range(8): s.block(1, b, do_pv=False, first=True)
        s.lines = hazards.pad(s.lines)
        s.stamp(4)
        A(".p2align 6")
        A("L_loop:")
        n0 = len(s.lines)
        for b in range(8): s.block(0, b, last=(b == 7))
        A("s_cbranch_scc1 L_tail")
        n1 = len(s.lines)
        for b in range(8): s.block(1, b)
        body = s.lines[n0:]
        A("s_branch L_loop")
        A("L_tail:")
        n2 = len(s.lines)
        s.stamp(5)
        s.block(1, 0, do_qk=False)
        A("s_waitcnt vmcnt(0)")
        for qb in s.msum_qb:
            for x in s.msums(1, qb): A(x)
        for qb in s.add_qb:
            A("v_mov_b32 v%d, v%d" % (vL(qb), vA(qb)))
        if s.add_qb:
            for sw in ("v_permlane32_swap_b32", "v_permlane16_swap_b32"):
                for qb in s.add_qb: A("v_mov_b32 v%d, v%d" % (vT + qb, vL(qb)))
                A("s_nop 1")
                for qb in s.add_qb: A("%s v%d, v%d" % (sw, vT + qb, vL(qb)))
                A("s_nop 1")
                for qb in s.add_qb: A("v_add_f32 v%d, v%d, v%d" % (vL(qb), vL(qb), vT + qb))
        if s.sp:
            for qb in s.msum_qb: A("v_add_f32 v%d, v%d, v%d" % (vL(qb), vL(qb), vL(qb) + 1))
        A("s_mov_b32 s%d, %s" % (sT, f32(s.thr)))
        for qb in range(4): A("v_rcp_f32 v%d, v%d" % (vT + qb, vL(qb)))
        A("v_add_f32 v%d, v%d, v%d\nv_add_f32 v%d, v%d, v%d" % (vT + 5, vL(0), vL(1), vT + 6, vL(2), vL(3)))
        A("v_add_f32 v%d, v%d, v%d" % (vT + 5, vT + 5, vT + 6))
        A("v_cmp_nge_f32 vcc, s%d, v%d" % (sT, vT + 5))
        def conv(qb, db, k):
            tb = vE + 6 * (k % 4)
            o = aO(qb, db)
            ops = ["v_accvgpr_read_b32 v%d, a%d" % (tb + i, o + i) for i in range(4)]
            ops += ["v_mul_f32 v%d, v%d, v%d" % (tb + i, tb + i, vT + qb) for i in range(4)]
            ops += ["v_cvt_pk_bf16_f32 v%d, v%d, v%d" % (tb + 4 + i, tb + 2 * i, tb + 2 * i + 1) for i in range(2)]
            ops += ["ds_write_b64 v%d, %s offset:%d" % (vW + db, R("v", tb + 4, 2), qb * SLOT)]
            return ops
        def oread(h, qb, i):
            return "ds_read_b128 %s, v%d offset:%d" % (R("v", 128 + 32 * h + 8 * qb + 4 * i, 4), vOR, qb * SLOT + i * 2048 + ((h ^ i) * 128))
        def ostore(h, qb, i):
            return "buffer_store_dwordx4 %s, v%d, %s, s%d offen offset:%d %s" % (R("v", 128 + 32 * h + 8 * qb + 4 * i, 4), vOA, R("s", sO, 4), sQB + qb, i * 2048 + h * 128, s.st)
        k = 0
        for b in range(1, 8):
            q = []
            for qb in range(4):
                q.append(conv(qb, b - 1, k)); k += 1
            def extra(pos, q=q, b=b):
                qb, kk = pos >> 3, pos & 7
                if kk < 4: return []
                ops = q[qb]
                out = [ops[0:3], ops[3:6], ops[6:9], ops[9:11]][kk - 4]
                if b == 5 and kk in (4, 6): out = [oread(0, qb, (kk - 4) >> 1)] + out
                if b == 6 and kk in (4, 6): out = [ostore(0, qb, (kk - 4) >> 1)] + out
                return out
            s.block(1, b, do_qk=False, extra=extra)
        for qb in range(4):
            for x in conv(qb, 7, k): A(x)
            k += 1
            if qb:
                A("s_waitcnt lgkmcnt(1)")
                for i in range(2): A(ostore(1, qb - 1, i))
            for i in range(2): A(oread(1, qb, i))
        A("s_waitcnt lgkmcnt(0)")
        for i in range(2): A(ostore(1, 3, i))
        pre = s.lines[n0:n1]
        s.lines[n2:] = hazards.pad(pre + s.lines[n2:], start=len(pre))[len(pre):]
        s.stamp(6)
        A("s_cmp_lg_u32 s%d, 0\ns_cbranch_scc1 L_fin" % sPASS)
        A("s_cmp_lg_u64 vcc, 0\ns_cselect_b32 s%d, 1, 0" % sT)
        A("s_lshl_b32 s%d, s%d, 2\ns_add_u32 s%d, s%d, %d" % (sT + 1, sW, sT + 1, sT + 1, FLAG_OFF))
        A("v_mov_b32 v%d, s%d\nv_mov_b32 v%d, s%d\nv_mov_b32 v%d, %d" % (vT, sT, vT + 1, sT + 1, vT + 2, FLAG_OFF))
        A("ds_write_b32 v%d, v%d\ns_waitcnt lgkmcnt(0)\ns_barrier" % (vT + 1, vT))
        A("ds_read_b128 %s, v%d\ns_waitcnt lgkmcnt(0)" % (R("v", vT + 8, 4), vT + 2))
        A("v_or3_b32 v%d, v%d, v%d, v%d\nv_or_b32 v%d, v%d, v%d\ns_nop 1" % (vT, vT + 8, vT + 9, vT + 10, vT, vT, vT + 11))
        A("v_readfirstlane_b32 s%d, v%d\ns_nop 3\ns_cmp_eq_u32 s%d, 0\ns_cbranch_scc1 L_fin" % (sT, vT, sT))
        A("s_mov_b32 s%d, 1\ns_mov_b32 s%d, 0" % (sPASS, sSOK))
        A("s_waitcnt vmcnt(0)")
        A("L_maxpass:")
        A("s_barrier")
        for x in group(True, 0): A(x)
        A("s_waitcnt vmcnt(0)\ns_barrier")
        for j in range(4):
            for t in range(4): A(s.kread(0, 0, j, t))
            A("s_waitcnt lgkmcnt(0)")
            for qb in range(4):
                for t in range(4): A(s.qk(0, qb, t, zero=True))
            A("s_nop 7")
            for qb in range(4):
                S = vS(qb)
                A("v_max3_f32 v%d, v%d, v%d, v%d" % (vM(qb), vM(qb), S, S + 1))
                A("v_max3_f32 v%d, v%d, v%d, v%d" % (vM(qb), vM(qb), S + 2, S + 3))
        A("s_cmp_lt_u32 s%d, 0x80000\ns_cbranch_scc1 L_maxpass" % sSOK)
        A("s_barrier\ns_branch L_start")
        A("L_fin:")
        if s.dbg == -1:
            A("s_waitcnt vmcnt(0)")
            A("s_memrealtime s[42:43]\ns_memtime s[46:47]\ns_load_dwordx2 s[64:65], s[0:1], 32\ns_waitcnt lgkmcnt(0)")
            A("s_mov_b32 s68, s64\ns_mov_b32 s69, s65\ns_mov_b32 s70, 256\ns_mov_b32 s71, 0x20000")
            A("s_cmp_ge_u32 s2, 8\ns_cbranch_scc1 L_end\ns_cmp_lg_u32 s3, 0\ns_cbranch_scc1 L_end")
            A("s_lshl_b32 s36, s2, 2\nv_mov_b32 v3, s36\ns_mov_b64 exec, 1")
            A("s_sub_u32 s36, s42, s40\nv_mov_b32 v8, s36\ns_sub_u32 s36, s46, s44\nv_mov_b32 v9, s36")
            A("buffer_store_dword v8, v3, s[68:71], 0 offen\nbuffer_store_dword v9, v3, s[68:71], 0 offen offset:32")
        elif s.probe is not None:
            A("s_waitcnt vmcnt(0)")
            A("s_memrealtime s[42:43]\ns_memtime s[46:47]\ns_waitcnt lgkmcnt(0)")
            A("s_cmp_lg_u32 s2, %d\ns_cbranch_scc1 L_end" % s.probe[3])
            a, b, div = s.probe[:3]
            A("s_sub_u32 s36, s%d, s%d" % (a, b))
            if div == 10: A("s_mul_hi_u32 s36, s36, 429496730")
            if div == 0: A("s_mov_b32 s36, 0")
            if div == -1: A("s_mul_i32 s36, s36, 500")
            A("s_add_u32 s36, s36, 15000\ns_add_u32 s36, s36, s40")
            A("L_spin:\ns_sleep 4\ns_memrealtime s[42:43]\ns_waitcnt lgkmcnt(0)\ns_sub_u32 s37, s42, s36\ns_cmp_lt_i32 s37, 0\ns_cbranch_scc1 L_spin")
        elif s.stamps:
            A("s_waitcnt vmcnt(0)")
            A("s_memrealtime s[42:43]\ns_memtime s[46:47]\ns_getreg_b32 s62, hwreg(HW_REG_XCC_ID)\ns_mov_b32 s63, 0\ns_waitcnt lgkmcnt(0)")
            A("s_mov_b32 s68, s64\ns_mov_b32 s69, s65\ns_mov_b32 s70, 0x100000\ns_mov_b32 s71, 0x20000")
            A("s_lshl_b32 s37, s2, 2\ns_add_u32 s37, s37, s3\ns_mul_i32 s37, s37, 96\nv_mov_b32 v3, s37")
            if s.instr == 3:
                A("s_lshl_b32 s38, s2, 2\ns_add_u32 s38, s38, s3\ns_lshl_b32 s38, s38, 9\ns_add_u32 s38, s38, 0x20000\nv_lshlrev_b32 v4, 3, v0\nv_add_u32 v4, s38, v4")
                A("buffer_store_dwordx2 v[46:47], v4, s[68:71], 0 offen")
            for j, r in enumerate([40, 42, 44, 46] + list(range(48, 64, 2))):
                A("v_mov_b32 v8, s%d\nv_mov_b32 v9, s%d" % (r, r + 1))
                A("buffer_store_dwordx2 v[8:9], v3, s[68:71], 0 offen offset:%d" % (j * 8))
                A("s_nop 1")
        A("L_end:\ns_endpgm")
        A('.section .rodata,"a"\n.p2align 6\n.amdhsa_kernel %s' % KN)
        A("  .amdhsa_next_free_vgpr 512\n  .amdhsa_next_free_sgpr 102\n  .amdhsa_accum_offset 256\n  .amdhsa_group_segment_fixed_size 0\n  .amdhsa_kernarg_size 48\n  .amdhsa_user_sgpr_count 2\n  .amdhsa_user_sgpr_kernarg_segment_ptr 1\n  .amdhsa_system_sgpr_workgroup_id_x 1\n  .amdhsa_float_denorm_mode_32 3\n.end_amdhsa_kernel")
        errs = hazards.check(s.lines[:n2], "linear") + hazards.check(body + body, "loop") + hazards.check(s.lines[n0:n1] + s.lines[n2:], "tail")
        return "\n".join(s.lines) + "\n", errs

def gen(name, **kw):
    txt, errs = Gen(**kw).build()
    open(name, "w").write(txt)
    return errs

if __name__ == "__main__":
    import ast
    name = sys.argv[1]
    kw = {}
    for a in sys.argv[2:]:
        k, v = a.split("=", 1)
        try: kw[k] = ast.literal_eval(v)
        except Exception: kw[k] = v
    e = gen(name, **kw)
    print(name, "hazards:", len(e))
```

```python
import sys, struct
import hazards

KN = "standalone__mha_softmax__near_ridge_kernel"
PITCH = 1056
SLOT = 16 * PITCH
VBASE = 4 * SLOT
FLAG_OFF = 8 * SLOT
LDS_BYTES = 8 * SLOT + 64
BIASB = 1888

def f32(x): return "0x%08x" % struct.unpack("<I", struct.pack("<f", x))[0]
def R(p, b, n): return "%s[%d:%d]" % (p, b, b + n - 1)

vDMA = 2
vK = 6
vV = 7
vQA = 8
vOA = 9
def vA(qb): return 12 + qb
def vM(qb): return 16 + qb
vT = 20
def vS(qb): return 48 + 4 * qb
def vNM(qb): return 64 + 4 * qb
vONE = 80
def vL(qb): return 84 + 4 * qb
vE = 100
vQR = 40
vW = 32
vOR = 44
def vP(buf, qb, ks): return 128 + buf * 64 + qb * 16 + ks * 4
def aO(qb, db): return (qb * 8 + db) * 4
def aQ(qb, t): return 128 + (qb * 4 + t) * 4
def aK(buf, t): return 192 + buf * 16 + 4 * t
def aV(buf, ks): return 224 + buf * 16 + 4 * ks

sW = 3
sQ, sK, sV, sO = 4, 8, 12, 16
sSOK, sSOV = 20, 21
sWL = 22
sCNT = 23
sPASS = 32
sC = 34
sT = 36
sSEL = 84
vIDX = 45
sQB = 80
MF = "v_mfma_f32_16x16x32_bf16"

class Gen:
    def __init__(s, ld="nt", qld="nt", st="", stamps=0, bias=10.0, thr=2.0 ** 40, summode="mfma", nodma=0, nobar=0, novalu=0, nolds=0,
                 warm=1, instr=0, probe=None, dbg=None, dmagaps=None, pad=0, otlb=1, ones4=1, prepass=1, dsched="a", mspos=23, nfirst=12, nsecond=16, hmap=0, lim=0, lim1=0, padn=0, perm=0, smpl=1, lim2=0, share=(), latev=0, pre0=0, pre1=0, pre2=0, lin=0, dist=0):
        s.__dict__.update(locals())
        s.lines = []
        s.msum_qb = {"mfma": (0, 1, 2, 3), "hybrid": (0, 2), "valu": (), "sp": (0, 1, 2, 3), "sphy": (0, 2)}[summode]
        s.sp = summode.startswith("sp")
        s.dmagaps = {1: (24,), 2: (24, 28), 3: (24, 26, 28), 4: (24, 26, 28, 30)}
        if dmagaps: s.dmagaps[len(dmagaps)] = dmagaps
        cnt = {"a": (2, 2, 2, 2, 2, 2, 2, 2), "b": (3, 3, 3, 3, 2, 2, 0, 0), "c": (4, 4, 2, 2, 2, 2, 0, 0), "d": (3, 3, 2, 2, 2, 2, 1, 1), "e": (4, 4, 4, 0, 4, 0, 0, 0)}[dsched]
        seq = [(g, p) for g in range(4) for p in range(4)]
        s.dsched = {}
        k = 0
        for i, c in enumerate(cnt):
            s.dsched[(i + 7) & 7] = seq[k:k + c]; k += c
        assert all(g < 3 for b in (7, 0, 1, 2) for g, p in s.dsched[b])
        s.npre = cnt[0]
        s.vm1 = 4 + sum(cnt[:4])
        s.vm2 = 8
        s.add_qb = tuple(q for q in range(4) if q not in s.msum_qb)
    def A(s, x): s.lines.append(x)

    def m0set(s, lds_off): return "s_add_u32 m0, s%d, %d" % (sWL, lds_off)
    def dma(s, isK, i):
        return "buffer_load_dwordx4 v%d, %s, s%d offen offset:%d %s lds" % (vDMA + i, R("s", sK if isK else sV, 4), sSOK if isK else sSOV, i * PITCH, s.ld)
    def adv(s, isK):
        so = sSOK if isK else sSOV
        return "s_add_u32 s%d, s%d, 0x4000" % (so, so)
    def kread(s, buf, slot, j, t):
        return "ds_read_b128 %s, v%d offset:%d" % (R("a", aK(buf, t), 4), vK, slot * SLOT + j * 256 + t * 64)
    def vread(s, buf, slot0, db, r):
        ks, u = r >> 1, r & 1
        return "ds_read_b64_tr_b16 %s, v%d offset:%d" % (R("a", aV(buf, ks) + 2 * u, 2), vV, (slot0 + (ks >> 1)) * SLOT + (2 * (ks & 1) + u) * 256 + db * 32)
    def qk(s, buf, qb, t, zero=False):
        c = R("v", vS(qb), 4) if t else ("0" if zero else R("v", vNM(qb), 4))
        return "%s %s, %s, %s, %s" % (MF, R("v", vS(qb), 4), R("a", aK(buf, t), 4), R("a", aQ(qb, t), 4), c)
    def pv(s, buf, pbuf, qb, db, ks):
        o = R("a", aO(qb, db), 4)
        return "%s %s, %s, %s, %s" % (MF, o, R("a", aV(buf, ks), 4), R("v", vP(pbuf, qb, ks), 4), o)
    def msum(s, pbuf, qb, ks):
        o = R("v", vL(qb), 4)
        return "%s %s, %s, %s, %s" % (MF, o, R("v", vONE, 4), R("v", vP(pbuf, qb, ks), 4), o)

    def msums(s, pbuf, qb):
        if not s.sp: return [s.msum(pbuf, qb, ks) for ks in range(4)]
        return ["v_smfmac_f32_16x16x64_bf16 %s, %s, %s, v%d" % (R("v", vL(qb), 4), R("v", vONE, 4), R("v", vP(pbuf, qb, 2 * h), 8), vIDX) for h in range(2)]

    def sm_table(s, first=False):
        t = []
        if first:
            for qb in range(4):
                for e in range(4):
                    t.append((4 * qb + 6 + e, "exp", qb, e))
                    if qb in s.add_qb: t.append((4 * qb + 7 + e, "add", qb, e))
                for h in range(2): t.append((4 * qb + 8 + 2 * h, "cvt", qb, h))
        else:
            addslot = {1: (16, 20, 26, 30), 3: (32, 36, 40, 44), 0: (10, 14, 18, 22), 2: (26, 30, 34, 38)}
            for qb in range(4):
                for e in range(4): t.append((8 * qb + 7 + 2 * e, "exp", qb, e))
                for h in range(2): t.append((8 * qb + 10 + 4 * h, "cvt", qb, h))
            for qb in s.add_qb:
                for e in range(4): t.append((addslot[qb][e], "add", qb, e))
        return t
    def sm_op(s, kind, qb, i, wbuf, bb):
        S = vS(qb)
        if kind == "exp": return "v_exp_f32 v%d, v%d" % (S + i, S + i)
        if kind == "add": return "v_add_f32 v%d, v%d, v%d" % (vA(qb), vA(qb), S + i)
        d = vP(wbuf, qb, bb >> 1) + 2 * (bb & 1) + i
        if s.perm: return "v_perm_b32 v%d, v%d, v%d, s%d" % (d, S + 2 * i + 1, S + 2 * i, sSEL)
        return "v_cvt_pk_bf16_f32 v%d, v%d, v%d" % (d, S + 2 * i, S + 2 * i + 1)

    def dma_plan(s, par, b):
        out = []
        for grp, piece in s.dsched[b]:
            gpar = par ^ 1 if (b == 7 and grp < 2) else par
            isK = grp >= 2
            if isK: off = (((1 if gpar == 0 else 3) + (grp - 2)) & 3) * SLOT
            else: off = VBASE + ((2 if gpar == 0 else 0) + grp) * SLOT
            out.append((isK, off, piece))
        return out

    def block(s, par, b, do_qk=True, do_pv=True, first=False, last=False, extra=None):
        n = 16 if first else 32
        sh = [[] for _ in range(n)]
        mem = [[] for _ in range(n)]
        va = [[] for _ in range(n)]
        flush = []
        if not s.novalu:
            tab = s.sm_table(first)
            if (do_qk or b == 0) and not (first and b == 0):
                pp = par if b else par ^ 1
                for g, kind, qb, i in tab:
                    if g >= n: va[g - n].append(s.sm_op(kind, qb, i, pp ^ 1, (b - 1) & 7))
            if do_qk:
                for g, kind, qb, i in tab:
                    if g < n: va[g].append(s.sm_op(kind, qb, i, par ^ 1, b))
                if first and b == 7:
                    keep = set((k, q, i) for g, k, q, i in s.sm_table(False) if g >= 32)
                    for g, kind, qb, i in sorted(tab):
                        if g >= n and (kind, qb, i) not in keep: flush.append(s.sm_op(kind, qb, i, par ^ 1, b))
        buf = b & 1
        nb = (b + 1) & 7
        npar = par if b < 7 else par ^ 1
        plan = s.dma_plan(par, b) if do_qk else []
        gaps = s.dmagaps[len(plan)] if plan else ()
        if first: gaps = [(1, 5, 9, 13)[i] for i in range(len(plan))]
        if first: dsg = [0, 2, 4, 6] + list(range(8, 16))
        else: dsg = [g for g in range(0, 32, 2) if g not in gaps or g in s.share]
        if do_qk:
            kslot = (2 if npar == 0 else 0) + (nb >> 2)
            for t in range(4):
                if not s.nolds: mem[dsg[t]].append(s.kread(buf ^ 1, kslot, nb & 3, t))
        if (do_pv and (do_qk or b < 7)) or (b == 7 and do_qk):
            for r in range(8):
                if not s.nolds: mem[dsg[4 + r]].append(s.vread(buf ^ 1, 0 if npar == 0 else 2, nb, r))
        if do_qk:
            for (isK, off, piece), g in zip(plan, gaps):
                if not s.nodma:
                    if piece == 0 or g == gaps[0] and s.instr == 3: sh[g - 1].append(s.m0set(off))
                    if first and s.lim1: mem[g].append("s_waitcnt vmcnt(%d)" % (s.lim1 - 1))
                    if not first and s.lim2: sh[g].append("s_waitcnt vmcnt(%d)" % (s.lim2 - 1))
                    mem[g].append(s.dma(isK, piece))
                if piece == 3: sh[g + 1].append(s.adv(isK))
            if s.dist and not first:
                g2 = gaps[-1]; x = (g2 + s.dist) % 32
                cnt = sum(1 for k in range(1, s.dist) if (g2 + k) % 32 in gaps)
                sh[x].append("s_waitcnt vmcnt(%d)" % cnt)
            if b in (2, 6):
                w = "s_waitcnt vmcnt(%d) lgkmcnt(0)" % (s.vm1 + (s.otlb if first else 0) if b == 2 else s.vm2)
            elif s.latev and not first and b != 7:
                w = "s_waitcnt lgkmcnt(8)"
            else:
                w = "s_waitcnt lgkmcnt(0)"
            if s.latev and not first and b not in (0, 3, 7):
                sh[3].append("s_waitcnt lgkmcnt(%d)" % sum(1 for g in dsg if g < 3))
            if first and b == 6 and s.pre2:
                n0 = len(s.lines); s.dummy(s.pre2); flush += s.lines[n0:]; del s.lines[n0:]
            if flush: flush.append(w)
            else: sh[n - 1].append(w)
            if b in (3, 7):
                if not s.nobar: sh[0].insert(0, "s_barrier")
                if s.instr == 3:
                    sh[0].insert(1, "s_memrealtime s[72:73]\ns_memtime s[74:75]\ns_waitcnt lgkmcnt(0)\ns_mov_b32 m0, s76\ns_nop 1\nv_writelane_b32 v46, s72, m0\nv_writelane_b32 v47, s74, m0\ns_add_u32 s76, s76, 1")
        else:
            sh[n - 1].append("s_waitcnt lgkmcnt(0)")
        if s.instr == 4 and do_qk:
            if b == 7: sh[1].append("s_memrealtime s[72:73]")
            if b == 0 and not first:
                sh[1].append("s_sub_u32 s75, s72, s74")
                sh[2].append("s_mov_b32 s74, s72")
                sh[4].append("s_cmp_gt_i32 s75, 310\ns_cselect_b32 s75, 1, 0\ns_cselect_b32 s79, s72, s77")
                sh[5].append("s_add_u32 s76, s76, s75")
                sh[6].append("s_min_u32 s77, s77, s79")
        if last:
            sh[31 if any("s_add" in x for x in sh[31]) else 30].append("s_sub_u32 s%d, s%d, 1" % (sCNT, sCNT))
        ms = None
        if do_pv and do_qk and s.msum_qb:
            place = {4: {1: 0, 3: 1, 5: 2, 7: 3}, 2: {1: 0, 5: 1}}[len(s.msum_qb)]
            if b in place: ms = s.msums(par, s.msum_qb[place[b]])
            if s.smpl == 2 and len(s.msum_qb) == 4:
                x = s.msums(par, b >> 1); k = len(x) // 2
                ms = x[k * (b & 1): k * (b & 1) + k]
        for pos in range(n):
            m = None
            if first: m = s.qk(buf, pos >> 2, pos & 3)
            else:
                qb, k = pos >> 3, pos & 7
                if k < 4:
                    if do_qk: m = s.qk(buf, qb, k)
                elif do_pv: m = s.pv(buf, par, qb, b, k - 4)
            if m: s.A(m)
            for o in sh[pos] + mem[pos] + va[pos]: s.A(o)
            if extra:
                for o in extra(pos): s.A(o)
            if s.pad and m: s.A("s_nop %d" % (s.pad - 1))
            if s.padn and not first and do_qk and (pos & 1) and (pos >> 1) % (16 // s.padn) == 0: s.A("s_nop 0")
            if ms is not None and pos == s.mspos:
                for x in ms: s.A(x)
        for o in flush: s.A(o)

    def dummy(s, n):
        for i in range(n):
            s.A("%s v[120:123], v[%d:%d], v[%d:%d], %s" % (MF, 104 + 4 * (i & 1), 107 + 4 * (i & 1), 112 + 4 * ((i >> 1) & 1), 115 + 4 * ((i >> 1) & 1), "v[120:123]" if i & 3 else "0"))
    def stamp(s, idx):
        if s.stamps: s.A("%s s[%d:%d]" % ("s_memrealtime" if s.stamps == 2 else "s_memtime", 48 + 2 * idx, 49 + 2 * idx))

    def build(s):
        A = s.A
        A("; @launch grid=(256,1,1) block=(256,1,1) lds=%d" % LDS_BYTES)
        A('.amdgcn_target "amdgcn-amd-amdhsa--gfx950"')
        A(".text")
        A(".globl %s\n.p2align 8\n.type %s,@function\n%s:" % (KN, KN, KN))
        A("s_cmp_ge_u32 s2, 256\ns_cbranch_scc1 L_end")
        if s.stamps: A("s_memrealtime s[40:41]\ns_memtime s[44:45]")
        A("s_load_dwordx4 s[24:27], s[0:1], 0\ns_load_dwordx4 s[28:31], s[0:1], 16")
        if s.stamps: A("s_load_dwordx2 s[64:65], s[0:1], 40")
        if s.warm:
            A("s_getpc_b64 s[36:37]\nL_pc:")
            A("v_lshlrev_b32 v1, 7, v0\nv_min_u32 v1, L_end-L_pc, v1\nglobal_load_dword v11, v1, s[36:37]")
        A("v_lshrrev_b32 v1, 6, v0\nv_and_b32 v0, 63, v0\ns_nop 0\nv_readfirstlane_b32 s%d, v1" % sW)
        A("v_lshrrev_b32 v20, 4, v0\nv_and_b32 v21, 15, v0")
        A("s_mul_i32 s%d, s%d, %d" % (sWL, sW, 4 * PITCH))
        if s.lin:
            A("s_lshl_b32 s%d, s%d, 12\nv_lshlrev_b32 v22, 4, v0\nv_add_u32 v22, s%d, v22" % (sT, sW, sT))
        else:
            A("v_lshlrev_b32 v22, 12, v20\nv_lshl_add_u32 v22, v21, 4, v22")
            A("s_lshr_b32 s%d, s%d, 1\ns_lshl_b32 s%d, s%d, 11\ns_and_b32 s%d, s%d, 1\ns_lshl_b32 s%d, s%d, 9\ns_add_u32 s%d, s%d, s%d" % (sT, sW, sT, sT, sT + 1, sW, sT + 1, sT + 1, sT, sT, sT + 1))
            A("v_add_u32 v22, s%d, v22" % sT)
        for i in range(4):
            goff = i * 1024 if s.lin else (4 * (i & 1) + (i >> 1)) * 256
            A("v_add_u32 v%d, %d, v22" % (vDMA + i, goff - PITCH * i + BIASB))
        A("s_lshl_b32 s%d, s%d, 14" % (sT, sW))
        A("v_lshlrev_b32 v23, 2, v20\nv_xor_b32 v23, v23, v21\nv_lshlrev_b32 v23, 4, v23\nv_lshl_add_u32 v23, v20, 8, v23\nv_add_u32 v%d, s%d, v23" % (vQA, sT))
        A("v_lshrrev_b32 v23, 3, v0\nv_and_b32 v24, 7, v0\nv_lshlrev_b32 v24, 4, v24\nv_lshl_add_u32 v23, v23, 8, v24\nv_add_u32 v%d, s%d, v23" % (vOA, sT))
        for qb in range(4): A("s_mov_b32 s%d, %d" % (sQB + qb, qb * 4096))
        A("s_waitcnt lgkmcnt(0)")
        hd = 2
        if s.hmap == 1:
            hd = 33; A("s_xor_b32 s33, s2, 1")
        if s.hmap == 2:
            hd = 33; A("s_and_b32 s33, s2, 7\ns_lshl_b32 s33, s33, 5\ns_lshr_b32 s36, s2, 3\ns_add_u32 s33, s33, s36")
        A("s_lshl_b32 s%d, s%d, 19" % (sT, hd))
        A("s_sub_u32 s26, s26, %d\ns_subb_u32 s27, s27, 0\ns_sub_u32 s28, s28, %d\ns_subb_u32 s29, s29, 0" % (BIASB, BIASB))
        A("s_add_u32 s%d, s26, s%d\ns_addc_u32 s%d, s27, 0\ns_mov_b32 s%d, %d\ns_mov_b32 s%d, 0x20000" % (sK, sT, sK + 1, sK + 2, 0x80000 + BIASB, sK + 3))
        A("s_add_u32 s%d, s28, s%d\ns_addc_u32 s%d, s29, 0\ns_mov_b32 s%d, %d\ns_mov_b32 s%d, 0x20000" % (sV, sT, sV + 1, sV + 2, 0x80000 + BIASB, sV + 3))
        A("s_lshl_b32 s%d, s%d, 16" % (sT, hd))
        A("s_add_u32 s%d, s24, s%d\ns_addc_u32 s%d, s25, 0\ns_mov_b32 s%d, 0x10000\ns_mov_b32 s%d, 0x20000" % (sQ, sT, sQ + 1, sQ + 2, sQ + 3))
        A("s_add_u32 s%d, s30, s%d\ns_addc_u32 s%d, s31, 0\ns_mov_b32 s%d, 0x10000\ns_mov_b32 s%d, 0x20000" % (sO, sT, sO + 1, sO + 2, sO + 3))
        A("s_mov_b32 s%d, 0" % sPASS)
        for qb in range(4): A("v_mov_b32 v%d, 0xff800000" % vM(qb))
        A("L_start:")
        A("s_mov_b32 s%d, 0\ns_mov_b32 s%d, 0" % (sSOK, sSOV))
        def group(isK, off, n=4):
            return [s.m0set(off), "s_nop 0"] + [s.dma(isK, i) for i in range(n)] + ([s.adv(isK)] if n == 4 else [])
        PERM = (0, 3, 1, 2)
        def qgroup(qb):
            out = []
            for i in range(4):
                out.append(["s_add_u32 m0, s%d, %d" % (sWL, VBASE + qb * SLOT + i * PITCH - PERM[i] * 1024), "s_nop 0",
                            "buffer_load_dwordx4 v%d, %s, s%d offen offset:%d %s lds" % (vQA, R("s", sQ, 4), sQB + qb, PERM[i] * 1024, s.qld)])
            return out
        def pieces(isK, off, n=4):
            out = [[s.dma(isK, i)] for i in range(n)]
            if n: out[0] = [s.m0set(off), "s_nop 0"] + out[0]
            if n == 4: out[3].append(s.adv(isK))
            return out
        Q = [("K0", p) for p in pieces(True, 0)]
        for qb in range(4): Q += [("Q%d" % qb, p) for p in qgroup(qb)]
        Q += [("K1", p) for p in pieces(True, SLOT)] + [("K2", p) for p in pieces(True, 2 * SLOT)] + [("V0", p) for p in pieces(False, VBASE, s.npre)]
        st = {"n": 0}
        def issue(k=1):
            for _ in range(k):
                if st["n"] < len(Q):
                    if s.lim and st["n"] >= s.lim: A("s_waitcnt vmcnt(%d)" % (s.lim - 1))
                    for x in Q[st["n"]][1]: A(x)
                    st["n"] += 1
        def waitfor(tag):
            last = max(i for i, x in enumerate(Q) if x[0] == tag)
            if st["n"] <= last: issue(last + 1 - st["n"])
            A("s_waitcnt vmcnt(%d)" % (st["n"] - 1 - last))
        issue(s.nfirst)
        A("v_and_b32 v22, 3, v0\nv_bfe_u32 v23, v0, 2, 1\nv_lshl_add_u32 v22, v22, 1, v23\nv_and_b32 v23, 8, v0\nv_add_u32 v22, v22, v23")
        A("v_mul_u32_u24 v22, %d, v22\nv_lshrrev_b32 v23, 4, v0\nv_lshl_add_u32 v%d, v23, 4, v22" % (PITCH, vK))
        A("v_bfe_u32 v22, v0, 2, 2\nv_bfe_u32 v23, v0, 4, 1\nv_lshl_add_u32 v22, v22, 1, v23\nv_lshrrev_b32 v23, 5, v0\nv_lshl_add_u32 v22, v23, 3, v22")
        A("v_mul_u32_u24 v22, %d, v22\nv_and_b32 v23, 3, v0\nv_lshl_add_u32 v22, v23, 3, v22\nv_add_u32 v%d, %d, v22" % (PITCH, vV, VBASE))
        A("v_bfe_u32 v22, v0, 2, 2\nv_lshlrev_b32 v22, 1, v22\nv_mov_b32 v23, 0x78\nv_lshrrev_b32 v22, v22, v23\nv_and_b32 v22, 3, v22")
        A("v_mul_u32_u24 v22, %d, v22\nv_and_b32 v23, 3, v0\nv_lshl_add_u32 v22, v23, 8, v22\nv_lshrrev_b32 v24, 4, v0\nv_lshl_add_u32 v22, v24, 4, v22" % PITCH)
        A("v_add_u32 v22, s%d, v22\nv_add_u32 v22, %d, v22" % (sWL, VBASE))
        for t in range(4): A("v_xor_b32 v24, %d, v23\nv_lshl_add_u32 v%d, v24, 6, v22" % (t, vQR + t))
        A("v_and_b32 v%d, 15, v0\nv_lshrrev_b32 v%d, 5, v0\nv_xor_b32 v%d, v%d, v%d\nv_lshlrev_b32 v%d, 4, v%d" % (vE, vE + 1, vE + 1, vE + 1, vE, vE + 1, vE + 1))
        A("v_lshl_add_u32 v%d, v%d, 8, v%d\nv_bfe_u32 v%d, v0, 4, 1\nv_lshl_add_u32 v%d, v%d, 3, v%d" % (vE + 1, vE, vE + 1, vE, vE + 1, vE, vE + 1))
        for db in range(8): A("v_xor_b32 v%d, %d, v%d\nv_add_u32 v%d, s%d, v%d" % (vW + db, db * 32, vE + 1, vW + db, sWL, vW + db))
        A("v_lshrrev_b32 v%d, 3, v0\nv_and_b32 v%d, 7, v0\nv_xor_b32 v%d, v%d, v%d\nv_lshlrev_b32 v%d, 4, v%d" % (vE, vE + 1, vE + 1, vE + 1, vE, vE + 1, vE + 1))
        A("v_lshl_add_u32 v%d, v%d, 8, v%d\nv_add_u32 v%d, s%d, v%d" % (vE + 1, vE, vE + 1, vOR, sWL, vE + 1))
        c = 1.4426950408889634 / (128.0 ** 0.5)
        A("s_mov_b32 s%d, %s\ns_mov_b32 s%d, %s" % (sC, f32(c), sC + 1, f32(c)))
        A("s_mov_b32 s%d, 7" % sCNT)
        A("s_mov_b32 s%d, 0x07060302" % sSEL)
        if s.sp:
            A("v_and_b32 v22, 3, v0\nv_cmp_gt_u32 vcc, 2, v22\nv_mov_b32 v23, 0x3f803f80\nv_and_b32 v22, 1, v0\nv_cndmask_b32 v%d, 0, v23, vcc" % vONE)
            A("v_cmp_eq_u32 vcc, 0, v22\nv_mov_b32 v23, 0x44444444\nv_mov_b32 v24, 0xeeeeeeee\nv_cndmask_b32 v%d, v24, v23, vcc" % vIDX)
        elif s.ones4:
            A("v_and_b32 v22, 3, v0\nv_cmp_eq_u32 vcc, 0, v22\nv_mov_b32 v23, 0x3f803f80\ns_nop 0\nv_cndmask_b32 v%d, 0, v23, vcc" % vONE)
        else:
            A("v_mov_b32 v%d, 0x3f803f80" % vONE)
        for i in range(1, 4): A("v_mov_b32 v%d, v%d" % (vONE + i, vONE))
        for i in range(128): A("v_accvgpr_write_b32 a%d, 0" % i)
        for i in range(16): A("v_mov_b32 v%d, 0" % (vL(0) + i))
        for qb in range(4): A("v_mov_b32 v%d, 0" % vA(qb))
        s.stamp(0)
        if s.pre0 or s.pre1 or s.pre2:
            A("s_mov_b32 s85, 0x9e3779b1\nv_add_u32 v100, 1, v0")
            for i in range(16):
                A("v_mul_lo_u32 v100, v100, s85\nv_and_b32 v%d, 0xbfffbfff, v100\nv_or_b32 v%d, 0x3c003c00, v%d" % (104 + i, 104 + i, 104 + i))
            s.dummy(s.pre0)
        issue(s.nsecond - st["n"])
        for qb in range(4):
            if qb and s.pre1: s.dummy(s.pre1)
            waitfor("Q%d" % qb)
            if qb == 0: s.stamp(1)
            for t in range(4): A("ds_read_b128 %s, v%d offset:%d" % (R("v", 128 + 4 * t, 4), vQR + t, qb * SLOT))
            if qb == 0:
                A("s_barrier")
                for t in range(4): A(s.kread(0, 0, 0, t))
                if s.prepass == 2:
                    for t in range(4): A(s.kread(1, 0, 1, t))
            for f in range(4):
                b = 128 + 4 * f
                if st["n"] < len(Q) and (Q[st["n"]][0] != "V0" or qb >= 1): issue(1)
                A("s_waitcnt lgkmcnt(%d)" % (3 - f + (4 * s.prepass if qb == 0 else 0)))
                for i in range(4):
                    A("v_lshlrev_b32 v%d, 16, v%d\nv_and_b32 v%d, 0xffff0000, v%d" % (vT + 2 * i, b + i, vT + 2 * i + 1, b + i))
                for i in range(4):
                    A("v_pk_mul_f32 %s, %s, %s" % (R("v", vT + 2 * i, 2), R("v", vT + 2 * i, 2), R("s", sC, 2)))
                for i in range(4):
                    A("v_cvt_pk_bf16_f32 v%d, v%d, v%d" % (vT + 8 + i, vT + 2 * i, vT + 2 * i + 1))
                for i in range(4):
                    A("v_accvgpr_write_b32 a%d, v%d" % (aQ(qb, f) + i, vT + 8 + i))
        issue(len(Q))
        if s.otlb:
            A("buffer_load_dword v10, v%d, %s, 0 offen" % (vOA, R("s", sO, 4)))
        s.stamp(2)
        A("s_waitcnt lgkmcnt(0)")
        for rep in range(s.prepass):
            for qb in range(4):
                for t in range(4): A(s.qk(rep, qb, t, zero=True))
            A("s_nop 4")
            for qb in range(4):
                S = vS(qb)
                A("v_max3_f32 v%d, v%d, v%d, v%d" % (vM(qb), vM(qb), S, S + 1))
            for qb in range(4):
                S = vS(qb)
                A("v_max3_f32 v%d, v%d, v%d, v%d" % (vM(qb), vM(qb), S + 2, S + 3))
        for sw in ("v_permlane32_swap_b32", "v_permlane16_swap_b32"):
            for qb in range(4): A("v_mov_b32 v%d, v%d" % (vT + qb, vM(qb)))
            for qb in range(4): A("%s v%d, v%d" % (sw, vT + qb, vM(qb)))
            for qb in range(4): A("v_max_f32 v%d, v%d, v%d" % (vM(qb), vM(qb), vT + qb))
        A("s_mov_b32 s%d, %s" % (sT, f32(-s.bias)))
        for qb in range(4): A("v_sub_f32 v%d, s%d, v%d" % (vNM(qb), sT, vM(qb)))
        for qb in range(4):
            for i in range(1, 4): A("v_mov_b32 v%d, v%d" % (vNM(qb) + i, vNM(qb)))
        if s.novalu:
            for i in range(128): A("v_accvgpr_read_b32 v%d, a%d" % (128 + i, 128 + (i & 63)))
        if s.nolds:
            for t in range(4): A(s.kread(1, 0, 1, t))
            for bf in range(2):
                for r in range(8): A(s.vread(bf, -4, bf, r).replace("offset:-", "offset:"))
            A("s_waitcnt lgkmcnt(0)")
        if s.instr == 3: A("s_mov_b32 s76, 0")
        if s.instr == 4: A("s_mov_b32 s76, 0\ns_add_u32 s77, s40, 7000\ns_memrealtime s[74:75]\ns_waitcnt lgkmcnt(0)\ns_add_u32 s74, s74, 200\ns_mov_b32 s78, 0")
        A("s_nop 0")
        s.stamp(3)
        n0 = len(s.lines)
        for b in range(8): s.block(1, b, do_pv=False, first=True)
        s.lines = hazards.pad(s.lines)
        s.stamp(4)
        A(".p2align 6")
        A("L_loop:")
        n0 = len(s.lines)
        for b in range(8): s.block(0, b, last=(b == 7))
        A("s_cbranch_scc1 L_tail")
        n1 = len(s.lines)
        for b in range(8): s.block(1, b)
        body = s.lines[n0:]
        A("s_branch L_loop")
        A("L_tail:")
        n2 = len(s.lines)
        s.stamp(5)
        s.block(1, 0, do_qk=False)
        A("s_waitcnt vmcnt(0)")
        for qb in s.msum_qb:
            for x in s.msums(1, qb): A(x)
        for qb in s.add_qb:
            A("v_mov_b32 v%d, v%d" % (vL(qb), vA(qb)))
        if s.add_qb:
            for sw in ("v_permlane32_swap_b32", "v_permlane16_swap_b32"):
                for qb in s.add_qb: A("v_mov_b32 v%d, v%d" % (vT + qb, vL(qb)))
                A("s_nop 1")
                for qb in s.add_qb: A("%s v%d, v%d" % (sw, vT + qb, vL(qb)))
                A("s_nop 1")
                for qb in s.add_qb: A("v_add_f32 v%d, v%d, v%d" % (vL(qb), vL(qb), vT + qb))
        if s.sp:
            for qb in s.msum_qb: A("v_add_f32 v%d, v%d, v%d" % (vL(qb), vL(qb), vL(qb) + 1))
        A("s_mov_b32 s%d, %s" % (sT, f32(s.thr)))
        for qb in range(4): A("v_rcp_f32 v%d, v%d" % (vT + qb, vL(qb)))
        A("v_add_f32 v%d, v%d, v%d\nv_add_f32 v%d, v%d, v%d" % (vT + 5, vL(0), vL(1), vT + 6, vL(2), vL(3)))
        A("v_add_f32 v%d, v%d, v%d" % (vT + 5, vT + 5, vT + 6))
        A("v_cmp_nge_f32 vcc, s%d, v%d" % (sT, vT + 5))
        def conv(qb, db, k):
            tb = vE + 6 * (k % 4)
            o = aO(qb, db)
            ops = ["v_accvgpr_read_b32 v%d, a%d" % (tb + i, o + i) for i in range(4)]
            ops += ["v_mul_f32 v%d, v%d, v%d" % (tb + i, tb + i, vT + qb) for i in range(4)]
            ops += ["v_cvt_pk_bf16_f32 v%d, v%d, v%d" % (tb + 4 + i, tb + 2 * i, tb + 2 * i + 1) for i in range(2)]
            ops += ["ds_write_b64 v%d, %s offset:%d" % (vW + db, R("v", tb + 4, 2), qb * SLOT)]
            return ops
        def oread(h, qb, i):
            return "ds_read_b128 %s, v%d offset:%d" % (R("v", 128 + 32 * h + 8 * qb + 4 * i, 4), vOR, qb * SLOT + i * 2048 + ((h ^ i) * 128))
        def ostore(h, qb, i):
            return "buffer_store_dwordx4 %s, v%d, %s, s%d offen offset:%d %s" % (R("v", 128 + 32 * h + 8 * qb + 4 * i, 4), vOA, R("s", sO, 4), sQB + qb, i * 2048 + h * 128, s.st)
        k = 0
        for b in range(1, 8):
            q = []
            for qb in range(4):
                q.append(conv(qb, b - 1, k)); k += 1
            def extra(pos, q=q, b=b):
                qb, kk = pos >> 3, pos & 7
                if kk < 4: return []
                ops = q[qb]
                out = [ops[0:3], ops[3:6], ops[6:9], ops[9:11]][kk - 4]
                if b == 5 and kk in (4, 6): out = [oread(0, qb, (kk - 4) >> 1)] + out
                if b == 6 and kk in (4, 6): out = [ostore(0, qb, (kk - 4) >> 1)] + out
                return out
            s.block(1, b, do_qk=False, extra=extra)
        for qb in range(4):
            for x in conv(qb, 7, k): A(x)
            k += 1
            if qb:
                A("s_waitcnt lgkmcnt(1)")
                for i in range(2): A(ostore(1, qb - 1, i))
            for i in range(2): A(oread(1, qb, i))
        A("s_waitcnt lgkmcnt(0)")
        for i in range(2): A(ostore(1, 3, i))
        pre = s.lines[n0:n1]
        s.lines[n2:] = hazards.pad(pre + s.lines[n2:], start=len(pre))[len(pre):]
        s.stamp(6)
        A("s_cmp_lg_u32 s%d, 0\ns_cbranch_scc1 L_fin" % sPASS)
        A("s_cmp_lg_u64 vcc, 0\ns_cselect_b32 s%d, 1, 0" % sT)
        A("s_lshl_b32 s%d, s%d, 2\ns_add_u32 s%d, s%d, %d" % (sT + 1, sW, sT + 1, sT + 1, FLAG_OFF))
        A("v_mov_b32 v%d, s%d\nv_mov_b32 v%d, s%d\nv_mov_b32 v%d, %d" % (vT, sT, vT + 1, sT + 1, vT + 2, FLAG_OFF))
        A("ds_write_b32 v%d, v%d\ns_waitcnt lgkmcnt(0)\ns_barrier" % (vT + 1, vT))
        A("ds_read_b128 %s, v%d\ns_waitcnt lgkmcnt(0)" % (R("v", vT + 8, 4), vT + 2))
        A("v_or3_b32 v%d, v%d, v%d, v%d\nv_or_b32 v%d, v%d, v%d\ns_nop 1" % (vT, vT + 8, vT + 9, vT + 10, vT, vT, vT + 11))
        A("v_readfirstlane_b32 s%d, v%d\ns_nop 3\ns_cmp_eq_u32 s%d, 0\ns_cbranch_scc1 L_fin" % (sT, vT, sT))
        A("s_mov_b32 s%d, 1\ns_mov_b32 s%d, 0" % (sPASS, sSOK))
        A("s_waitcnt vmcnt(0)")
        A("L_maxpass:")
        A("s_barrier")
        for x in group(True, 0): A(x)
        A("s_waitcnt vmcnt(0)\ns_barrier")
        for j in range(4):
            for t in range(4): A(s.kread(0, 0, j, t))
            A("s_waitcnt lgkmcnt(0)")
            for qb in range(4):
                for t in range(4): A(s.qk(0, qb, t, zero=True))
            A("s_nop 7")
            for qb in range(4):
                S = vS(qb)
                A("v_max3_f32 v%d, v%d, v%d, v%d" % (vM(qb), vM(qb), S, S + 1))
                A("v_max3_f32 v%d, v%d, v%d, v%d" % (vM(qb), vM(qb), S + 2, S + 3))
        A("s_cmp_lt_u32 s%d, 0x80000\ns_cbranch_scc1 L_maxpass" % sSOK)
        A("s_barrier\ns_branch L_start")
        A("L_fin:")
        if s.dbg == -1:
            A("s_waitcnt vmcnt(0)")
            A("s_memrealtime s[42:43]\ns_memtime s[46:47]\ns_load_dwordx2 s[64:65], s[0:1], 32\ns_waitcnt lgkmcnt(0)")
            A("s_mov_b32 s68, s64\ns_mov_b32 s69, s65\ns_mov_b32 s70, 256\ns_mov_b32 s71, 0x20000")
            A("s_cmp_ge_u32 s2, 8\ns_cbranch_scc1 L_end\ns_cmp_lg_u32 s3, 0\ns_cbranch_scc1 L_end")
            A("s_lshl_b32 s36, s2, 2\nv_mov_b32 v3, s36\ns_mov_b64 exec, 1")
            A("s_sub_u32 s36, s42, s40\nv_mov_b32 v8, s36\ns_sub_u32 s36, s46, s44\nv_mov_b32 v9, s36")
            A("buffer_store_dword v8, v3, s[68:71], 0 offen\nbuffer_store_dword v9, v3, s[68:71], 0 offen offset:32")
        elif s.probe is not None:
            A("s_waitcnt vmcnt(0)")
            A("s_memrealtime s[42:43]\ns_memtime s[46:47]\ns_waitcnt lgkmcnt(0)")
            A("s_cmp_lg_u32 s2, %d\ns_cbranch_scc1 L_end" % s.probe[3])
            a, b, div = s.probe[:3]
            A("s_sub_u32 s36, s%d, s%d" % (a, b))
            if div == 10: A("s_mul_hi_u32 s36, s36, 429496730")
            if div == 0: A("s_mov_b32 s36, 0")
            if div == -1: A("s_mul_i32 s36, s36, 500")
            A("s_add_u32 s36, s36, 15000\ns_add_u32 s36, s36, s40")
            A("L_spin:\ns_sleep 4\ns_memrealtime s[42:43]\ns_waitcnt lgkmcnt(0)\ns_sub_u32 s37, s42, s36\ns_cmp_lt_i32 s37, 0\ns_cbranch_scc1 L_spin")
        elif s.stamps:
            A("s_waitcnt vmcnt(0)")
            A("s_memrealtime s[42:43]\ns_memtime s[46:47]\ns_getreg_b32 s62, hwreg(HW_REG_XCC_ID)\ns_mov_b32 s63, 0\ns_waitcnt lgkmcnt(0)")
            A("s_mov_b32 s68, s64\ns_mov_b32 s69, s65\ns_mov_b32 s70, 0x100000\ns_mov_b32 s71, 0x20000")
            A("s_lshl_b32 s37, s2, 2\ns_add_u32 s37, s37, s3\ns_mul_i32 s37, s37, 96\nv_mov_b32 v3, s37")
            if s.instr == 3:
                A("s_lshl_b32 s38, s2, 2\ns_add_u32 s38, s38, s3\ns_lshl_b32 s38, s38, 9\ns_add_u32 s38, s38, 0x20000\nv_lshlrev_b32 v4, 3, v0\nv_add_u32 v4, s38, v4")
                A("buffer_store_dwordx2 v[46:47], v4, s[68:71], 0 offen")
            for j, r in enumerate([40, 42, 44, 46] + list(range(48, 64, 2))):
                A("v_mov_b32 v8, s%d\nv_mov_b32 v9, s%d" % (r, r + 1))
                A("buffer_store_dwordx2 v[8:9], v3, s[68:71], 0 offen offset:%d" % (j * 8))
                A("s_nop 1")
        A("L_end:\ns_endpgm")
        A('.section .rodata,"a"\n.p2align 6\n.amdhsa_kernel %s' % KN)
        A("  .amdhsa_next_free_vgpr 512\n  .amdhsa_next_free_sgpr 102\n  .amdhsa_accum_offset 256\n  .amdhsa_group_segment_fixed_size 0\n  .amdhsa_kernarg_size 48\n  .amdhsa_user_sgpr_count 2\n  .amdhsa_user_sgpr_kernarg_segment_ptr 1\n  .amdhsa_system_sgpr_workgroup_id_x 1\n  .amdhsa_float_denorm_mode_32 3\n.end_amdhsa_kernel")
        errs = hazards.check(s.lines[:n2], "linear") + hazards.check(body + body, "loop") + hazards.check(s.lines[n0:n1] + s.lines[n2:], "tail")
        return "\n".join(s.lines) + "\n", errs

def gen(name, **kw):
    txt, errs = Gen(**kw).build()
    open(name, "w").write(txt)
    return errs

if __name__ == "__main__":
    import ast
    name = sys.argv[1]
    kw = {}
    for a in sys.argv[2:]:
        k, v = a.split("=", 1)
        try: kw[k] = ast.literal_eval(v)
        except Exception: kw[k] = v
    e = gen(name, **kw)
    print(name, "hazards:", len(e))
```

```python
import re
TRANS = ("v_exp_f32", "v_log_f32", "v_rcp_f32", "v_rsq_f32", "v_sqrt_f32", "v_sin_f32", "v_cos_f32")
def regs(tok):
    tok = tok.strip()
    tok = tok.lstrip("-")
    if tok.startswith("abs("): tok = tok[4:-1]
    if tok.startswith("|"): tok = tok.strip("|")
    m = re.fullmatch(r"([vas])(\d+)", tok)
    if m: return {(m.group(1), int(m.group(2)))}
    m = re.fullmatch(r"([vas])\[(\d+):(\d+)\]", tok)
    if m: return {(m.group(1), i) for i in range(int(m.group(2)), int(m.group(3)) + 1)}
    if tok == "vcc": return {("s", "vcc")}
    if tok == "m0": return {("s", "m0")}
    if tok == "exec": return {("s", "exec")}
    return set()
class I:
    def __init__(s, text):
        s.text = text
        t = text.split(";")[0].strip()
        parts = t.split(None, 1)
        s.op = parts[0] if parts else ""
        ops = []
        if len(parts) > 1:
            ops = [x.strip() for x in parts[1].split(",")]
            if ops:
                last = ops[-1].split()
                ops[-1] = last[0] if last else ""
                s.mods = last[1:]
        else:
            s.mods = []
        s.ops = ops
        op = s.op
        s.kind = "other"
        s.w = set(); s.r = set(); s.a = set(); s.b = set(); s.c = set(); s.states = 1
        if op.startswith("v_mfma"):
            s.kind = "mfma"; s.w = regs(ops[0]); s.a = regs(ops[1]); s.b = regs(ops[2]); s.c = regs(ops[3]); s.r = s.a | s.b | s.c
            s.passes = 8 if "32x32" in op else 4
        elif op.startswith("v_smfmac"):
            s.kind = "mfma"; s.w = regs(ops[0]); s.a = regs(ops[1]) | regs(ops[3]); s.b = regs(ops[2]); s.c = regs(ops[0]); s.r = s.a | s.b | s.c
            s.passes = 8
        elif op.startswith("v_permlane"):
            s.kind = "valu"; s.w = regs(ops[0]) | regs(ops[1]); s.r = set(s.w)
        elif op.startswith("v_cmp"):
            s.kind = "valu"; s.w = regs(ops[0]); s.r = set().union(*[regs(x) for x in ops[1:]])
        elif op.startswith("v_"):
            s.kind = "valu"; s.w = regs(ops[0]); s.r = set().union(*[regs(x) for x in ops[1:]]) if len(ops) > 1 else set()
            if op.startswith("v_fmac") or op.startswith("v_dot2c"): s.r |= s.w
            if op.startswith("v_cndmask") and len(ops) == 3: s.r |= {("s", "vcc")}
        elif op.startswith("ds_read"):
            s.kind = "dsr"; s.w = regs(ops[0]); s.r = regs(ops[1])
        elif op.startswith("ds_write"):
            s.kind = "dsw"; s.r = set().union(*[regs(x) for x in ops])
        elif op.startswith("buffer_load") or op.startswith("global_load"):
            if "lds" in s.mods:
                s.kind = "dma"; s.r = set().union(*[regs(x) for x in ops]) | {("s", "m0")}
            else:
                s.kind = "vload"; s.w = regs(ops[0]); s.r = set().union(*[regs(x) for x in ops[1:]])
        elif op.startswith("buffer_store") or op.startswith("global_store"):
            s.kind = "vstore"; s.r = set().union(*[regs(x) for x in ops]); s.data = regs(ops[0]) if op.startswith("buffer") else regs(ops[1])
        elif op == "s_nop":
            s.kind = "nop"; s.states = int(ops[0], 0) + 1
        elif op == "s_waitcnt":
            s.kind = "wait"
            m = re.search(r"lgkmcnt\((\d+)\)", t); s.lgkm = int(m.group(1)) if m else None
            m = re.search(r"vmcnt\((\d+)\)", t); s.vm = int(m.group(1)) if m else None
        elif op.startswith("s_load") or op.startswith("s_memtime") or op.startswith("s_memrealtime"):
            s.kind = "smem"; s.w = regs(ops[0])
        elif op.startswith("s_"):
            s.kind = "salu"
            if op.startswith("s_cmp") or op.startswith("s_cbranch") or op in ("s_barrier", "s_branch", "s_endpgm", "s_setprio"):
                s.r = set().union(*[regs(x) for x in ops]) if ops else set()
            else:
                s.w = regs(ops[0]); s.r = set().union(*[regs(x) for x in ops[1:]]) if len(ops) > 1 else set()
        s.trans = any(op.startswith(x) for x in TRANS)

def isins(x):
    x = x.strip()
    return not (not x or x.startswith(";") or x.startswith(".") or x.split(";")[0].strip().endswith(":"))

def pad(lines, start=0):
    head = lines[:start]
    flat = [x for l in lines[start:] for x in l.split("\n")]
    nh = sum(1 for l in head for x in l.split("\n") if isins(x))
    while True:
        short = []
        check(head + flat, verbose=False, short=short)
        short = [x for x in short if x[0] >= nh]
        if not short: break
        j = min(x[0] for x in short)
        need = max(x[1] for x in short if x[0] == j)
        k = nh
        for pos, x in enumerate(flat):
            if isins(x):
                if k == j:
                    flat.insert(pos, "s_nop %d" % (need - 1)); break
                k += 1
    return head + flat

def autowait(lines):
    out = []; pend = []; lastm = None; since = 0
    for l in lines:
        for x in l.split("\n"):
            if not isins(x): out.append(x); continue
            c = I(x.strip())
            use = c.r | c.w
            hit = [k for k, rg in enumerate(pend) if rg & use]
            if hit:
                k = max(hit)
                n = len(pend) - 1 - k
                if c.kind == "mfma" and lastm is not None and n - since >= 0 and not (lastm + 1 < len(out) and out[lastm + 1].startswith("s_")):
                    out.insert(lastm + 1, "s_waitcnt lgkmcnt(%d)" % min(15, n - since))
                else:
                    out.append("s_waitcnt lgkmcnt(%d)" % min(15, n))
                pend = pend[k + 1:]
            if c.kind == "wait" and c.lgkm is not None:
                while len(pend) > c.lgkm: pend.pop(0)
            if c.kind == "dsr": pend.append(c.w); since += 1
            elif c.kind == "dsw": pend.append(set()); since += 1
            out.append(x)
            if c.kind == "mfma": lastm = len(out) - 1; since = 0
    return out

_cache = {}
def check(lines, name="", verbose=True, short=None):
    ins = []
    for l in lines:
        for x in l.split("\n"):
            x = x.strip()
            if not isins(x): continue
            if x not in _cache: _cache[x] = I(x)
            ins.append(_cache[x])
    errs = []
    n = len(ins)
    for i, p in enumerate(ins):
        dist = 0
        for j in range(i + 1, min(n, i + 24)):
            c = ins[j]
            need = 0; why = ""
            if p.kind == "mfma":
                big = 12 if p.passes == 8 else 8
                if c.kind == "mfma":
                    if p.w & (c.a | c.b): need, why = big, "mfma D->A/B"
                    elif p.w & c.c and not (p.w == c.c and p.passes == c.passes): need, why = big - 2, "mfma D->C partial"
                elif c.kind in ("valu", "dsr", "dsw", "vload", "vstore", "dma"):
                    if p.w & (c.r | c.w): need, why = big, "mfma D->valu/mem"
                    elif c.kind == "valu" and p.c & c.w: need, why = (7 if p.passes == 8 else 3), "mfma C WAR"
            if p.kind == "valu":
                vw = {x for x in p.w if x[0] in "va"}
                sw = {x for x in p.w if x[0] == "s"}
                if c.kind == "mfma" and vw & c.r: need, why = max(need, 2), "valu->mfma"
                if c.op.startswith("v_permlane") and vw & c.r: need, why = max(need, 2), "valu->permlane"
                if (c.op.startswith("v_readfirstlane") or c.op.startswith("v_readlane")) and vw & c.r: need, why = max(need, 1), "valu->readlane"
                if p.trans and c.kind == "valu" and not c.trans and vw & c.r: need, why = max(need, 1), "trans->valu"
                if "dpp" in c.text or "row_" in c.text or "quad_perm" in c.text:
                    if vw & c.r: need, why = max(need, 2), "valu->dpp"
                if sw and c.kind in ("vload", "vstore", "dma") and sw & c.r: need, why = max(need, 5), "valu sgpr->vmem"
                if sw and c.kind == "valu" and sw & c.r: need, why = max(need, 2), "valu sgpr->valu"
            if p.kind == "salu" and ("s", "m0") in p.w and c.kind == "dma": need, why = 1, "m0->dma"
            if p.kind == "vstore" and ("x4" in p.op or "x3" in p.op) and p.data & c.w: need, why = 2, "store data WAR"
            if need > dist and short is not None: short.append((j, need - dist))
            if need > dist:
                errs.append("%s: %s need %d have %d:\n   [%d] %s\n   [%d] %s" % (name, why, need, dist, i, p.text, j, c.text))
            dist += c.states
            if dist >= 12: break
    if short is not None: return errs
    pend = []
    for i, c in enumerate(ins):
        if c.kind == "wait" and c.lgkm is not None:
            while len(pend) > c.lgkm: pend.pop(0)
        use = c.r | c.w
        for (k, rg) in pend:
            if rg & use:
                errs.append("%s: lds result used before wait:\n   [%d] %s\n   [%d] %s" % (name, k, ins[k].text, i, c.text))
        if c.kind == "dsr": pend.append((i, c.w))
        elif c.kind == "dsw": pend.append((i, set()))
        elif c.kind == "smem": pend.append((i, c.w))
    pend = []
    for i, c in enumerate(ins):
        if c.kind == "wait" and c.vm is not None:
            while len(pend) > c.vm: pend.pop(0)
        use = c.r | c.w
        for (k, rg) in pend:
            if rg & use:
                errs.append("%s: vmem result used before wait:\n   [%d] %s\n   [%d] %s" % (name, k, ins[k].text, i, c.text))
        if c.kind == "vload": pend.append((i, c.w))
        elif c.kind in ("dma", "vstore"): pend.append((i, set()))
    if verbose:
        for e in errs[:6]: print(e)
        if errs: print("%s: %d hazard problems" % (name, len(errs)))
    return errs
```

```python
import sys, struct
import hazards

KN = "standalone__mha_softmax__near_ridge_kernel"
PITCH = 1056
SLOT = 16 * PITCH
VBASE = 4 * SLOT
FLAG_OFF = 8 * SLOT
LDS_BYTES = 8 * SLOT + 64
BIASB = 1888

def f32(x): return "0x%08x" % struct.unpack("<I", struct.pack("<f", x))[0]
def R(p, b, n): return "%s[%d:%d]" % (p, b, b + n - 1)

vDMA = 2
vK = 6
vV = 7
vQA = 8
vOA = 9
def vA(qb): return 12 + qb
def vM(qb): return 16 + qb
vT = 20
def vS(qb): return 48 + 4 * qb
def vNM(qb): return 64 + 4 * qb
vONE = 80
def vL(qb): return 84 + 4 * qb
vE = 100
vQR = 40
vW = 32
vOR = 44
def vP(buf, qb, ks): return 128 + buf * 64 + qb * 16 + ks * 4
def aO(qb, db): return (qb * 8 + db) * 4
def aQ(qb, t): return 128 + (qb * 4 + t) * 4
def aK(buf, t): return 192 + buf * 16 + 4 * t
def aV(buf, ks): return 224 + buf * 16 + 4 * ks

sW = 3
sQ, sK, sV, sO = 4, 8, 12, 16
sSOK, sSOV = 20, 21
sWL = 22
sCNT = 23
sPASS = 32
sC = 34
sT = 36
sSEL = 84
vIDX = 45
sQB = 80
MF = "v_mfma_f32_16x16x32_bf16"

class Gen:
    def __init__(s, ld="nt", qld="nt", st="nt", stamps=0, bias=10.0, thr=2.0 ** 40, summode="sp", nodma=0, nobar=0, novalu=0, nolds=0,
                 warm=1, instr=0, probe=None, dbg=None, dmagaps=None, pad=0, otlb=8, ones4=1, prepass=1, mspos=23, nfirst=12, nsecond=16, hmap=0, lim=0, lim1=0, padn=0, perm=0, smpl=1, lim2=0, share=(), latev=0, pre0=0, pre1=0, pre2=0, lin=1, dist=0, s0=-1, npre=None, fcnt=None, vtlb=0, newtail=1, nq=(4, 4, 4, 4), rot=0, tst=0, nost=0):
        s.__dict__.update(locals())
        s.lines = []
        s.msum_qb = {"mfma": (0, 1, 2, 3), "hybrid": (0, 2), "valu": (), "sp": (0, 1, 2, 3), "sphy": (0, 2)}[summode]
        s.sp = summode.startswith("sp")
        s.dmagaps = {1: (24,), 2: (24, 28), 3: (24, 26, 28), 4: (24, 26, 28, 30)}
        if dmagaps: s.dmagaps[len(dmagaps)] = dmagaps
        s.vm1 = 2 * (3 - s0)
        s.vm2 = 2 * (7 - s0) - 12
        if npre is None: s.npre = -2 * s0
        if fcnt is None:
            rest = 2 * (7 - s0) - s.npre
            s.fcnt = [rest // 7 + (1 if i < rest % 7 else 0) for i in range(7)]
        assert sum(s.fcnt) + s.npre == 2 * (7 - s0) and max(s.fcnt) <= 4
        s.add_qb = tuple(q for q in range(4) if q not in s.msum_qb)
    def A(s, x): s.lines.append(x)

    def m0set(s, lds_off): return "s_add_u32 m0, s%d, %d" % (sWL, lds_off)
    def dma(s, isK, i):
        return "buffer_load_dwordx4 v%d, %s, s%d offen offset:%d %s lds" % (vDMA + i, R("s", sK if isK else sV, 4), sSOK if isK else sSOV, i * PITCH, s.ld)
    def adv(s, isK):
        so = sSOK if isK else sSOV
        if s.rot: return "s_add_u32 s%d, s%d, 0x4000\ns_and_b32 s%d, s%d, 0x7ffff" % (so, so, so, so)
        return "s_add_u32 s%d, s%d, 0x4000" % (so, so)
    def kread(s, buf, slot, j, t):
        return "ds_read_b128 %s, v%d offset:%d" % (R("a", aK(buf, t), 4), vK, slot * SLOT + j * 256 + t * 64)
    def vread(s, buf, slot0, db, r):
        ks, u = r >> 1, r & 1
        return "ds_read_b64_tr_b16 %s, v%d offset:%d" % (R("a", aV(buf, ks) + 2 * u, 2), vV, (slot0 + (ks >> 1)) * SLOT + (2 * (ks & 1) + u) * 256 + db * 32)
    def qk(s, buf, qb, t, zero=False):
        c = R("v", vS(qb), 4) if t else ("0" if zero else R("v", vNM(qb), 4))
        return "%s %s, %s, %s, %s" % (MF, R("v", vS(qb), 4), R("a", aK(buf, t), 4), R("a", aQ(qb, t), 4), c)
    def pv(s, buf, pbuf, qb, db, ks):
        o = R("a", aO(qb, db), 4)
        return "%s %s, %s, %s, %s" % (MF, o, R("a", aV(buf, ks), 4), R("v", vP(pbuf, qb, ks), 4), o)
    def msum(s, pbuf, qb, ks):
        o = R("v", vL(qb), 4)
        return "%s %s, %s, %s, %s" % (MF, o, R("v", vONE, 4), R("v", vP(pbuf, qb, ks), 4), o)

    def msums(s, pbuf, qb):
        if not s.sp: return [s.msum(pbuf, qb, ks) for ks in range(4)]
        return ["v_smfmac_f32_16x16x64_bf16 %s, %s, %s, v%d" % (R("v", vL(qb), 4), R("v", vONE, 4), R("v", vP(pbuf, qb, 2 * h), 8), vIDX) for h in range(2)]

    def sm_table(s, first=False):
        t = []
        if first:
            for qb in range(4):
                for e in range(4):
                    t.append((4 * qb + 6 + e, "exp", qb, e))
                    if qb in s.add_qb: t.append((4 * qb + 7 + e, "add", qb, e))
                for h in range(2): t.append((4 * qb + 8 + 2 * h, "cvt", qb, h))
        else:
            addslot = {1: (16, 20, 26, 30), 3: (32, 36, 40, 44), 0: (10, 14, 18, 22), 2: (26, 30, 34, 38)}
            for qb in range(4):
                for e in range(4): t.append((8 * qb + 7 + 2 * e, "exp", qb, e))
                for h in range(2): t.append((8 * qb + 10 + 4 * h, "cvt", qb, h))
            for qb in s.add_qb:
                for e in range(4): t.append((addslot[qb][e], "add", qb, e))
        return t
    def sm_op(s, kind, qb, i, wbuf, bb):
        S = vS(qb)
        if kind == "exp": return "v_exp_f32 v%d, v%d" % (S + i, S + i)
        if kind == "add": return "v_add_f32 v%d, v%d, v%d" % (vA(qb), vA(qb), S + i)
        d = vP(wbuf, qb, bb >> 1) + 2 * (bb & 1) + i
        if s.perm: return "v_perm_b32 v%d, v%d, v%d, s%d" % (d, S + 2 * i + 1, S + 2 * i, sSEL)
        return "v_cvt_pk_bf16_f32 v%d, v%d, v%d" % (d, S + 2 * i, S + 2 * i + 1)

    def seq(s, p, par):
        grp, piece, pp = (p % 16) >> 2, p & 3, (par + p // 16) & 1
        isK = grp in (0, 3)
        slot = (2 * pp + (4, 2, 3, 5)[grp]) & 3
        return (isK, slot * SLOT + (0 if isK else VBASE), piece)
    def dma_plan(s, par, b, first=False):
        if first and b < 7:
            p0 = s.npre + sum(s.fcnt[:b])
            return [s.seq(p, par) for p in range(p0, p0 + s.fcnt[b])]
        return [s.seq(2 * (b - s.s0) + i, par) for i in range(2)]

    def block(s, par, b, do_qk=True, do_pv=True, first=False, last=False, extra=None):
        n = 16 if first else 32
        sh = [[] for _ in range(n)]
        mem = [[] for _ in range(n)]
        va = [[] for _ in range(n)]
        flush = []
        if not s.novalu:
            tab = s.sm_table(first)
            if (do_qk or b == 0) and not (first and b == 0):
                pp = par if b else par ^ 1
                for g, kind, qb, i in tab:
                    if g >= n: va[g - n].append(s.sm_op(kind, qb, i, pp ^ 1, (b - 1) & 7))
            if do_qk:
                for g, kind, qb, i in tab:
                    if g < n: va[g].append(s.sm_op(kind, qb, i, par ^ 1, b))
                if first and b == 7:
                    keep = set((k, q, i) for g, k, q, i in s.sm_table(False) if g >= 32)
                    for g, kind, qb, i in sorted(tab):
                        if g >= n and (kind, qb, i) not in keep: flush.append(s.sm_op(kind, qb, i, par ^ 1, b))
        buf = b & 1
        nb = (b + 1) & 7
        npar = par if b < 7 else par ^ 1
        plan = s.dma_plan(par, b, first) if do_qk else []
        gaps = s.dmagaps[len(plan)] if plan else ()
        if first: gaps = {0: (), 1: (5,), 2: (3, 11), 3: (1, 7, 13), 4: (1, 5, 9, 13)}[len(plan)]
        if first: dsg = [0, 2, 4, 6] + list(range(8, 16))
        else: dsg = [g for g in range(0, 32, 2) if g not in gaps or g in s.share]
        if do_qk:
            kslot = (2 if npar == 0 else 0) + (nb >> 2)
            for t in range(4):
                if not s.nolds: mem[dsg[t]].append(s.kread(buf ^ 1, kslot, nb & 3, t))
        if (do_pv and (do_qk or b < 7)) or (b == 7 and do_qk):
            for r in range(8):
                if not s.nolds: mem[dsg[4 + r]].append(s.vread(buf ^ 1, 0 if npar == 0 else 2, nb, r))
        if do_qk:
            for (isK, off, piece), g in zip(plan, gaps):
                if not s.nodma:
                    if piece == 0 or g == gaps[0] and s.instr == 3: sh[g - 1].append(s.m0set(off))
                    if first and s.lim1: mem[g].append("s_waitcnt vmcnt(%d)" % (s.lim1 - 1))
                    if not first and s.lim2: sh[g].append("s_waitcnt vmcnt(%d)" % (s.lim2 - 1))
                    mem[g].append(s.dma(isK, piece))
                if piece == 3: sh[g + 1].append(s.adv(isK))
            if s.dist and not first:
                g2 = gaps[-1]; x = (g2 + s.dist) % 32
                cnt = sum(1 for k in range(1, s.dist) if (g2 + k) % 32 in gaps)
                sh[x].append("s_waitcnt vmcnt(%d)" % cnt)
            if b in (2, 6):
                w = "s_waitcnt vmcnt(%d) lgkmcnt(0)" % ((s.npre + sum(s.fcnt[:3]) if first else s.vm1) if b == 2 else s.vm2)
            elif s.latev and not first and b != 7:
                w = "s_waitcnt lgkmcnt(8)"
            else:
                w = "s_waitcnt lgkmcnt(0)"
            if s.latev and not first and b not in (0, 3, 7):
                sh[3].append("s_waitcnt lgkmcnt(%d)" % sum(1 for g in dsg if g < 3))
            if first and b == 6 and s.pre2:
                n0 = len(s.lines); s.dummy(s.pre2); flush += s.lines[n0:]; del s.lines[n0:]
            if flush: flush.append(w)
            else: sh[n - 1].append(w)
            if b in (3, 7):
                if not s.nobar: sh[0].insert(0, "s_barrier")
                if s.instr == 3:
                    sh[0].insert(1, "s_memrealtime s[72:73]\ns_memtime s[74:75]\ns_waitcnt lgkmcnt(0)\ns_mov_b32 m0, s76\ns_nop 1\nv_writelane_b32 v46, s72, m0\nv_writelane_b32 v47, s74, m0\ns_add_u32 s76, s76, 1")
        else:
            sh[n - 1].append("s_waitcnt lgkmcnt(0)")
        if s.instr == 4 and do_qk:
            if b == 7: sh[1].append("s_memrealtime s[72:73]")
            if b == 0 and not first:
                sh[1].append("s_sub_u32 s75, s72, s74")
                sh[2].append("s_mov_b32 s74, s72")
                sh[4].append("s_cmp_gt_i32 s75, 310\ns_cselect_b32 s75, 1, 0\ns_cselect_b32 s79, s72, s77")
                sh[5].append("s_add_u32 s76, s76, s75")
                sh[6].append("s_min_u32 s77, s77, s79")
        if last:
            sh[31 if any("s_add" in x for x in sh[31]) else 30].append("s_sub_u32 s%d, s%d, 1" % (sCNT, sCNT))
        ms = None
        if do_pv and do_qk and s.msum_qb:
            place = {4: {1: 0, 3: 1, 5: 2, 7: 3}, 2: {1: 0, 5: 1}}[len(s.msum_qb)]
            if b in place: ms = s.msums(par, s.msum_qb[place[b]])
            if s.smpl == 2 and len(s.msum_qb) == 4:
                x = s.msums(par, b >> 1); k = len(x) // 2
                ms = x[k * (b & 1): k * (b & 1) + k]
        for pos in range(n):
            m = None
            if first: m = s.qk(buf, pos >> 2, pos & 3)
            else:
                qb, k = pos >> 3, pos & 7
                if k < 4:
                    if do_qk: m = s.qk(buf, qb, k)
                elif do_pv: m = s.pv(buf, par, qb, b, k - 4)
            if m: s.A(m)
            for o in sh[pos] + mem[pos] + va[pos]: s.A(o)
            if extra:
                for o in extra(pos): s.A(o)
            if s.pad and m: s.A("s_nop %d" % (s.pad - 1))
            if s.padn and not first and do_qk and (pos & 1) and (pos >> 1) % (16 // s.padn) == 0: s.A("s_nop 0")
            if ms is not None and pos == s.mspos:
                for x in ms: s.A(x)
        for o in flush: s.A(o)

    def dummy(s, n):
        for i in range(n):
            s.A("%s v[120:123], v[%d:%d], v[%d:%d], %s" % (MF, 104 + 4 * (i & 1), 107 + 4 * (i & 1), 112 + 4 * ((i >> 1) & 1), 115 + 4 * ((i >> 1) & 1), "v[120:123]" if i & 3 else "0"))
    def stamp(s, idx):
        if s.tst and idx < 5: return
        if s.stamps: s.A("%s s[%d:%d]" % ("s_memrealtime" if s.stamps == 2 else "s_memtime", 48 + 2 * idx, 49 + 2 * idx))

    def build(s):
        A = s.A
        A("; @launch grid=(256,1,1) block=(256,1,1) lds=%d" % LDS_BYTES)
        A('.amdgcn_target "amdgcn-amd-amdhsa--gfx950"')
        A(".text")
        A(".globl %s\n.p2align 8\n.type %s,@function\n%s:" % (KN, KN, KN))
        A("s_cmp_ge_u32 s2, 256\ns_cbranch_scc1 L_end")
        if s.stamps: A("s_memrealtime s[40:41]\ns_memtime s[44:45]")
        A("s_load_dwordx4 s[24:27], s[0:1], 0\ns_load_dwordx4 s[28:31], s[0:1], 16")
        if s.stamps: A("s_load_dwordx2 s[64:65], s[0:1], 40")
        if s.warm:
            A("s_getpc_b64 s[36:37]\nL_pc:")
            A("v_lshlrev_b32 v1, 7, v0\nv_min_u32 v1, L_end-L_pc, v1\nglobal_load_dword v11, v1, s[36:37]")
        A("v_lshrrev_b32 v1, 6, v0\nv_and_b32 v0, 63, v0\ns_nop 0\nv_readfirstlane_b32 s%d, v1" % sW)
        A("v_lshrrev_b32 v20, 4, v0\nv_and_b32 v21, 15, v0")
        A("s_mul_i32 s%d, s%d, %d" % (sWL, sW, 4 * PITCH))
        if s.lin:
            A("s_lshl_b32 s%d, s%d, 12\nv_lshlrev_b32 v22, 4, v0\nv_add_u32 v22, s%d, v22" % (sT, sW, sT))
        else:
            A("v_lshlrev_b32 v22, 12, v20\nv_lshl_add_u32 v22, v21, 4, v22")
            A("s_lshr_b32 s%d, s%d, 1\ns_lshl_b32 s%d, s%d, 11\ns_and_b32 s%d, s%d, 1\ns_lshl_b32 s%d, s%d, 9\ns_add_u32 s%d, s%d, s%d" % (sT, sW, sT, sT, sT + 1, sW, sT + 1, sT + 1, sT, sT, sT + 1))
            A("v_add_u32 v22, s%d, v22" % sT)
        for i in range(4):
            goff = i * 1024 if s.lin else (4 * (i & 1) + (i >> 1)) * 256
            A("v_add_u32 v%d, %d, v22" % (vDMA + i, goff - PITCH * i + BIASB))
        A("s_lshl_b32 s%d, s%d, 14" % (sT, sW))
        A("v_lshlrev_b32 v23, 2, v20\nv_xor_b32 v23, v23, v21\nv_lshlrev_b32 v23, 4, v23\nv_lshl_add_u32 v23, v20, 8, v23\nv_add_u32 v%d, s%d, v23" % (vQA, sT))
        A("v_lshrrev_b32 v23, 3, v0\nv_and_b32 v24, 7, v0\nv_lshlrev_b32 v24, 4, v24\nv_lshl_add_u32 v23, v23, 8, v24\nv_add_u32 v%d, s%d, v23" % (vOA, sT))
        for qb in range(4): A("s_mov_b32 s%d, %d" % (sQB + qb, qb * 4096))
        A("s_waitcnt lgkmcnt(0)")
        hd = 2
        if s.hmap == 1:
            hd = 33; A("s_xor_b32 s33, s2, 1")
        if s.hmap == 2:
            hd = 33; A("s_and_b32 s33, s2, 7\ns_lshl_b32 s33, s33, 5\ns_lshr_b32 s36, s2, 3\ns_add_u32 s33, s33, s36")
        A("s_lshl_b32 s%d, s%d, 19" % (sT, hd))
        A("s_sub_u32 s26, s26, %d\ns_subb_u32 s27, s27, 0\ns_sub_u32 s28, s28, %d\ns_subb_u32 s29, s29, 0" % (BIASB, BIASB))
        A("s_add_u32 s%d, s26, s%d\ns_addc_u32 s%d, s27, 0\ns_mov_b32 s%d, %d\ns_mov_b32 s%d, 0x20000" % (sK, sT, sK + 1, sK + 2, 0x80000 + BIASB, sK + 3))
        A("s_add_u32 s%d, s28, s%d\ns_addc_u32 s%d, s29, 0\ns_mov_b32 s%d, %d\ns_mov_b32 s%d, 0x20000" % (sV, sT, sV + 1, sV + 2, 0x80000 + BIASB, sV + 3))
        A("s_lshl_b32 s%d, s%d, 16" % (sT, hd))
        A("s_add_u32 s%d, s24, s%d\ns_addc_u32 s%d, s25, 0\ns_mov_b32 s%d, 0x10000\ns_mov_b32 s%d, 0x20000" % (sQ, sT, sQ + 1, sQ + 2, sQ + 3))
        A("s_add_u32 s%d, s30, s%d\ns_addc_u32 s%d, s31, 0\ns_mov_b32 s%d, 0x10000\ns_mov_b32 s%d, 0x20000" % (sO, sT, sO + 1, sO + 2, sO + 3))
        A("s_mov_b32 s%d, 0" % sPASS)
        for qb in range(4): A("v_mov_b32 v%d, 0xff800000" % vM(qb))
        A("L_start:")
        if s.rot: A("s_mul_i32 s%d, s2, %d\ns_and_b32 s%d, s%d, 31\ns_lshl_b32 s%d, s%d, 14\ns_mov_b32 s%d, s%d" % (sSOK, s.rot, sSOK, sSOK, sSOK, sSOK, sSOV, sSOK))
        else: A("s_mov_b32 s%d, 0\ns_mov_b32 s%d, 0" % (sSOK, sSOV))
        def group(isK, off, n=4):
            return [s.m0set(off), "s_nop 0"] + [s.dma(isK, i) for i in range(n)] + ([s.adv(isK)] if n == 4 else [])
        PERM = (0, 3, 1, 2)
        def qgroup(qb):
            out = []
            for i in range(4):
                out.append(["s_add_u32 m0, s%d, %d" % (sWL, VBASE + qb * SLOT + i * PITCH - PERM[i] * 1024), "s_nop 0",
                            "buffer_load_dwordx4 v%d, %s, s%d offen offset:%d %s lds" % (vQA, R("s", sQ, 4), sQB + qb, PERM[i] * 1024, s.qld)])
            return out
        def pieces(isK, off, n=4):
            out = [[s.dma(isK, i)] for i in range(n)]
            if n: out[0] = [s.m0set(off), "s_nop 0"] + out[0]
            if n == 4: out[3].append(s.adv(isK))
            return out
        Q = [("K0", p) for p in pieces(True, 0)]
        for qb in range(4): Q += [("Q%d" % qb, p) for p in qgroup(qb)]
        Q += [("K1", p) for p in pieces(True, SLOT)]
        for p in range(s.npre):
            isK, off, piece = s.seq(p, 1)
            ops = ([s.m0set(off), "s_nop 0"] if piece == 0 else []) + [s.dma(isK, piece)] + ([s.adv(isK)] if piece == 3 else [])
            Q.append((("K2", "V0", "V1", "K3")[p >> 2], ops))
        if s.vtlb: Q.insert(s.vtlb, ("X", ["buffer_load_dword v127, v%d, %s, 0 offen" % (vDMA, R("s", sV, 4))]))
        if s.otlb: Q.insert(s.otlb, ("X", ["buffer_load_dword v10, v%d, %s, 0 offen" % (vOA, R("s", sO, 4))]))
        st = {"n": 0}
        def issue(k=1):
            for _ in range(k):
                if st["n"] < len(Q):
                    if s.lim and st["n"] >= s.lim: A("s_waitcnt vmcnt(%d)" % (s.lim - 1))
                    for x in Q[st["n"]][1]: A(x)
                    st["n"] += 1
        def waitfor(tag):
            last = max(i for i, x in enumerate(Q) if x[0] == tag)
            if st["n"] <= last: issue(last + 1 - st["n"])
            A("s_waitcnt vmcnt(%d)" % (st["n"] - 1 - last))
        issue(s.nfirst)
        A("v_and_b32 v22, 3, v0\nv_bfe_u32 v23, v0, 2, 1\nv_lshl_add_u32 v22, v22, 1, v23\nv_and_b32 v23, 8, v0\nv_add_u32 v22, v22, v23")
        A("v_mul_u32_u24 v22, %d, v22\nv_lshrrev_b32 v23, 4, v0\nv_lshl_add_u32 v%d, v23, 4, v22" % (PITCH, vK))
        A("v_bfe_u32 v22, v0, 2, 2\nv_bfe_u32 v23, v0, 4, 1\nv_lshl_add_u32 v22, v22, 1, v23\nv_lshrrev_b32 v23, 5, v0\nv_lshl_add_u32 v22, v23, 3, v22")
        A("v_mul_u32_u24 v22, %d, v22\nv_and_b32 v23, 3, v0\nv_lshl_add_u32 v22, v23, 3, v22\nv_add_u32 v%d, %d, v22" % (PITCH, vV, VBASE))
        A("v_bfe_u32 v22, v0, 2, 2\nv_lshlrev_b32 v22, 1, v22\nv_mov_b32 v23, 0x78\nv_lshrrev_b32 v22, v22, v23\nv_and_b32 v22, 3, v22")
        A("v_mul_u32_u24 v22, %d, v22\nv_and_b32 v23, 3, v0\nv_lshl_add_u32 v22, v23, 8, v22\nv_lshrrev_b32 v24, 4, v0\nv_lshl_add_u32 v22, v24, 4, v22" % PITCH)
        A("v_add_u32 v22, s%d, v22\nv_add_u32 v22, %d, v22" % (sWL, VBASE))
        for t in range(4): A("v_xor_b32 v24, %d, v23\nv_lshl_add_u32 v%d, v24, 6, v22" % (t, vQR + t))
        A("v_and_b32 v%d, 15, v0\nv_lshrrev_b32 v%d, 5, v0\nv_xor_b32 v%d, v%d, v%d\nv_lshlrev_b32 v%d, 4, v%d" % (vE, vE + 1, vE + 1, vE + 1, vE, vE + 1, vE + 1))
        A("v_lshl_add_u32 v%d, v%d, 8, v%d\nv_bfe_u32 v%d, v0, 4, 1\nv_lshl_add_u32 v%d, v%d, 3, v%d" % (vE + 1, vE, vE + 1, vE, vE + 1, vE, vE + 1))
        for db in range(8): A("v_xor_b32 v%d, %d, v%d\nv_add_u32 v%d, s%d, v%d" % (vW + db, db * 32, vE + 1, vW + db, sWL, vW + db))
        A("v_lshrrev_b32 v%d, 3, v0\nv_and_b32 v%d, 7, v0\nv_xor_b32 v%d, v%d, v%d\nv_lshlrev_b32 v%d, 4, v%d" % (vE, vE + 1, vE + 1, vE + 1, vE, vE + 1, vE + 1))
        A("v_lshl_add_u32 v%d, v%d, 8, v%d\nv_add_u32 v%d, s%d, v%d" % (vE + 1, vE, vE + 1, vOR, sWL, vE + 1))
        c = 1.4426950408889634 / (128.0 ** 0.5)
        A("s_mov_b32 s%d, %s\ns_mov_b32 s%d, %s" % (sC, f32(c), sC + 1, f32(c)))
        A("s_mov_b32 s%d, 7" % sCNT)
        A("s_mov_b32 s%d, 0x07060302" % sSEL)
        if s.sp:
            A("v_and_b32 v22, 3, v0\nv_cmp_gt_u32 vcc, 2, v22\nv_mov_b32 v23, 0x3f803f80\nv_and_b32 v22, 1, v0\nv_cndmask_b32 v%d, 0, v23, vcc" % vONE)
            A("v_cmp_eq_u32 vcc, 0, v22\nv_mov_b32 v23, 0x44444444\nv_mov_b32 v24, 0xeeeeeeee\nv_cndmask_b32 v%d, v24, v23, vcc" % vIDX)
        elif s.ones4:
            A("v_and_b32 v22, 3, v0\nv_cmp_eq_u32 vcc, 0, v22\nv_mov_b32 v23, 0x3f803f80\ns_nop 0\nv_cndmask_b32 v%d, 0, v23, vcc" % vONE)
        else:
            A("v_mov_b32 v%d, 0x3f803f80" % vONE)
        for i in range(1, 4): A("v_mov_b32 v%d, v%d" % (vONE + i, vONE))
        for i in range(128): A("v_accvgpr_write_b32 a%d, 0" % i)
        for i in range(16): A("v_mov_b32 v%d, 0" % (vL(0) + i))
        for qb in range(4): A("v_mov_b32 v%d, 0" % vA(qb))
        s.stamp(0)
        if s.pre0 or s.pre1 or s.pre2:
            A("s_mov_b32 s85, 0x9e3779b1\nv_add_u32 v100, 1, v0")
            for i in range(16):
                A("v_mul_lo_u32 v100, v100, s85\nv_and_b32 v%d, 0xbfffbfff, v100\nv_or_b32 v%d, 0x3c003c00, v%d" % (104 + i, 104 + i, 104 + i))
            s.dummy(s.pre0)
        issue(s.nsecond - st["n"])
        for qb in range(4):
            if qb and s.pre1: s.dummy(s.pre1)
            waitfor("Q%d" % qb)
            if qb == 0: s.stamp(1)
            for t in range(4): A("ds_read_b128 %s, v%d offset:%d" % (R("v", 128 + 4 * t, 4), vQR + t, qb * SLOT))
            if qb == 0:
                A("s_barrier")
                for t in range(4): A(s.kread(0, 0, 0, t))
                if s.prepass == 2:
                    for t in range(4): A(s.kread(1, 0, 1, t))
            for f in range(4):
                b = 128 + 4 * f
                if f < s.nq[qb] and st["n"] < len(Q) and Q[st["n"]][0] not in ["V%d" % x for x in range(qb, 4)]: issue(1)
                A("s_waitcnt lgkmcnt(%d)" % (3 - f + (4 * s.prepass if qb == 0 else 0)))
                for i in range(4):
                    A("v_lshlrev_b32 v%d, 16, v%d\nv_and_b32 v%d, 0xffff0000, v%d" % (vT + 2 * i, b + i, vT + 2 * i + 1, b + i))
                for i in range(4):
                    A("v_pk_mul_f32 %s, %s, %s" % (R("v", vT + 2 * i, 2), R("v", vT + 2 * i, 2), R("s", sC, 2)))
                for i in range(4):
                    A("v_cvt_pk_bf16_f32 v%d, v%d, v%d" % (vT + 8 + i, vT + 2 * i, vT + 2 * i + 1))
                for i in range(4):
                    A("v_accvgpr_write_b32 a%d, v%d" % (aQ(qb, f) + i, vT + 8 + i))
        s.stamp(2)
        A("s_waitcnt lgkmcnt(0)")
        for rep in range(s.prepass):
            for qb in range(4):
                for t in range(4): A(s.qk(rep, qb, t, zero=True))
                if qb & 1: issue(1)
            A("s_nop 4")
            for qb in range(4):
                S = vS(qb)
                A("v_max3_f32 v%d, v%d, v%d, v%d" % (vM(qb), vM(qb), S, S + 1))
            for qb in range(4):
                S = vS(qb)
                A("v_max3_f32 v%d, v%d, v%d, v%d" % (vM(qb), vM(qb), S + 2, S + 3))
        for sw in ("v_permlane32_swap_b32", "v_permlane16_swap_b32"):
            for qb in range(4): A("v_mov_b32 v%d, v%d" % (vT + qb, vM(qb)))
            for qb in range(4): A("%s v%d, v%d" % (sw, vT + qb, vM(qb)))
            for qb in range(4): A("v_max_f32 v%d, v%d, v%d" % (vM(qb), vM(qb), vT + qb))
            issue(1)
        issue(len(Q))
        A("s_mov_b32 s%d, %s" % (sT, f32(-s.bias)))
        for qb in range(4): A("v_sub_f32 v%d, s%d, v%d" % (vNM(qb), sT, vM(qb)))
        for qb in range(4):
            for i in range(1, 4): A("v_mov_b32 v%d, v%d" % (vNM(qb) + i, vNM(qb)))
        if s.novalu:
            for i in range(128): A("v_accvgpr_read_b32 v%d, a%d" % (128 + i, 128 + (i & 63)))
        if s.nolds:
            for t in range(4): A(s.kread(1, 0, 1, t))
            for bf in range(2):
                for r in range(8): A(s.vread(bf, 2, bf, r))
            A("s_waitcnt lgkmcnt(0)")
        if s.instr == 3: A("s_mov_b32 s76, 0")
        if s.instr == 4: A("s_mov_b32 s76, 0\ns_add_u32 s77, s40, 7000\ns_memrealtime s[74:75]\ns_waitcnt lgkmcnt(0)\ns_add_u32 s74, s74, 200\ns_mov_b32 s78, 0")
        A("s_nop 0")
        s.stamp(3)
        n0 = len(s.lines)
        for b in range(8): s.block(1, b, do_pv=False, first=True)
        s.lines = hazards.pad(s.lines)
        s.stamp(4)
        A(".p2align 6")
        A("L_loop:")
        n0 = len(s.lines)
        for b in range(8): s.block(0, b, last=(b == 7))
        A("s_cbranch_scc1 L_tail")
        n1 = len(s.lines)
        for b in range(8): s.block(1, b)
        body = s.lines[n0:]
        A("s_branch L_loop")
        A("L_tail:")
        n2 = len(s.lines)
        s.stamp(5)
        assert s.sp and len(s.msum_qb) == 4
        def conv(n):
            qb, db = n & 3, n >> 2
            tb = vE + 6 * (n % 4)
            o = aO(qb, db)
            ops = ["v_accvgpr_read_b32 v%d, a%d" % (tb + i, o + i) for i in range(4)]
            ops += ["v_mul_f32 v%d, v%d, v%d" % (tb + i, tb + i, vT + qb) for i in range(4)]
            ops += ["v_cvt_pk_bf16_f32 v%d, v%d, v%d" % (tb + 4 + i, tb + 2 * i, tb + 2 * i + 1) for i in range(2)]
            return ops
        def owrite(n): return "ds_write_b64 v%d, %s offset:%d" % (vW + (n >> 2), R("v", vE + 6 * (n % 4) + 4, 2), (n & 3) * SLOT)
        def oread(h, qb, i):
            return "ds_read_b128 %s, v%d offset:%d" % (R("v", 128 + 32 * h + 8 * qb + 4 * i, 4), vOR, qb * SLOT + i * 2048 + ((h ^ i) * 128))
        def ostore(h, qb, i):
            return "buffer_store_dwordx4 %s, v%d, %s, s%d offen offset:%d %s" % (R("v", 128 + 32 * h + 8 * qb + 4 * i, 4), vOA, R("s", sO, 4), sQB + qb, i * 2048 + h * 128, s.st)
        def lfin(qb): return ["v_add_f32 v%d, v%d, v%d" % (vL(qb), vL(qb), vL(qb) + 1), "v_rcp_f32 v%d, v%d" % (vT + qb, vL(qb))]
        left = [s.sm_op(k, q, i, 1, 7) for g, k, q, i in sorted(s.sm_table(False)) if g >= 32]
        T = []
        m = s.msums(1, 0) + s.msums(1, 1) + s.msums(1, 2)
        for i, x in enumerate(m):
            T.append(x)
            if i == 0: T.append("s_mov_b32 s%d, %s" % (sT, f32(s.thr)))
            if i < len(left): T.append(left[i])
        sh = [[[] for k in range(4)] for n in range(32)]
        ds = [[[] for k in range(4)] for n in range(32)]
        va = [[[] for k in range(4)] for n in range(32)]
        for n in range(32):
            qb, db = n & 3, n >> 2
            if db < 7:
                for u in range(2): ds[n][2 * u].append(s.vread((db + 1) & 1, 2, db + 1, 2 * qb + u))
            if n >= 2:
                c = conv(n - 2)
                for k, (x, y) in enumerate(((0, 3), (3, 6), (6, 8), (8, 10))): va[n][k] += c[x:y]
            if n >= 3: ds[n][1].append(owrite(n - 3))
        sh[3][1].append("s_waitcnt vmcnt(2)")
        sh[5][1].append("s_waitcnt vmcnt(0)")
        for j, qb in enumerate((0, 1, 2)):
            x = lfin(qb); va[0 if j < 1 else 1][(2, 0, 2)[j]].append(x[0]); va[0 if j < 1 else 1][(3, 1, 3)[j]].append(x[1])
        x = lfin(3); va[3][2].append(x[0]); va[3][3].append(x[1])
        va[4][2].append("v_add_f32 v%d, v%d, v%d" % (vT + 5, vL(0), vL(1)))
        va[4][3].append("v_add_f32 v%d, v%d, v%d" % (vT + 6, vL(2), vL(3)))
        va[5][2].append("v_add_f32 v%d, v%d, v%d" % (vT + 5, vT + 5, vT + 6))
        va[5][3].append("v_cmp_nge_f32 vcc, s%d, v%d" % (sT, vT + 5))
        for j in range(8):
            ds[15 + j][3].append(oread(0, j >> 1, j & 1))
            ds[17 + j][2].append(ostore(0, j >> 1, j & 1))
        ds[31][2].append(oread(1, 0, 0)); ds[31][3].append(oread(1, 0, 1))
        for n in range(32):
            qb, db = n & 3, n >> 2
            for k in range(4):
                T.append(s.pv(db & 1, 1, qb, db, k))
                T += sh[n][k] + ds[n][k] + va[n][k]
            if n == 0: T += s.msums(1, 3)
            if s.tst and n in (3, 11, 19, 27, 31): T.append("s_memtime s[%d:%d]" % (48 + 2 * (3, 11, 19, 27, 31).index(n), 49 + 2 * (3, 11, 19, 27, 31).index(n)))
        T += [owrite(29), oread(1, 1, 0), oread(1, 1, 1)] + conv(30) + [ostore(1, 0, 0), ostore(1, 0, 1), owrite(30), oread(1, 2, 0), oread(1, 2, 1)]
        T += conv(31) + [ostore(1, 1, 0), ostore(1, 1, 1), owrite(31), oread(1, 3, 0), oread(1, 3, 1)]
        T += [ostore(1, 2, 0), ostore(1, 2, 1), ostore(1, 3, 0), ostore(1, 3, 1)]
        if s.nost: T = [x for x in T if not x.startswith("buffer_store")]
        for x in hazards.autowait(T): A(x)
        pre = s.lines[n0:n1]
        s.lines[n2:] = hazards.pad(pre + s.lines[n2:], start=len(pre))[len(pre):]
        s.stamp(6)
        if s.nodma or s.novalu or s.nolds: A("s_branch L_fin")
        A("s_cmp_lg_u32 s%d, 0\ns_cbranch_scc1 L_fin" % sPASS)
        A("s_cmp_lg_u64 vcc, 0\ns_cselect_b32 s%d, 1, 0" % sT)
        A("s_lshl_b32 s%d, s%d, 2\ns_add_u32 s%d, s%d, %d" % (sT + 1, sW, sT + 1, sT + 1, FLAG_OFF))
        A("v_mov_b32 v%d, s%d\nv_mov_b32 v%d, s%d\nv_mov_b32 v%d, %d" % (vT, sT, vT + 1, sT + 1, vT + 2, FLAG_OFF))
        A("ds_write_b32 v%d, v%d\ns_waitcnt lgkmcnt(0)\ns_barrier" % (vT + 1, vT))
        A("ds_read_b128 %s, v%d\ns_waitcnt lgkmcnt(0)" % (R("v", vT + 8, 4), vT + 2))
        A("v_or3_b32 v%d, v%d, v%d, v%d\nv_or_b32 v%d, v%d, v%d\ns_nop 1" % (vT, vT + 8, vT + 9, vT + 10, vT, vT, vT + 11))
        A("v_readfirstlane_b32 s%d, v%d\ns_nop 3\ns_cmp_eq_u32 s%d, 0\ns_cbranch_scc1 L_fin" % (sT, vT, sT))
        A("s_mov_b32 s%d, 1\ns_mov_b32 s%d, 0" % (sPASS, sSOK))
        A("s_waitcnt vmcnt(0)")
        A("L_maxpass:")
        A("s_barrier")
        for x in group(True, 0): A(x)
        A("s_waitcnt vmcnt(0)\ns_barrier")
        for j in range(4):
            for t in range(4): A(s.kread(0, 0, j, t))
            A("s_waitcnt lgkmcnt(0)")
            for qb in range(4):
                for t in range(4): A(s.qk(0, qb, t, zero=True))
            A("s_nop 7")
            for qb in range(4):
                S = vS(qb)
                A("v_max3_f32 v%d, v%d, v%d, v%d" % (vM(qb), vM(qb), S, S + 1))
                A("v_max3_f32 v%d, v%d, v%d, v%d" % (vM(qb), vM(qb), S + 2, S + 3))
        A("s_cmp_lt_u32 s%d, 0x80000\ns_cbranch_scc1 L_maxpass" % sSOK)
        A("s_barrier\ns_branch L_start")
        A("L_fin:")
        if s.dbg == -1:
            A("s_waitcnt vmcnt(0)")
            A("s_memrealtime s[42:43]\ns_memtime s[46:47]\ns_load_dwordx2 s[64:65], s[0:1], 32\ns_waitcnt lgkmcnt(0)")
            A("s_mov_b32 s68, s64\ns_mov_b32 s69, s65\ns_mov_b32 s70, 256\ns_mov_b32 s71, 0x20000")
            A("s_cmp_ge_u32 s2, 8\ns_cbranch_scc1 L_end\ns_cmp_lg_u32 s3, 0\ns_cbranch_scc1 L_end")
            A("s_lshl_b32 s36, s2, 2\nv_mov_b32 v3, s36\ns_mov_b64 exec, 1")
            A("s_sub_u32 s36, s42, s40\nv_mov_b32 v8, s36\ns_sub_u32 s36, s46, s44\nv_mov_b32 v9, s36")
            A("buffer_store_dword v8, v3, s[68:71], 0 offen\nbuffer_store_dword v9, v3, s[68:71], 0 offen offset:32")
        elif s.probe is not None:
            A("s_waitcnt vmcnt(0)")
            A("s_memrealtime s[42:43]\ns_memtime s[46:47]\ns_waitcnt lgkmcnt(0)")
            A("s_cmp_lg_u32 s2, %d\ns_cbranch_scc1 L_end" % s.probe[3])
            a, b, div = s.probe[:3]
            A("s_sub_u32 s36, s%d, s%d" % (a, b))
            if div == 10: A("s_mul_hi_u32 s36, s36, 429496730")
            if div == 0: A("s_mov_b32 s36, 0")
            if div == -1: A("s_mul_i32 s36, s36, 500")
            A("s_add_u32 s36, s36, 15000\ns_add_u32 s36, s36, s40")
            A("L_spin:\ns_sleep 4\ns_memrealtime s[42:43]\ns_waitcnt lgkmcnt(0)\ns_sub_u32 s37, s42, s36\ns_cmp_lt_i32 s37, 0\ns_cbranch_scc1 L_spin")
        elif s.stamps:
            A("s_waitcnt vmcnt(0)")
            A("s_memrealtime s[42:43]\ns_memtime s[46:47]\ns_getreg_b32 s62, hwreg(HW_REG_XCC_ID)\ns_mov_b32 s63, 0\ns_waitcnt lgkmcnt(0)")
            A("s_mov_b32 s68, s64\ns_mov_b32 s69, s65\ns_mov_b32 s70, 0x100000\ns_mov_b32 s71, 0x20000")
            A("s_lshl_b32 s37, s2, 2\ns_add_u32 s37, s37, s3\ns_mul_i32 s37, s37, 96\nv_mov_b32 v3, s37")
            if s.instr == 3:
                A("s_lshl_b32 s38, s2, 2\ns_add_u32 s38, s38, s3\ns_lshl_b32 s38, s38, 9\ns_add_u32 s38, s38, 0x20000\nv_lshlrev_b32 v4, 3, v0\nv_add_u32 v4, s38, v4")
                A("buffer_store_dwordx2 v[46:47], v4, s[68:71], 0 offen")
            for j, r in enumerate([40, 42, 44, 46] + list(range(48, 64, 2))):
                A("v_mov_b32 v8, s%d\nv_mov_b32 v9, s%d" % (r, r + 1))
                A("buffer_store_dwordx2 v[8:9], v3, s[68:71], 0 offen offset:%d" % (j * 8))
                A("s_nop 1")
        A("L_end:\ns_endpgm")
        A('.section .rodata,"a"\n.p2align 6\n.amdhsa_kernel %s' % KN)
        A("  .amdhsa_next_free_vgpr 512\n  .amdhsa_next_free_sgpr 102\n  .amdhsa_accum_offset 256\n  .amdhsa_group_segment_fixed_size 0\n  .amdhsa_kernarg_size 48\n  .amdhsa_user_sgpr_count 2\n  .amdhsa_user_sgpr_kernarg_segment_ptr 1\n  .amdhsa_system_sgpr_workgroup_id_x 1\n  .amdhsa_float_denorm_mode_32 3\n.end_amdhsa_kernel")
        vb = not (s.nodma or s.novalu or s.nolds)
        errs = hazards.check(s.lines[:n2], "linear", vb) + hazards.check(body + body, "loop", vb) + hazards.check(s.lines[n0:n1] + s.lines[n2:], "tail", vb)
        return "\n".join(s.lines) + "\n", errs

def gen(name, **kw):
    txt, errs = Gen(**kw).build()
    open(name, "w").write(txt)
    return errs

if __name__ == "__main__":
    import ast
    name = sys.argv[1]
    kw = {}
    for a in sys.argv[2:]:
        k, v = a.split("=", 1)
        try: kw[k] = ast.literal_eval(v)
        except Exception: kw[k] = v
    e = gen(name, **kw)
    print(name, "hazards:", len(e))
```

```python
import re
TRANS = ("v_exp_f32", "v_log_f32", "v_rcp_f32", "v_rsq_f32", "v_sqrt_f32", "v_sin_f32", "v_cos_f32")
def regs(tok):
    tok = tok.strip()
    tok = tok.lstrip("-")
    if tok.startswith("abs("): tok = tok[4:-1]
    if tok.startswith("|"): tok = tok.strip("|")
    m = re.fullmatch(r"([vas])(\d+)", tok)
    if m: return {(m.group(1), int(m.group(2)))}
    m = re.fullmatch(r"([vas])\[(\d+):(\d+)\]", tok)
    if m: return {(m.group(1), i) for i in range(int(m.group(2)), int(m.group(3)) + 1)}
    if tok == "vcc": return {("s", "vcc")}
    if tok == "m0": return {("s", "m0")}
    if tok == "exec": return {("s", "exec")}
    return set()
class I:
    def __init__(s, text):
        s.text = text
        t = text.split(";")[0].strip()
        parts = t.split(None, 1)
        s.op = parts[0] if parts else ""
        ops = []
        if len(parts) > 1:
            ops = [x.strip() for x in parts[1].split(",")]
            if ops:
                last = ops[-1].split()
                ops[-1] = last[0] if last else ""
                s.mods = last[1:]
        else:
            s.mods = []
        s.ops = ops
        op = s.op
        s.kind = "other"
        s.w = set(); s.r = set(); s.a = set(); s.b = set(); s.c = set(); s.states = 1
        if op.startswith("v_mfma"):
            s.kind = "mfma"; s.w = regs(ops[0]); s.a = regs(ops[1]); s.b = regs(ops[2]); s.c = regs(ops[3]); s.r = s.a | s.b | s.c
            s.passes = 8 if "32x32" in op or "x4_f32" in op else 4
        elif op.startswith("v_smfmac"):
            s.kind = "mfma"; s.w = regs(ops[0]); s.a = regs(ops[1]) | regs(ops[3]); s.b = regs(ops[2]); s.c = regs(ops[0]); s.r = s.a | s.b | s.c
            s.passes = 8
        elif op.startswith("v_permlane"):
            s.kind = "valu"; s.w = regs(ops[0]) | regs(ops[1]); s.r = set(s.w)
        elif op.startswith("v_cmp"):
            s.kind = "valu"; s.w = regs(ops[0]); s.r = set().union(*[regs(x) for x in ops[1:]])
        elif op.startswith("v_"):
            s.kind = "valu"; s.w = regs(ops[0]); s.r = set().union(*[regs(x) for x in ops[1:]]) if len(ops) > 1 else set()
            if op.startswith("v_fmac") or op.startswith("v_dot2c"): s.r |= s.w
            if op.startswith("v_cndmask") and len(ops) == 3: s.r |= {("s", "vcc")}
        elif op.startswith("ds_bpermute"):
            s.kind = "dsr"; s.w = regs(ops[0]); s.r = regs(ops[1]) | regs(ops[2])
        elif op.startswith("ds_read"):
            s.kind = "dsr"; s.w = regs(ops[0]); s.r = regs(ops[1])
        elif op.startswith("ds_write"):
            s.kind = "dsw"; s.r = set().union(*[regs(x) for x in ops])
        elif op.startswith("buffer_load") or op.startswith("global_load"):
            if "lds" in s.mods:
                s.kind = "dma"; s.r = set().union(*[regs(x) for x in ops]) | {("s", "m0")}
            else:
                s.kind = "vload"; s.w = regs(ops[0]); s.r = set().union(*[regs(x) for x in ops[1:]])
        elif op.startswith("buffer_store") or op.startswith("global_store"):
            s.kind = "vstore"; s.r = set().union(*[regs(x) for x in ops]); s.data = regs(ops[0]) if op.startswith("buffer") else regs(ops[1])
        elif op == "s_nop":
            s.kind = "nop"; s.states = int(ops[0], 0) + 1
        elif op == "s_waitcnt":
            s.kind = "wait"
            m = re.search(r"lgkmcnt\((\d+)\)", t); s.lgkm = int(m.group(1)) if m else None
            m = re.search(r"vmcnt\((\d+)\)", t); s.vm = int(m.group(1)) if m else None
        elif op.startswith("s_load") or op.startswith("s_memtime") or op.startswith("s_memrealtime"):
            s.kind = "smem"; s.w = regs(ops[0])
        elif op.startswith("s_"):
            s.kind = "salu"
            if op.startswith("s_cmp") or op.startswith("s_cbranch") or op in ("s_barrier", "s_branch", "s_endpgm", "s_setprio"):
                s.r = set().union(*[regs(x) for x in ops]) if ops else set()
            else:
                s.w = regs(ops[0]); s.r = set().union(*[regs(x) for x in ops[1:]]) if len(ops) > 1 else set()
        s.trans = any(op.startswith(x) for x in TRANS)

def isins(x):
    x = x.strip()
    return not (not x or x.startswith(";") or x.startswith(".") or x.split(";")[0].strip().endswith(":"))

def pad(lines, start=0):
    head = lines[:start]
    flat = [x for l in lines[start:] for x in l.split("\n")]
    nh = sum(1 for l in head for x in l.split("\n") if isins(x))
    while True:
        short = []
        check(head + flat, verbose=False, short=short)
        short = [x for x in short if x[0] >= nh]
        if not short: break
        j = min(x[0] for x in short)
        need = max(x[1] for x in short if x[0] == j)
        k = nh
        for pos, x in enumerate(flat):
            if isins(x):
                if k == j:
                    flat.insert(pos, "s_nop %d" % (need - 1)); break
                k += 1
    return head + flat

def autowait(lines):
    out = []; pend = []; lastm = None; since = 0
    for l in lines:
        for x in l.split("\n"):
            if not isins(x): out.append(x); continue
            c = I(x.strip())
            use = c.r | c.w
            hit = [k for k, rg in enumerate(pend) if rg & use]
            if hit:
                k = max(hit)
                n = len(pend) - 1 - k
                if c.kind == "mfma" and lastm is not None and n - since >= 0 and not (lastm + 1 < len(out) and out[lastm + 1].startswith("s_")):
                    out.insert(lastm + 1, "s_waitcnt lgkmcnt(%d)" % min(15, n - since))
                else:
                    out.append("s_waitcnt lgkmcnt(%d)" % min(15, n))
                pend = pend[k + 1:]
                if len(pend) > 15 + since: pend = pend[-(15 + since):]
            if c.kind == "wait" and c.lgkm is not None:
                while len(pend) > c.lgkm: pend.pop(0)
            if c.kind == "dsr": pend.append(c.w); since += 1
            elif c.kind == "dsw": pend.append(set()); since += 1
            out.append(x)
            if c.kind == "mfma": lastm = len(out) - 1; since = 0
    return out

_cache = {}
def check(lines, name="", verbose=True, short=None):
    ins = []
    for l in lines:
        for x in l.split("\n"):
            x = x.strip()
            if not isins(x): continue
            if x not in _cache: _cache[x] = I(x)
            ins.append(_cache[x])
    errs = []
    n = len(ins)
    for i, p in enumerate(ins):
        dist = 0
        for j in range(i + 1, min(n, i + 24)):
            c = ins[j]
            need = 0; why = ""
            if p.kind == "mfma":
                big = 12 if p.passes == 8 else 8
                if c.kind == "mfma":
                    if p.w & (c.a | c.b): need, why = big, "mfma D->A/B"
                    elif p.w & c.c and not (p.w == c.c and p.passes == c.passes): need, why = big - 2, "mfma D->C partial"
                elif c.kind in ("valu", "dsr", "dsw", "vload", "vstore", "dma"):
                    if p.w & (c.r | c.w): need, why = big, "mfma D->valu/mem"
                    elif c.kind == "valu" and p.c & c.w: need, why = (7 if p.passes == 8 else 3), "mfma C WAR"
            if p.kind == "valu":
                vw = {x for x in p.w if x[0] in "va"}
                sw = {x for x in p.w if x[0] == "s"}
                if c.kind == "mfma" and vw & c.r: need, why = max(need, 2), "valu->mfma"
                if c.op.startswith("v_permlane") and vw & c.r: need, why = max(need, 2), "valu->permlane"
                if (c.op.startswith("v_readfirstlane") or c.op.startswith("v_readlane")) and vw & c.r: need, why = max(need, 1), "valu->readlane"
                if p.trans and c.kind in ("valu", "dsr", "dsw", "vstore") and not c.trans and vw & c.r: need, why = max(need, 1), "trans->valu"
                if "dpp" in c.text or "row_" in c.text or "quad_perm" in c.text:
                    if vw & c.r: need, why = max(need, 2), "valu->dpp"
                if sw and c.kind in ("vload", "vstore", "dma") and sw & c.r: need, why = max(need, 5), "valu sgpr->vmem"
                if sw and c.kind == "valu" and sw & c.r: need, why = max(need, 2), "valu sgpr->valu"
            if p.kind == "salu" and ("s", "m0") in p.w and c.kind == "dma": need, why = 1, "m0->dma"
            if p.kind == "vstore" and ("x4" in p.op or "x3" in p.op) and p.data & c.w: need, why = 2, "store data WAR"
            if need > dist and short is not None: short.append((j, need - dist))
            if need > dist:
                errs.append("%s: %s need %d have %d:\n   [%d] %s\n   [%d] %s" % (name, why, need, dist, i, p.text, j, c.text))
            dist += c.states
            if dist >= 12: break
    if short is not None: return errs
    pend = []
    for i, c in enumerate(ins):
        if c.kind == "wait" and c.lgkm is not None:
            while len(pend) > c.lgkm: pend.pop(0)
        use = c.r | c.w
        for (k, rg) in pend:
            if rg & use:
                errs.append("%s: lds result used before wait:\n   [%d] %s\n   [%d] %s" % (name, k, ins[k].text, i, c.text))
        if c.kind == "dsr": pend.append((i, c.w))
        elif c.kind == "dsw": pend.append((i, set()))
        elif c.kind == "smem": pend.append((i, c.w))
    pend = []
    for i, c in enumerate(ins):
        if c.kind == "wait" and c.vm is not None:
            while len(pend) > c.vm: pend.pop(0)
        use = c.r | c.w
        for (k, rg) in pend:
            if rg & use:
                errs.append("%s: vmem result used before wait:\n   [%d] %s\n   [%d] %s" % (name, k, ins[k].text, i, c.text))
        if c.kind == "vload": pend.append((i, c.w))
        elif c.kind in ("dma", "vstore"): pend.append((i, set()))
    if verbose:
        for e in errs[:6]: print(e)
        if errs: print("%s: %d hazard problems" % (name, len(errs)))
    return errs
```

```python
import sys, struct
import hazards

KN = "standalone__mha_softmax__near_ridge_kernel"
PITCH = 1056
SLOT = 16 * PITCH
VBASE = 4 * SLOT
FLAG_OFF = 8 * SLOT
LDS_BYTES = 8 * SLOT + 64
BIASB = 1888

def f32(x): return "0x%08x" % struct.unpack("<I", struct.pack("<f", x))[0]
def R(p, b, n): return "%s[%d:%d]" % (p, b, b + n - 1)

vDMA = 2
vK = 6
vV = 7
vQA = 8
vOA = 9
def vA(qb): return 12 + qb
def vM(qb): return 16 + qb
vT = 20
def vS(qb, st=0): return (100 if st else 48) + 4 * qb
def vNM(qb): return 64 + 4 * qb
vONE = 80
def vL(qb): return 84 + 4 * qb
vE = 100
vQR = 40
vW = 32
vOR = 44
vBP = 36
def vP(buf, qb, ks): return 128 + buf * 64 + qb * 16 + ks * 4
def aO(qb, db): return (qb * 8 + db) * 4
def aQ(qb, t): return 128 + (qb * 4 + t) * 4
def aK(buf, t): return 192 + buf * 16 + 4 * t
def aV(buf, ks): return 224 + buf * 16 + 4 * ks

sW = 3
sQ, sK, sV, sO = 4, 8, 12, 16
sSOK, sSOV = 20, 21
sWL = 22
sCNT = 23
sPASS = 32
sC = 34
sT = 36
sSEL = 84
vIDX = 45
sQB = 80
MF = "v_mfma_f32_16x16x32_bf16"

PATHS = {
    "row": [(q, k) for q in range(4) for k in range(4)],
    "rsn": [(q, 3 - k if q & 1 else k) for q in range(4) for k in range(4)],
    "rsr": [(3 - q, 3 - k if q & 1 else k) for q in range(4) for k in range(4)],
    "col": [(q, k) for k in range(4) for q in range(4)],
    "csn": [(3 - q if k & 1 else q, k) for k in range(4) for q in range(4)],
    "hil": [(0,0),(0,1),(1,1),(1,0),(2,0),(3,0),(3,1),(2,1),(2,2),(3,2),(3,3),(2,3),(1,3),(1,2),(0,2),(0,3)],
    "zig": [(0,0),(0,1),(1,1),(1,0),(2,0),(2,1),(3,1),(3,0),(3,2),(3,3),(2,3),(2,2),(1,2),(1,3),(0,3),(0,2)],
    "zg2": [(0,0),(1,0),(1,1),(0,1),(0,2),(1,2),(1,3),(0,3),(2,3),(3,3),(3,2),(2,2),(2,1),(3,1),(3,0),(2,0)],
}

class Gen:
    def __init__(s, ld="nt", qld="nt", st="nt", stamps=0, bias=10.0, thr=2.0 ** 40, summode="sp", nodma=0, nobar=0, novalu=0, nolds=0,
                 warm=1, instr=0, probe=None, dbg=None, dmagaps=None, pad=0, otlb=8, ones4=1, prepass=1, mspos=23, nfirst=12, nsecond=16, hmap=0, lim=0, lim1=0, padn=0, perm=0, smpl=1, lim2=0, share=(), latev=0, pre0=0, pre1=0, pre2=0, lin=1, dist=0, s0=-1, npre=None, fcnt=None, vtlb=0, newtail=1, nq=(4, 4, 4, 4), rot=0, tst=0, nost=0, pst=0, pvswap=0, qkswap=0, order=0, snake=0, qo=None, po=None, sdb=0, off=0, qseq=(0, 1, 2, 3), ones1=0, tb=3, tlat=5, wpos=(2, 3), tnv=2, operm=0, w128=0, clag=2, tord=0, vlat=4, cst=2, tad=0):
        s.__dict__.update(locals())
        s.lines = []
        s.msum_qb = {"mfma": (0, 1, 2, 3), "hybrid": (0, 2), "valu": (), "sp": (0, 1, 2, 3), "sphy": (0, 2)}[summode]
        s.sp = summode.startswith("sp")
        s.dmagaps = {1: (24,), 2: (24, 28), 3: (24, 26, 28), 4: (24, 26, 28, 30)}
        if dmagaps: s.dmagaps[len(dmagaps)] = dmagaps
        s.vm1 = 2 * (3 - s0)
        s.vm2 = 2 * (7 - s0) - 12
        if npre is None: s.npre = -2 * s0
        if fcnt is None:
            rest = 2 * (7 - s0) - s.npre
            s.fcnt = [rest // 7 + (1 if i < rest % 7 else 0) for i in range(7)]
        assert sum(s.fcnt) + s.npre == 2 * (7 - s0) and max(s.fcnt) <= 4
        s.add_qb = tuple(q for q in range(4) if q not in s.msum_qb)
    def A(s, x): s.lines.append(x)

    def m0set(s, lds_off): return "s_add_u32 m0, s%d, %d" % (sWL, lds_off)
    def dma(s, isK, i):
        return "buffer_load_dwordx4 v%d, %s, s%d offen offset:%d %s lds" % (vDMA + i, R("s", sK if isK else sV, 4), sSOK if isK else sSOV, i * PITCH, s.ld)
    def adv(s, isK):
        so = sSOK if isK else sSOV
        if s.rot: return "s_add_u32 s%d, s%d, 0x4000\ns_and_b32 s%d, s%d, 0x7ffff" % (so, so, so, so)
        return "s_add_u32 s%d, s%d, 0x4000" % (so, so)
    def kread(s, buf, slot, j, t):
        return "ds_read_b128 %s, v%d offset:%d" % (R("a", aK(buf, t), 4), vK, slot * SLOT + j * 256 + t * 64)
    def vread(s, buf, slot0, db, r):
        ks, u = r >> 1, r & 1
        return "ds_read_b64_tr_b16 %s, v%d offset:%d" % (R("a", aV(buf, ks) + 2 * u, 2), vV, (slot0 + (ks >> 1)) * SLOT + (2 * (ks & 1) + u) * 256 + db * 32)
    def qk(s, buf, qb, t, zero=False, rev=False, start=None):
        st = buf if s.sdb and not zero else 0
        if start is None: start = t == 0
        c = R("v", vS(qb, st), 4) if not start else ("0" if zero else R("v", vNM(qb), 4))
        if rev: t = 3 - t
        if s.qkswap: return "%s %s, %s, %s, %s" % (MF, R("v", vS(qb, st), 4), R("a", aQ(qb, t), 4), R("a", aK(buf, t), 4), c)
        return "%s %s, %s, %s, %s" % (MF, R("v", vS(qb, st), 4), R("a", aK(buf, t), 4), R("a", aQ(qb, t), 4), c)
    def pv(s, buf, pbuf, qb, db, ks):
        o = R("a", aO(qb, db), 4)
        if s.pvswap: return "%s %s, %s, %s, %s" % (MF, o, R("v", vP(pbuf, qb, ks), 4), R("a", aV(buf, ks), 4), o)
        return "%s %s, %s, %s, %s" % (MF, o, R("a", aV(buf, ks), 4), R("v", vP(pbuf, qb, ks), 4), o)
    def msum(s, pbuf, qb, ks):
        o = R("v", vL(qb), 4)
        return "%s %s, %s, %s, %s" % (MF, o, R("v", vONE, 4), R("v", vP(pbuf, qb, ks), 4), o)

    def msums(s, pbuf, qb):
        if not s.sp: return [s.msum(pbuf, qb, ks) for ks in range(4)]
        return ["v_smfmac_f32_16x16x64_bf16 %s, %s, %s, v%d" % (R("v", vL(qb), 4), R("v", vONE, 4), R("v", vP(pbuf, qb, 2 * h), 8), vIDX) for h in range(2)]

    def sm_table(s, first=False):
        t = []
        if first:
            for qb in range(4):
                for e in range(4):
                    t.append((4 * qb + 6 + e, "exp", qb, e))
                    if qb in s.add_qb: t.append((4 * qb + 7 + e, "add", qb, e))
                for h in range(2): t.append((4 * qb + 8 + 2 * h, "cvt", qb, h))
        else:
            addslot = {1: (16, 20, 26, 30), 3: (32, 36, 40, 44), 0: (10, 14, 18, 22), 2: (26, 30, 34, 38)}
            for j, qb in enumerate(s.qseq):
                for e in range(4): t.append((s.off + 8 * j + 7 + 2 * e, "exp", qb, e))
                for h in range(2): t.append((s.off + 8 * j + 10 + 4 * h, "cvt", qb, h))
            for qb in s.add_qb:
                for e in range(4): t.append((addslot[qb][e], "add", qb, e))
        return t
    def sm_op(s, kind, qb, i, wbuf, bb):
        S = vS(qb, bb & 1 if s.sdb else 0)
        if kind == "exp": return "v_exp_f32 v%d, v%d" % (S + i, S + i)
        if kind == "add": return "v_add_f32 v%d, v%d, v%d" % (vA(qb), vA(qb), S + i)
        d = vP(wbuf, qb, bb >> 1) + 2 * (bb & 1) + i
        if s.perm: return "v_perm_b32 v%d, v%d, v%d, s%d" % (d, S + 2 * i + 1, S + 2 * i, sSEL)
        return "v_cvt_pk_bf16_f32 v%d, v%d, v%d" % (d, S + 2 * i, S + 2 * i + 1)

    def seq(s, p, par):
        grp, piece, pp = (p % 16) >> 2, p & 3, (par + p // 16) & 1
        isK = grp in (0, 3)
        slot = (2 * pp + (4, 2, 3, 5)[grp]) & 3
        return (isK, slot * SLOT + (0 if isK else VBASE), piece)
    def dma_plan(s, par, b, first=False):
        if first and b < 7:
            p0 = s.npre + sum(s.fcnt[:b])
            return [s.seq(p, par) for p in range(p0, p0 + s.fcnt[b])]
        return [s.seq(2 * (b - s.s0) + i, par) for i in range(2)]

    def block(s, par, b, do_qk=True, do_pv=True, first=False, last=False, extra=None):
        n = 16 if first else 32
        sh = [[] for _ in range(n)]
        mem = [[] for _ in range(n)]
        va = [[] for _ in range(n)]
        flush = []
        if not s.novalu:
            tab = s.sm_table(first)
            if (do_qk or b == 0) and not (first and b == 0):
                pp = par if b else par ^ 1
                for g, kind, qb, i in tab:
                    if g >= n: va[g - n].append(s.sm_op(kind, qb, i, pp ^ 1, (b - 1) & 7))
            if do_qk:
                for g, kind, qb, i in tab:
                    if g < n: va[g].append(s.sm_op(kind, qb, i, par ^ 1, b))
                if first and b == 7:
                    keep = set((k, q, i) for g, k, q, i in s.sm_table(False) if g >= 32)
                    for g, kind, qb, i in sorted(tab):
                        if g >= n and (kind, qb, i) not in keep: flush.append(s.sm_op(kind, qb, i, par ^ 1, b))
        buf = b & 1
        nb = (b + 1) & 7
        npar = par if b < 7 else par ^ 1
        plan = s.dma_plan(par, b, first) if do_qk else []
        gaps = s.dmagaps[len(plan)] if plan else ()
        if first: gaps = {0: (), 1: (5,), 2: (3, 11), 3: (1, 7, 13), 4: (1, 5, 9, 13)}[len(plan)]
        if first: dsg = [0, 2, 4, 6] + list(range(8, 16))
        else: dsg = [g for g in range(0, 32, 2) if g not in gaps or g in s.share]
        if do_qk:
            kslot = (2 if npar == 0 else 0) + (nb >> 2)
            for t in range(4):
                if not s.nolds: mem[dsg[t]].append(s.kread(buf ^ 1, kslot, nb & 3, t))
        if (do_pv and (do_qk or b < 7)) or (b == 7 and do_qk):
            for r in range(8):
                if not s.nolds: mem[dsg[4 + r]].append(s.vread(buf ^ 1, 0 if npar == 0 else 2, nb, r))
        if do_qk:
            for (isK, off, piece), g in zip(plan, gaps):
                if not s.nodma:
                    if piece == 0 or g == gaps[0] and s.instr == 3: sh[g - 1].append(s.m0set(off))
                    if first and s.lim1: mem[g].append("s_waitcnt vmcnt(%d)" % (s.lim1 - 1))
                    if not first and s.lim2: sh[g].append("s_waitcnt vmcnt(%d)" % (s.lim2 - 1))
                    mem[g].append(s.dma(isK, piece))
                if piece == 3: sh[g + 1].append(s.adv(isK))
            if s.dist and not first:
                g2 = gaps[-1]; x = (g2 + s.dist) % 32
                cnt = sum(1 for k in range(1, s.dist) if (g2 + k) % 32 in gaps)
                sh[x].append("s_waitcnt vmcnt(%d)" % cnt)
            if b in (2, 6):
                w = "s_waitcnt vmcnt(%d) lgkmcnt(0)" % ((s.npre + sum(s.fcnt[:3]) if first else s.vm1) if b == 2 else s.vm2)
            elif s.latev and not first and b != 7:
                w = "s_waitcnt lgkmcnt(8)"
            else:
                w = "s_waitcnt lgkmcnt(0)"
            if s.latev and not first and b not in (0, 3, 7):
                sh[3].append("s_waitcnt lgkmcnt(%d)" % sum(1 for g in dsg if g < 3))
            if first and b == 6 and s.pre2:
                n0 = len(s.lines); s.dummy(s.pre2); flush += s.lines[n0:]; del s.lines[n0:]
            if flush: flush.append(w)
            else: sh[n - 1].append(w)
            if b in (3, 7):
                if not s.nobar: sh[0].insert(0, "s_barrier")
                if s.instr == 3:
                    sh[0].insert(1, "s_memrealtime s[72:73]\ns_memtime s[74:75]\ns_waitcnt lgkmcnt(0)\ns_mov_b32 m0, s76\ns_nop 1\nv_writelane_b32 v46, s72, m0\nv_writelane_b32 v47, s74, m0\ns_add_u32 s76, s76, 1")
        else:
            sh[n - 1].append("s_waitcnt lgkmcnt(0)")
        if s.instr == 4 and do_qk:
            if b == 7: sh[1].append("s_memrealtime s[72:73]")
            if b == 0 and not first:
                sh[1].append("s_sub_u32 s75, s72, s74")
                sh[2].append("s_mov_b32 s74, s72")
                sh[4].append("s_cmp_gt_i32 s75, 310\ns_cselect_b32 s75, 1, 0\ns_cselect_b32 s79, s72, s77")
                sh[5].append("s_add_u32 s76, s76, s75")
                sh[6].append("s_min_u32 s77, s77, s79")
        if last:
            sh[31 if any("s_add" in x for x in sh[31]) else 30].append("s_sub_u32 s%d, s%d, 1" % (sCNT, sCNT))
        ms = None
        if do_pv and do_qk and s.msum_qb:
            place = {4: {1: 0, 3: 1, 5: 2, 7: 3}, 2: {1: 0, 5: 1}}[len(s.msum_qb)]
            if b in place: ms = s.msums(par, s.msum_qb[place[b]])
            if s.smpl == 2 and len(s.msum_qb) == 4:
                x = s.msums(par, b >> 1); k = len(x) // 2
                ms = x[k * (b & 1): k * (b & 1) + k]
        for pos in range(n):
            m = None
            if first: m = s.qk(buf, pos >> 2, pos & 3, rev=s.qo == "rsn" and pos & 4)
            else:
                ch, k = pos >> 2, pos & 3
                isq, qb = [((1, 0), (0, 0), (1, 1), (0, 1), (1, 2), (0, 2), (1, 3), (0, 3)),
                           ((1, 0), (1, 1), (1, 2), (1, 3), (0, 0), (0, 1), (0, 2), (0, 3)),
                           ((1, 0), (1, 1), (0, 0), (0, 1), (1, 2), (1, 3), (0, 2), (0, 3))][s.order][ch]
                rev = s.snake and (qb & 1)
                if s.qo:
                    path = PATHS[s.qo if pos < 16 else s.po]
                    qb, k = path[pos & 15]
                    if pos < 16: m = s.qk(buf, qb, k, start=all(q != qb for q, _ in path[:pos]))
                    else: m = s.pv(buf, par, qb, b, k)
                elif isq:
                    if do_qk: m = s.qk(buf, qb, k, rev=rev)
                elif do_pv: m = s.pv(buf, par, qb, b, 3 - k if rev else k)
            if m: s.A(m)
            for o in sh[pos] + mem[pos] + va[pos]: s.A(o)
            if extra:
                for o in extra(pos): s.A(o)
            if s.pad and m: s.A("s_nop %d" % (s.pad - 1))
            if s.padn and not first and do_qk and (pos & 1) and (pos >> 1) % (16 // s.padn) == 0: s.A("s_nop 0")
            if ms is not None and pos == s.mspos:
                for x in ms: s.A(x)
        for o in flush: s.A(o)

    def tail2(s):
        assert s.pvswap and s.sp
        chains = [(qb, 0) for qb in range(4)] + [(qb, db) for qb in range(4) for db in (1, 2, 3)] + [(qb, db) for qb in range(4) for db in (4, 5, 6, 7)]
        vset = [("a", aV(0, 0)), ("a", aV(1, 0)), ("a", aK(0, 0)), ("a", aK(1, 0)), ("a", aV(0, 0)), ("v", 128), ("v", 144), ("v", 160)]
        reg = (0, 3, 1, 2)
        RB = (176, 184, 64, 72)
        RI = vE
        def mf(n, k):
            qb, db = chains[n]
            ks = 3 - k if n & 1 else k
            o = R("a", aO(qb, db), 4)
            return "%s %s, %s, %s, %s" % (MF, o, R("v", vP(1, qb, ks), 4), R(vset[db][0], vset[db][1] + 4 * ks, 4), o)
        def vrd(db, r):
            ks, u = r >> 1, r & 1
            return "ds_read_b64_tr_b16 %s, v%d offset:%d" % (R(vset[db][0], vset[db][1] + 4 * ks + 2 * u, 2), vV, (2 + (ks >> 1)) * SLOT + (2 * (ks & 1) + u) * 256 + db * 32)
        def wr(n, p):
            qb, db = chains[n]
            o = aO(qb, db) + 2 * p
            b = reg[qb] * (SLOT // 256) + 2 * p
            return "ds_write2st64_b32 v%d, a%d, a%d offset0:%d offset1:%d" % (vW + (db & 3), o, o + 1, b, b + 1)
        units = [(qb, h, i) for h in range(2) for qb in range(4) for i in range(2)]
        def rd(u, x):
            qb, h, i = units[u]
            return "ds_read_b128 %s, v%d offset:%d" % (R("v", RB[u % 4] + 4 * x, 4), (vOR, vBP + 1)[x], reg[qb] * SLOT + i * 512)
        def fin(u):
            qb, h, i = units[u]
            b = RB[u % 4]
            ops = []
            for j in range(4):
                ops += ["v_mul_f32 v%d, v%d, v%d" % (b + 2 * j + x, b + 2 * j + x, RI + 2 * qb + i) for x in range(2)]
                if j: ops.append("v_cvt_pk_bf16_f32 v%d, v%d, v%d" % (b + j - 1, b + 2 * j - 2, b + 2 * j - 1))
            ops.append("v_cvt_pk_bf16_f32 v%d, v%d, v%d" % (b + 3, b + 6, b + 7))
            ops.append("buffer_store_dwordx4 %s, v%d, %s, s%d offen offset:%d %s" % (R("v", b, 4), vOA, R("s", sO, 4), sQB + qb, i * 512 + h * 128, s.st))
            return ops
        M = [("s", x) for x in s.msums(1, 0) + s.msums(1, 1) + s.msums(1, 2)]
        for n in range(32):
            M += [((n, k), mf(n, k)) for k in range(4)]
            if n == 0: M += [("s", x) for x in s.msums(1, 3)]
        at = {t: g for g, (t, x) in enumerate(M) if t != "s"}
        NG = len(M)
        fixed = [[] for _ in range(NG + 8)]
        scal = [[] for _ in range(NG + 8)]
        left = [s.sm_op(k, q, i, 1, 7) for g, k, q, i in sorted(s.sm_table(False)) if g >= 32]
        for i, x in enumerate(left): fixed[i].append(x)
        scal[0].append("s_mov_b32 s%d, %s" % (sT, f32(s.thr)))
        wdone = {}
        for n in range(32):
            for p in range(2):
                g = at[(n + 1, s.wpos[p])] if n < 31 else NG
                fixed[g].append(wr(n, p)); wdone[n] = g
        scal[at[(3, s.wpos[0])]].append("s_waitcnt vmcnt(%d)" % (-2 * s.s0))
        scal[at[(4, s.wpos[0])]].append("s_waitcnt vmcnt(%d)" % max(0, -2 * s.s0 - 4))
        avail = [wdone[max(n for n in range(32) if chains[n][0] == qb and chains[n][1] >> 2 == h)] for qb, h, i in units]
        vq = []
        for db in range(1, 8):
            first = min(n for n in range(32) if chains[n][1] == db)
            order = range(8) if not first & 1 else (6, 7, 4, 5, 2, 3, 0, 1)
            vq += [(at[(3, 3)] if db == 4 else 0, vrd(db, r)) for r in order]
        misc = []
        for qb in range(4):
            e = (8, 10, 12, at[(2, 0)])[qb]
            misc += [(e, "v_add_f32 v%d, v%d, v%d" % (vL(qb), vL(qb), vL(qb) + 1)), (e + 1, "v_rcp_f32 v%d, v%d" % (vT + qb, vL(qb)))]
        for qb in range(4):
            misc += [(0, "ds_bpermute_b32 v%d, v%d, v%d offset:%d" % (RI + 2 * qb + i, vBP, vT + qb, 8 * i)) for i in range(2)]
        misc += [(0, "v_add_f32 v%d, v%d, v%d" % (vT + 5, vL(0), vL(1))), (0, "v_add_f32 v%d, v%d, v%d" % (vT + 6, vL(2), vL(3))),
                 (0, "v_add_f32 v%d, v%d, v%d" % (vT + 5, vT + 5, vT + 6)), (0, "v_cmp_nge_f32 vcc, s%d, v%d" % (sT, vT + 5))]
        T = []
        nrd = 0; rdat = {}; cur = 0; ops = fin(0); lastst = {}
        cost = lambda x: 2 if x.startswith(("v_exp", "v_rcp")) else 1
        for g in range(NG + 1):
            if g < NG: T.append(M[g][1])
            T += scal[g] + fixed[g]
            used = sum(cost(x) for x in fixed[g])
            budget = s.tb if g < NG else 1000
            nv = 0
            while used < budget:
                u = nrd >> 1
                if u < 16 and avail[u] <= g and (u < 4 or lastst.get(u - 4, 1000) < g or g == NG and cur > u - 4):
                    T.append(rd(u, nrd & 1)); rdat[u] = g; nrd += 1
                elif misc and misc[0][0] <= g and (nv or not vq or len(vq) < 36):
                    x = misc.pop(0)[1]; T.append(x); used += cost(x) - 1
                elif any(e <= g for e, x in vq) and nv < s.tnv:
                    T.append(vq.pop([e <= g for e, x in vq].index(True))[1]); nv += 1
                elif cur < 16 and nrd >= 2 * cur + 2 and (rdat[cur] + s.tlat <= g or g == NG) and not misc:
                    T.append(ops.pop(0))
                    if not ops:
                        lastst[cur] = g; cur += 1
                        if cur < 16: ops = fin(cur)
                else: break
                used += 1
            if s.tst and g < NG and M[g][0] in [(n, 3) for n in (3, 11, 19, 27, 31)]:
                j = (3, 11, 19, 27, 31).index(M[g][0][0])
                T.append("s_memtime s[%d:%d]" % (48 + 2 * j, 49 + 2 * j))
        assert cur == 16 and not vq and not misc
        for qb in range(4):
            assert T.index(rd(2 * qb + 1, 1)) < T.index(wr(16 + 4 * qb, 0))
        return T

    def tail3(s):
        assert s.pvswap and s.sp and not s.ones1
        if s.tord == 0: chains = [(qb, 0) for qb in range(4)] + [(qb, db) for qb in range(4) for db in (1, 2, 3)]
        else: chains = [(qb, db) for db in (0, 1) for qb in range(4)] + [(qb, db) for qb in range(4) for db in (2, 3)]
        chains += [(qb, db) for qb in range(4) for db in (4, 5, 6, 7)]
        vset = [("a", aV(0, 0)), ("a", aV(1, 0)), ("a", aK(0, 0)), ("a", aK(1, 0)), ("a", aV(0, 0)), ("v", 128), ("v", 144), ("v", 160)]
        reg = (0, 3, 1, 2)
        X = (64, 72)
        W = (176, 184, 100, 108)
        RB = (48, 52, 116, 120)
        def mf(n, k):
            qb, db = chains[n]
            ks = 3 - k if n & 1 else k
            o = R("a", aO(qb, db), 4)
            return "%s %s, %s, %s, %s" % (MF, o, R("v", vP(1, qb, ks), 4), R(vset[db][0], vset[db][1] + 4 * ks, 4), o)
        def vrd(db, r):
            ks, u = r >> 1, r & 1
            return "ds_read_b64_tr_b16 %s, v%d offset:%d" % (R(vset[db][0], vset[db][1] + 4 * ks + 2 * u, 2), vV, (2 + (ks >> 1)) * SLOT + (2 * (ks & 1) + u) * 256 + db * 32)
        M = [("s", x) for x in s.msums(1, 0) + s.msums(1, 1) + s.msums(1, 2)]
        for n in range(32):
            M += [((n, k), mf(n, k)) for k in range(4)]
            if n == 0: M += [("s", x) for x in s.msums(1, 3)]
        at = {t: g for g, (t, x) in enumerate(M) if t != "s"}
        NG = len(M)
        fixed = [[] for _ in range(NG + 1)]
        scal = [[] for _ in range(NG + 1)]
        left = [s.sm_op(k, q, i, 1, 7) for g, k, q, i in sorted(s.sm_table(False)) if g >= 32]
        for i, x in enumerate(left): fixed[i].append(x)
        scal[0].append("s_mov_b32 s%d, %s" % (sT, f32(s.thr)))
        rinv = {}
        for qb in range(4):
            e = (6, 8, 10, at[(2, 0)])[qb]
            fixed[e].append("v_add_f32 v%d, v%d, v%d" % (vL(qb), vL(qb), vL(qb) + 1))
            fixed[e + 1].append("v_rcp_f32 v%d, v%d" % (vT + qb, vL(qb)))
            for gq in range(1, 4):
                fixed[e + 1 + 2 * gq].append("v_mov_b32_dpp v%d, v%d row_shl:%d row_mask:0x%x bank_mask:0xf" % (vT + qb, vT + qb, 4 * gq, 1 << gq))
            rinv[qb] = e + 9
        e = at[(3, 0)]
        fixed[e] += ["v_add_f32 v%d, v%d, v%d" % (vT + 5, vL(0), vL(1)), "v_add_f32 v%d, v%d, v%d" % (vT + 6, vL(2), vL(3))]
        fixed[e + 1].append("v_add_f32 v%d, v%d, v%d" % (vT + 5, vT + 5, vT + 6))
        fixed[e + 2].append("v_cmp_nge_f32 vcc, s%d, v%d" % (sT, vT + 5))
        scal[at[(5, 0)]].append("s_waitcnt vmcnt(%d)" % max(0, -2 * s.s0 - 4))
        vq = []
        for db in range(1, 8):
            first = min(n for n in range(32) if chains[n][1] == db)
            order = range(8) if not first & 1 else (6, 7, 4, 5, 2, 3, 0, 1)
            vq += [(at[(3, 3)] + 1 if db == 4 else 0, at[(first, j >> 1)], vrd(db, r)) for j, r in enumerate(order)]
        groups = [(qb, h) for h in range(2) for qb in range(4)]
        units = []
        for gi, (qb, h) in enumerate(groups):
            for p in range(2): units.append((max(chains.index((qb, 4 * h + 2 * p + e2)) for e2 in range(2)), gi, p))
        units.sort()
        cq = []
        for ui, (_, gi, p) in enumerate(units):
            qb, h = groups[gi]
            w = W[gi & 3]
            for e2 in range(2):
                db = 4 * h + 2 * p + e2
                rdy = max(at[(chains.index((qb, db)), 3)] + 1 + s.clag, rinv[qb])
                x = X[ui & 1] + 4 * e2
                cq += [(rdy, "v_accvgpr_read_b32 v%d, a%d" % (x + r, aO(qb, db) + r), []) for r in range(4)]
                cq += [(rdy, "v_mul_f32_dpp v%d, v%d, v%d row_newbcast:%d row_mask:0xf bank_mask:0xf" % (x + r, vT + qb, x + r, r), []) for r in range(4)]
            for r in range(4):
                rel = []
                if p:
                    rel.append(("w", "ds_write_b64 v%d, %s offset:%d" % (vW, R("v", w + 2 * r, 2), reg[qb] * SLOT + h * 2048 + r * 128), None))
                    if r & 1:
                        i = r >> 1
                        rel += [("r", "ds_read_b64_tr_b16 %s, v%d offset:%d" % (R("v", RB[(2 * gi + i) & 3] + 2 * x, 2), (vOR, vBP + 1)[x], reg[qb] * SLOT + h * 2048 + i * 256), (gi, i) if x else None) for x in range(2)]
                cq.append((rdy, "v_cvt_pk_bf16_f32 v%d, v%d, v%d" % (w + 2 * r + p, X[ui & 1] + r, X[ui & 1] + 4 + r), rel))
        def st(gi, i):
            qb, h = groups[gi]
            return "buffer_store_dwordx4 %s, v%d, %s, s%d offen offset:%d %s" % (R("v", RB[(2 * gi + i) & 3], 4), vOA, R("s", sO, 4), sQB + qb, i * 512 + h * 128, s.st)
        T = []; sq = []; oq = []
        cost = lambda x: 2 if x.startswith(("v_exp", "v_rcp")) else 1
        def popo(g):
            k, o, tag = oq.pop(0); T.append(o)
            if tag: sq.append((g + s.tlat, st(*tag)))
            return k
        for g in range(NG):
            T.append(M[g][1])
            T += scal[g]
            used = 0
            ok = [e <= g for e, d, x in vq]
            need = max([j + 1 - (d - s.vlat - g) for j, (e, d, x) in enumerate(vq)] + [0])
            if any(ok) and need >= 1:
                for _ in range(min(2, need)):
                    ok = [e <= g for e, d, x in vq]
                    if any(ok): T.append(vq.pop(ok.index(True))[2]); used += 1
            elif sq and sq[0][0] <= g: T.append(sq.pop(0)[1]); used += s.cst
            elif oq:
                k = popo(g); used += 3 if k == "w" else 1
                if k == "r" and oq and oq[0][0] == "r": popo(g); used += 1
            elif any(ok):
                T.append(vq.pop(ok.index(True))[2]); used += 1
                ok = [e <= g for e, d, x in vq]
                if any(ok) and not fixed[g] and not (cq and cq[0][0] <= g): T.append(vq.pop(ok.index(True))[2]); used += 1
            T += fixed[g]
            used += sum(cost(x) for x in fixed[g])
            budget = s.tb[g % len(s.tb)] if isinstance(s.tb, tuple) else s.tb
            if s.tad:
                nr = next((j for j, x in enumerate(cq) if x[0] > g), len(cq))
                nx = cq[nr][0] - g if nr < len(cq) else NG - g
                budget = max(2, min(s.tb, used + -(-nr // max(1, min(nx + s.tad - 1, NG - g)))))
            while used < budget and cq and cq[0][0] <= g:
                e, o, rel = cq.pop(0); T.append(o); oq += rel; used += 1
            if s.tst and M[g][0] in [(n, 3) for n in (3, 11, 19, 27, 31)]:
                j = (3, 11, 19, 27, 31).index(M[g][0][0])
                T.append("s_memtime s[%d:%d]" % (48 + 2 * j, 49 + 2 * j))
        while oq: popo(NG)
        for e, o, rel in cq: T.append(o); oq += rel
        while sq and len(sq) + sum(1 for k, o, t in oq if t) > 2: T.append(sq.pop(0)[1])
        oq.sort(key=lambda x: x[0] == "r")
        while oq: popo(NG)
        T += [x for g, x in sq]
        assert not vq
        rds = [k for k, x in enumerate(T) if x.startswith("ds_read_b64_tr") and x.split()[2] in ("v%d" % vOR, "v%d" % (vBP + 1))]
        for u in range(12): assert T.index(st(u >> 1, u & 1)) + 2 < rds[2 * u + 8]
        for db in range(1, 8):
            n = min(n for n in range(32) if chains[n][1] == db)
            assert max(T.index(vrd(db, r)) for r in range(8)) < T.index(mf(n, 3))
        wrs = [k for k, x in enumerate(T) if x.startswith("ds_write_b64")]
        cvs = [k for k, x in enumerate(T) if x.startswith("v_cvt_pk")]
        for gi in range(4): assert wrs[4 * gi + 3] < min(k for k in cvs if T[k].split()[1] == "v%d," % W[gi] and k > wrs[4 * gi])
        return T

    def dummy(s, n):
        for i in range(n):
            s.A("%s v[120:123], v[%d:%d], v[%d:%d], %s" % (MF, 104 + 4 * (i & 1), 107 + 4 * (i & 1), 112 + 4 * ((i >> 1) & 1), 115 + 4 * ((i >> 1) & 1), "v[120:123]" if i & 3 else "0"))
    def stamp(s, idx, force=False):
        if s.tst and idx < 5: return
        if s.pst and not force: return
        if s.stamps: s.A("%s s[%d:%d]" % ("s_memrealtime" if s.stamps == 2 else "s_memtime", 48 + 2 * idx, 49 + 2 * idx))

    def build(s):
        A = s.A
        A("; @launch grid=(256,1,1) block=(256,1,1) lds=%d" % LDS_BYTES)
        A('.amdgcn_target "amdgcn-amd-amdhsa--gfx950"')
        A(".text")
        A(".globl %s\n.p2align 8\n.type %s,@function\n%s:" % (KN, KN, KN))
        A("s_cmp_ge_u32 s2, 256\ns_cbranch_scc1 L_end")
        if s.stamps: A("s_memrealtime s[40:41]\ns_memtime s[44:45]")
        A("s_load_dwordx4 s[24:27], s[0:1], 0\ns_load_dwordx4 s[28:31], s[0:1], 16")
        if s.stamps: A("s_load_dwordx2 s[64:65], s[0:1], 40")
        if s.warm:
            A("s_getpc_b64 s[36:37]\nL_pc:")
            A("v_lshlrev_b32 v1, 7, v0\nv_min_u32 v1, L_end-L_pc, v1\nglobal_load_dword v11, v1, s[36:37]")
        A("v_lshrrev_b32 v1, 6, v0\nv_and_b32 v0, 63, v0\ns_nop 0\nv_readfirstlane_b32 s%d, v1" % sW)
        A("v_lshrrev_b32 v20, 4, v0\nv_and_b32 v21, 15, v0")
        A("s_mul_i32 s%d, s%d, %d" % (sWL, sW, 4 * PITCH))
        if s.lin:
            A("s_lshl_b32 s%d, s%d, 12\nv_lshlrev_b32 v22, 4, v0\nv_add_u32 v22, s%d, v22" % (sT, sW, sT))
        else:
            A("v_lshlrev_b32 v22, 12, v20\nv_lshl_add_u32 v22, v21, 4, v22")
            A("s_lshr_b32 s%d, s%d, 1\ns_lshl_b32 s%d, s%d, 11\ns_and_b32 s%d, s%d, 1\ns_lshl_b32 s%d, s%d, 9\ns_add_u32 s%d, s%d, s%d" % (sT, sW, sT, sT, sT + 1, sW, sT + 1, sT + 1, sT, sT, sT + 1))
            A("v_add_u32 v22, s%d, v22" % sT)
        for i in range(4):
            goff = i * 1024 if s.lin else (4 * (i & 1) + (i >> 1)) * 256
            A("v_add_u32 v%d, %d, v22" % (vDMA + i, goff - PITCH * i + BIASB))
        A("s_lshl_b32 s%d, s%d, 14" % (sT, sW))
        A("v_lshlrev_b32 v23, 2, v20\nv_xor_b32 v23, v23, v21\nv_lshlrev_b32 v23, 4, v23\nv_lshl_add_u32 v23, v20, 8, v23\nv_add_u32 v%d, s%d, v23" % (vQA, sT))
        if s.newtail == 3:
            A("v_bfe_u32 v23, v0, 3, 1\nv_lshl_add_u32 v23, v20, 2, v23\nv_and_b32 v24, 3, v0\nv_lshlrev_b32 v24, 5, v24\nv_lshl_add_u32 v23, v23, 8, v24")
            A("v_bfe_u32 v24, v0, 2, 1\nv_lshl_add_u32 v23, v24, 4, v23\nv_add_u32 v%d, s%d, v23" % (vOA, sT))
        elif s.newtail == 2:
            A("v_bfe_u32 v23, v0, 3, 1\nv_lshl_add_u32 v23, v20, 2, v23\nv_lshlrev_b32 v%d, 2, v23\nv_and_b32 v24, 7, v0\nv_lshlrev_b32 v24, 4, v24\nv_lshl_add_u32 v23, v23, 8, v24\nv_add_u32 v%d, s%d, v23" % (vBP, vOA, sT))
        elif s.operm:
            A("v_lshrrev_b32 v23, 3, v0\nv_and_b32 v24, 3, v0\nv_lshlrev_b32 v24, 5, v24\nv_lshl_add_u32 v23, v23, 8, v24\nv_bfe_u32 v24, v0, 2, 1\nv_lshl_add_u32 v23, v24, 4, v23\nv_add_u32 v%d, s%d, v23" % (vOA, sT))
        else:
            A("v_lshrrev_b32 v23, 3, v0\nv_and_b32 v24, 7, v0\nv_lshlrev_b32 v24, 4, v24\nv_lshl_add_u32 v23, v23, 8, v24\nv_add_u32 v%d, s%d, v23" % (vOA, sT))
        for qb in range(4): A("s_mov_b32 s%d, %d" % (sQB + qb, qb * 4096))
        if s.pst == 1: s.stamp(0, True)
        A("s_waitcnt lgkmcnt(0)")
        if s.pst == 1: s.stamp(1, True)
        hd = 2
        if s.hmap == 1:
            hd = 33; A("s_xor_b32 s33, s2, 1")
        if s.hmap == 2:
            hd = 33; A("s_and_b32 s33, s2, 7\ns_lshl_b32 s33, s33, 5\ns_lshr_b32 s36, s2, 3\ns_add_u32 s33, s33, s36")
        A("s_lshl_b32 s%d, s%d, 19" % (sT, hd))
        A("s_sub_u32 s26, s26, %d\ns_subb_u32 s27, s27, 0\ns_sub_u32 s28, s28, %d\ns_subb_u32 s29, s29, 0" % (BIASB, BIASB))
        A("s_add_u32 s%d, s26, s%d\ns_addc_u32 s%d, s27, 0\ns_mov_b32 s%d, %d\ns_mov_b32 s%d, 0x20000" % (sK, sT, sK + 1, sK + 2, 0x80000 + BIASB, sK + 3))
        A("s_add_u32 s%d, s28, s%d\ns_addc_u32 s%d, s29, 0\ns_mov_b32 s%d, %d\ns_mov_b32 s%d, 0x20000" % (sV, sT, sV + 1, sV + 2, 0x80000 + BIASB, sV + 3))
        A("s_lshl_b32 s%d, s%d, 16" % (sT, hd))
        A("s_add_u32 s%d, s24, s%d\ns_addc_u32 s%d, s25, 0\ns_mov_b32 s%d, 0x10000\ns_mov_b32 s%d, 0x20000" % (sQ, sT, sQ + 1, sQ + 2, sQ + 3))
        A("s_add_u32 s%d, s30, s%d\ns_addc_u32 s%d, s31, 0\ns_mov_b32 s%d, 0x10000\ns_mov_b32 s%d, 0x20000" % (sO, sT, sO + 1, sO + 2, sO + 3))
        A("s_mov_b32 s%d, 0" % sPASS)
        for qb in range(4): A("v_mov_b32 v%d, 0xff800000" % vM(qb))
        A("L_start:")
        if s.rot: A("s_mul_i32 s%d, s2, %d\ns_and_b32 s%d, s%d, 31\ns_lshl_b32 s%d, s%d, 14\ns_mov_b32 s%d, s%d" % (sSOK, s.rot, sSOK, sSOK, sSOK, sSOK, sSOV, sSOK))
        else: A("s_mov_b32 s%d, 0\ns_mov_b32 s%d, 0" % (sSOK, sSOV))
        def group(isK, off, n=4):
            return [s.m0set(off), "s_nop 0"] + [s.dma(isK, i) for i in range(n)] + ([s.adv(isK)] if n == 4 else [])
        PERM = (0, 3, 1, 2)
        def qgroup(qb):
            out = []
            for i in range(4):
                out.append(["s_add_u32 m0, s%d, %d" % (sWL, VBASE + qb * SLOT + i * PITCH - PERM[i] * 1024), "s_nop 0",
                            "buffer_load_dwordx4 v%d, %s, s%d offen offset:%d %s lds" % (vQA, R("s", sQ, 4), sQB + qb, PERM[i] * 1024, s.qld)])
            return out
        def pieces(isK, off, n=4):
            out = [[s.dma(isK, i)] for i in range(n)]
            if n: out[0] = [s.m0set(off), "s_nop 0"] + out[0]
            if n == 4: out[3].append(s.adv(isK))
            return out
        Q = [("K0", p) for p in pieces(True, 0)]
        for qb in range(4): Q += [("Q%d" % qb, p) for p in qgroup(qb)]
        Q += [("K1", p) for p in pieces(True, SLOT)]
        for p in range(s.npre):
            isK, off, piece = s.seq(p, 1)
            ops = ([s.m0set(off), "s_nop 0"] if piece == 0 else []) + [s.dma(isK, piece)] + ([s.adv(isK)] if piece == 3 else [])
            Q.append((("K2", "V0", "V1", "K3")[p >> 2], ops))
        if s.vtlb: Q.insert(s.vtlb, ("X", ["buffer_load_dword v127, v%d, %s, 0 offen" % (vDMA, R("s", sV, 4))]))
        if s.otlb: Q.insert(s.otlb, ("X", ["buffer_load_dword v10, v%d, %s, 0 offen" % (vOA, R("s", sO, 4))]))
        st = {"n": 0}
        def issue(k=1):
            for _ in range(k):
                if st["n"] < len(Q):
                    if s.lim and st["n"] >= s.lim: A("s_waitcnt vmcnt(%d)" % (s.lim - 1))
                    for x in Q[st["n"]][1]: A(x)
                    st["n"] += 1
        def waitfor(tag):
            last = max(i for i, x in enumerate(Q) if x[0] == tag)
            if st["n"] <= last: issue(last + 1 - st["n"])
            A("s_waitcnt vmcnt(%d)" % (st["n"] - 1 - last))
        if s.pst == 1: s.stamp(2, True)
        issue(s.nfirst)
        if s.pst == 1: s.stamp(3, True)
        A("v_and_b32 v22, 3, v0\nv_bfe_u32 v23, v0, 2, 1\nv_lshl_add_u32 v22, v22, 1, v23\nv_and_b32 v23, 8, v0\nv_add_u32 v22, v22, v23")
        A("v_mul_u32_u24 v22, %d, v22\nv_lshrrev_b32 v23, 4, v0\nv_lshl_add_u32 v%d, v23, 4, v22" % (PITCH, vK))
        A("v_bfe_u32 v22, v0, 2, 2\nv_bfe_u32 v23, v0, 4, 1\nv_lshl_add_u32 v22, v22, 1, v23\nv_lshrrev_b32 v23, 5, v0\nv_lshl_add_u32 v22, v23, 3, v22")
        A("v_mul_u32_u24 v22, %d, v22\nv_and_b32 v23, 3, v0\nv_lshl_add_u32 v22, v23, 3, v22\nv_add_u32 v%d, %d, v22" % (PITCH, vV, VBASE))
        A("v_bfe_u32 v22, v0, 2, 2\nv_lshlrev_b32 v22, 1, v22\nv_mov_b32 v23, 0x78\nv_lshrrev_b32 v22, v22, v23\nv_and_b32 v22, 3, v22")
        A("v_mul_u32_u24 v22, %d, v22\nv_and_b32 v23, 3, v0\nv_lshl_add_u32 v22, v23, 8, v22\nv_lshrrev_b32 v24, 4, v0\nv_lshl_add_u32 v22, v24, 4, v22" % PITCH)
        A("v_add_u32 v22, s%d, v22\nv_add_u32 v22, %d, v22" % (sWL, VBASE))
        for t in range(4): A("v_xor_b32 v24, %d, v23\nv_lshl_add_u32 v%d, v24, 6, v22" % (t, vQR + t))
        if s.newtail == 3:
            sh = 4 if s.w128 else 3
            A("v_lshrrev_b32 v%d, 4, v0\nv_lshlrev_b32 v%d, 9, v%d\nv_add_u32 v%d, s%d, v%d" % (vE, vE + 1, vE, vE + 1, sWL, vE + 1))
            A("v_and_b32 v%d, 1, v%d\nv_lshlrev_b32 v%d, 2, v%d" % (vE, vE, vE, vE))
            A("v_and_b32 v%d, 15, v0\nv_xor_b32 v%d, v%d, v%d\nv_lshl_add_u32 v%d, v%d, %d, v%d" % (vE + 2, vE + 2, vE + 2, vE, vW, vE + 2, sh, vE + 1))
            A("v_bfe_u32 v%d, v0, 1, 1\nv_lshl_add_u32 v%d, v%d, %d, v%d" % (vE + 2, vE + 1, vE + 2, 3 if s.w128 else 7, vE + 1))
            A("v_and_b32 v%d, 1, v0\nv_bfe_u32 v%d, v0, 2, 2\nv_lshl_add_u32 v%d, v%d, 3, v%d\nv_xor_b32 v%d, v%d, v%d" % (vE + 2, vE + 3, vE + 2, vE + 2, vE + 3, vE + 2, vE + 2, vE))
            A("v_lshl_add_u32 v%d, v%d, %d, v%d\nv_xor_b32 v%d, 4, v%d\nv_lshl_add_u32 v%d, v%d, %d, v%d" % (vOR, vE + 2, sh, vE + 1, vE + 2, vE + 2, vBP + 1, vE + 2, sh, vE + 1))
        elif s.newtail == 2:
            A("v_bfe_u32 v%d, v0, 4, 1\nv_mul_u32_u24 v%d, 5, v%d\nv_lshrrev_b32 v%d, 4, v0\nv_lshlrev_b32 v%d, 10, v%d" % (vE, vE, vE, vE + 1, vE + 1, vE + 1))
            A("v_and_b32 v%d, 3, v0\nv_lshl_add_u32 v%d, v%d, 2, v%d\nv_add_u32 v%d, s%d, v%d" % (vE + 2, vE + 1, vE + 2, vE + 1, vE + 1, sWL, vE + 1))
            A("v_bfe_u32 v%d, v0, 2, 2\nv_xor_b32 v%d, v%d, v%d" % (vE + 2, vE + 2, vE + 2, vE))
            for e in range(4): A("v_xor_b32 v%d, %d, v%d\nv_lshl_add_u32 v%d, v%d, 4, v%d" % (vW + e, 4 * e, vE + 2, vW + e, vW + e, vE + 1))
            A("v_and_b32 v%d, 7, v0\nv_lshlrev_b32 v%d, 1, v%d\nv_xor_b32 v%d, v%d, v%d" % (vE + 2, vE + 2, vE + 2, vE + 2, vE + 2, vE))
            A("v_lshlrev_b32 v%d, 6, v%d\nv_add_u32 v%d, s%d, v%d" % (vE + 1, vBP, vE + 1, sWL, vE + 1))
            A("v_lshl_add_u32 v%d, v%d, 4, v%d\nv_xor_b32 v%d, 1, v%d\nv_lshl_add_u32 v%d, v%d, 4, v%d" % (vOR, vE + 2, vE + 1, vE + 2, vE + 2, vBP + 1, vE + 2, vE + 1))
        else:
            A("v_and_b32 v%d, 15, v0\nv_lshrrev_b32 v%d, 5, v0\nv_xor_b32 v%d, v%d, v%d\nv_lshlrev_b32 v%d, 4, v%d" % (vE, vE + 1, vE + 1, vE + 1, vE, vE + 1, vE + 1))
            A("v_lshl_add_u32 v%d, v%d, 8, v%d\nv_bfe_u32 v%d, v0, 4, 1\nv_lshl_add_u32 v%d, v%d, 3, v%d" % (vE + 1, vE, vE + 1, vE, vE + 1, vE, vE + 1))
            for db in range(8): A("v_xor_b32 v%d, %d, v%d\nv_add_u32 v%d, s%d, v%d" % (vW + db, db * 32, vE + 1, vW + db, sWL, vW + db))
            A("v_lshrrev_b32 v%d, 3, v0\nv_and_b32 v%d, 7, v0\nv_xor_b32 v%d, v%d, v%d\nv_lshlrev_b32 v%d, 4, v%d" % (vE, vE + 1, vE + 1, vE + 1, vE, vE + 1, vE + 1))
            A("v_lshl_add_u32 v%d, v%d, 8, v%d\nv_add_u32 v%d, s%d, v%d" % (vE + 1, vE, vE + 1, vOR, sWL, vE + 1))
        c = 1.4426950408889634 / (128.0 ** 0.5)
        A("s_mov_b32 s%d, %s\ns_mov_b32 s%d, %s" % (sC, f32(c), sC + 1, f32(c)))
        A("s_mov_b32 s%d, 7" % sCNT)
        A("s_mov_b32 s%d, 0x07060302" % sSEL)
        if s.sp:
            A("v_and_b32 v22, %d, v0\nv_cmp_gt_u32 vcc, 2, v22\nv_mov_b32 v23, 0x3f803f80\nv_and_b32 v22, 1, v0\nv_cndmask_b32 v%d, 0, v23, vcc" % (15 if s.ones1 else 3, vONE))
            A("v_cmp_eq_u32 vcc, 0, v22\nv_mov_b32 v23, 0x44444444\nv_mov_b32 v24, 0xeeeeeeee\nv_cndmask_b32 v%d, v24, v23, vcc" % vIDX)
        elif s.ones4:
            A("v_and_b32 v22, 3, v0\nv_cmp_eq_u32 vcc, 0, v22\nv_mov_b32 v23, 0x3f803f80\ns_nop 0\nv_cndmask_b32 v%d, 0, v23, vcc" % vONE)
        else:
            A("v_mov_b32 v%d, 0x3f803f80" % vONE)
        for i in range(1, 4): A("v_mov_b32 v%d, v%d" % (vONE + i, vONE))
        if s.pst == 1: s.stamp(4, True)
        for i in range(128): A("v_accvgpr_write_b32 a%d, 0" % i)
        for i in range(16): A("v_mov_b32 v%d, 0" % (vL(0) + i))
        for qb in range(4): A("v_mov_b32 v%d, 0" % vA(qb))
        s.stamp(0)
        if s.pst == 1:
            s.stamp(5, True)
            A("s_waitcnt vmcnt(%d)" % (s.nfirst - 1))
            s.stamp(6, True)
        if s.pre0 or s.pre1 or s.pre2:
            A("s_mov_b32 s85, 0x9e3779b1\nv_add_u32 v100, 1, v0")
            for i in range(16):
                A("v_mul_lo_u32 v100, v100, s85\nv_and_b32 v%d, 0xbfffbfff, v100\nv_or_b32 v%d, 0x3c003c00, v%d" % (104 + i, 104 + i, 104 + i))
            s.dummy(s.pre0)
        issue(s.nsecond - st["n"])
        for qb in range(4):
            if qb and s.pre1: s.dummy(s.pre1)
            waitfor("Q%d" % qb)
            if qb == 0: s.stamp(1)
            for t in range(4): A("ds_read_b128 %s, v%d offset:%d" % (R("v", 128 + 4 * t, 4), vQR + t, qb * SLOT))
            if qb == 0:
                A("s_barrier")
                for t in range(4): A(s.kread(0, 0, 0, t))
                if s.prepass == 2:
                    for t in range(4): A(s.kread(1, 0, 1, t))
            for f in range(4):
                b = 128 + 4 * f
                if f < s.nq[qb] and st["n"] < len(Q) and Q[st["n"]][0] not in ["V%d" % x for x in range(qb, 4)]: issue(1)
                A("s_waitcnt lgkmcnt(%d)" % (3 - f + (4 * s.prepass if qb == 0 else 0)))
                for i in range(4):
                    A("v_lshlrev_b32 v%d, 16, v%d\nv_and_b32 v%d, 0xffff0000, v%d" % (vT + 2 * i, b + i, vT + 2 * i + 1, b + i))
                for i in range(4):
                    A("v_pk_mul_f32 %s, %s, %s" % (R("v", vT + 2 * i, 2), R("v", vT + 2 * i, 2), R("s", sC, 2)))
                for i in range(4):
                    A("v_cvt_pk_bf16_f32 v%d, v%d, v%d" % (vT + 8 + i, vT + 2 * i, vT + 2 * i + 1))
                for i in range(4):
                    A("v_accvgpr_write_b32 a%d, v%d" % (aQ(qb, f) + i, vT + 8 + i))
        s.stamp(2)
        A("s_waitcnt lgkmcnt(0)")
        for rep in range(s.prepass):
            for qb in range(4):
                for t in range(4): A(s.qk(rep, qb, t, zero=True))
                if qb & 1: issue(1)
            A("s_nop 4")
            for qb in range(4):
                S = vS(qb)
                A("v_max3_f32 v%d, v%d, v%d, v%d" % (vM(qb), vM(qb), S, S + 1))
            for qb in range(4):
                S = vS(qb)
                A("v_max3_f32 v%d, v%d, v%d, v%d" % (vM(qb), vM(qb), S + 2, S + 3))
        for sw in ("v_permlane32_swap_b32", "v_permlane16_swap_b32"):
            for qb in range(4): A("v_mov_b32 v%d, v%d" % (vT + qb, vM(qb)))
            for qb in range(4): A("%s v%d, v%d" % (sw, vT + qb, vM(qb)))
            for qb in range(4): A("v_max_f32 v%d, v%d, v%d" % (vM(qb), vM(qb), vT + qb))
            issue(1)
        issue(len(Q))
        A("s_mov_b32 s%d, %s" % (sT, f32(-s.bias)))
        for qb in range(4): A("v_sub_f32 v%d, s%d, v%d" % (vNM(qb), sT, vM(qb)))
        for qb in range(4):
            for i in range(1, 4): A("v_mov_b32 v%d, v%d" % (vNM(qb) + i, vNM(qb)))
        if s.novalu:
            for i in range(128): A("v_accvgpr_read_b32 v%d, a%d" % (128 + i, 128 + (i & 63)))
        if s.nolds:
            for t in range(4): A(s.kread(1, 0, 1, t))
            for bf in range(2):
                for r in range(8): A(s.vread(bf, 2, bf, r))
            A("s_waitcnt lgkmcnt(0)")
        if s.instr == 3: A("s_mov_b32 s76, 0")
        if s.instr == 4: A("s_mov_b32 s76, 0\ns_add_u32 s77, s40, 7000\ns_memrealtime s[74:75]\ns_waitcnt lgkmcnt(0)\ns_add_u32 s74, s74, 200\ns_mov_b32 s78, 0")
        A("s_nop 0")
        s.stamp(3)
        n0 = len(s.lines)
        for b in range(8): s.block(1, b, do_pv=False, first=True)
        s.lines = hazards.pad(s.lines)
        s.stamp(4)
        A(".p2align 6")
        A("L_loop:")
        n0 = len(s.lines)
        for b in range(8): s.block(0, b, last=(b == 7))
        A("s_cbranch_scc1 L_tail")
        n1 = len(s.lines)
        for b in range(8): s.block(1, b)
        body = s.lines[n0:]
        A("s_branch L_loop")
        A("L_tail:")
        n2 = len(s.lines)
        s.stamp(5)
        assert s.sp and len(s.msum_qb) == 4
        def conv(n):
            qb, db = n & 3, n >> 2
            tb = vE + 6 * (n % 4)
            o = aO(qb, db)
            ops = ["v_accvgpr_read_b32 v%d, a%d" % (tb + i, o + i) for i in range(4)]
            ops += ["v_mul_f32 v%d, v%d, v%d" % (tb + i, tb + i, vT + qb) for i in range(4)]
            ops += ["v_cvt_pk_bf16_f32 v%d, v%d, v%d" % (tb + 4 + i, tb + 2 * i, tb + 2 * i + 1) for i in range(2)]
            return ops
        def owrite(n): return "ds_write_b64 v%d, %s offset:%d" % (vW + (n >> 2), R("v", vE + 6 * (n % 4) + 4, 2), (n & 3) * SLOT)
        def oread(h, qb, i):
            return "ds_read_b128 %s, v%d offset:%d" % (R("v", 128 + 32 * h + 8 * qb + 4 * i, 4), vOR, qb * SLOT + i * 2048 + ((h ^ i) * 128))
        def ostore(h, qb, i):
            return "buffer_store_dwordx4 %s, v%d, %s, s%d offen offset:%d %s" % (R("v", 128 + 32 * h + 8 * qb + 4 * i, 4), vOA, R("s", sO, 4), sQB + qb, i * 2048 + h * 128, s.st)
        def lfin(qb): return ["v_add_f32 v%d, v%d, v%d" % (vL(qb), vL(qb), vL(qb) + 1), "v_rcp_f32 v%d, v%d" % (vT + qb, vL(qb))]
        left = [s.sm_op(k, q, i, 1, 7) for g, k, q, i in sorted(s.sm_table(False)) if g >= 32]
        T = []
        m = s.msums(1, 0) + s.msums(1, 1) + s.msums(1, 2)
        for i, x in enumerate(m):
            T.append(x)
            if i == 0: T.append("s_mov_b32 s%d, %s" % (sT, f32(s.thr)))
            if i < len(left): T.append(left[i])
        sh = [[[] for k in range(4)] for n in range(32)]
        ds = [[[] for k in range(4)] for n in range(32)]
        va = [[[] for k in range(4)] for n in range(32)]
        for n in range(32):
            qb, db = n & 3, n >> 2
            if db < 7:
                for u in range(2): ds[n][2 * u].append(s.vread((db + 1) & 1, 2, db + 1, 2 * qb + u))
            if n >= 2:
                c = conv(n - 2)
                for k, (x, y) in enumerate(((0, 3), (3, 6), (6, 8), (8, 10))): va[n][k] += c[x:y]
            if n >= 3: ds[n][1].append(owrite(n - 3))
        sh[3][1].append("s_waitcnt vmcnt(2)")
        sh[5][1].append("s_waitcnt vmcnt(0)")
        for j, qb in enumerate((0, 1, 2)):
            x = lfin(qb); va[0 if j < 1 else 1][(2, 0, 2)[j]].append(x[0]); va[0 if j < 1 else 1][(3, 1, 3)[j]].append(x[1])
        x = lfin(3); va[3][2].append(x[0]); va[3][3].append(x[1])
        va[4][2].append("v_add_f32 v%d, v%d, v%d" % (vT + 5, vL(0), vL(1)))
        va[4][3].append("v_add_f32 v%d, v%d, v%d" % (vT + 6, vL(2), vL(3)))
        va[5][2].append("v_add_f32 v%d, v%d, v%d" % (vT + 5, vT + 5, vT + 6))
        va[5][3].append("v_cmp_nge_f32 vcc, s%d, v%d" % (sT, vT + 5))
        for j in range(8):
            ds[15 + j][3].append(oread(0, j >> 1, j & 1))
            ds[17 + j][2].append(ostore(0, j >> 1, j & 1))
        ds[31][2].append(oread(1, 0, 0)); ds[31][3].append(oread(1, 0, 1))
        for n in range(32):
            qb, db = n & 3, n >> 2
            for k in range(4):
                T.append(s.pv(db & 1, 1, qb, db, k))
                T += sh[n][k] + ds[n][k] + va[n][k]
            if n == 0: T += s.msums(1, 3)
            if s.tst and n in (3, 11, 19, 27, 31): T.append("s_memtime s[%d:%d]" % (48 + 2 * (3, 11, 19, 27, 31).index(n), 49 + 2 * (3, 11, 19, 27, 31).index(n)))
        T += [owrite(29), oread(1, 1, 0), oread(1, 1, 1)] + conv(30) + [ostore(1, 0, 0), ostore(1, 0, 1), owrite(30), oread(1, 2, 0), oread(1, 2, 1)]
        T += conv(31) + [ostore(1, 1, 0), ostore(1, 1, 1), owrite(31), oread(1, 3, 0), oread(1, 3, 1)]
        T += [ostore(1, 2, 0), ostore(1, 2, 1), ostore(1, 3, 0), ostore(1, 3, 1)]
        if s.newtail == 2: T = s.tail2()
        if s.newtail == 3: T = s.tail3()
        if s.nost: T = [x for x in T if not x.startswith("buffer_store")]
        for x in hazards.autowait(T): A(x)
        pre = s.lines[n0:n1]
        s.lines[n2:] = hazards.pad(pre + s.lines[n2:], start=len(pre))[len(pre):]
        s.stamp(6)
        if s.nodma or s.novalu or s.nolds: A("s_branch L_fin")
        A("s_cmp_lg_u32 s%d, 0\ns_cbranch_scc1 L_fin" % sPASS)
        A("s_cmp_lg_u64 vcc, 0\ns_cselect_b32 s%d, 1, 0" % sT)
        A("s_lshl_b32 s%d, s%d, 2\ns_add_u32 s%d, s%d, %d" % (sT + 1, sW, sT + 1, sT + 1, FLAG_OFF))
        A("v_mov_b32 v%d, s%d\nv_mov_b32 v%d, s%d\nv_mov_b32 v%d, %d" % (vT, sT, vT + 1, sT + 1, vT + 2, FLAG_OFF))
        A("ds_write_b32 v%d, v%d\ns_waitcnt lgkmcnt(0)\ns_barrier" % (vT + 1, vT))
        A("ds_read_b128 %s, v%d\ns_waitcnt lgkmcnt(0)" % (R("v", vT + 8, 4), vT + 2))
        A("v_or3_b32 v%d, v%d, v%d, v%d\nv_or_b32 v%d, v%d, v%d\ns_nop 1" % (vT, vT + 8, vT + 9, vT + 10, vT, vT, vT + 11))
        A("v_readfirstlane_b32 s%d, v%d\ns_nop 3\ns_cmp_eq_u32 s%d, 0\ns_cbranch_scc0 L_redo" % (sT, vT, sT))
        A("L_fin:")
        if s.dbg == -1:
            A("s_waitcnt vmcnt(0)")
            A("s_memrealtime s[42:43]\ns_memtime s[46:47]\ns_load_dwordx2 s[64:65], s[0:1], 32\ns_waitcnt lgkmcnt(0)")
            A("s_mov_b32 s68, s64\ns_mov_b32 s69, s65\ns_mov_b32 s70, 256\ns_mov_b32 s71, 0x20000")
            A("s_cmp_ge_u32 s2, 8\ns_cbranch_scc1 L_end\ns_cmp_lg_u32 s3, 0\ns_cbranch_scc1 L_end")
            A("s_lshl_b32 s36, s2, 2\nv_mov_b32 v3, s36\ns_mov_b64 exec, 1")
            A("s_sub_u32 s36, s42, s40\nv_mov_b32 v8, s36\ns_sub_u32 s36, s46, s44\nv_mov_b32 v9, s36")
            A("buffer_store_dword v8, v3, s[68:71], 0 offen\nbuffer_store_dword v9, v3, s[68:71], 0 offen offset:32")
        elif s.probe is not None:
            A("s_waitcnt vmcnt(0)")
            A("s_memrealtime s[42:43]\ns_memtime s[46:47]\ns_waitcnt lgkmcnt(0)")
            A("s_cmp_lg_u32 s2, %d\ns_cbranch_scc1 L_end" % s.probe[3])
            a, b, div = s.probe[:3]
            A("s_sub_u32 s36, s%d, s%d" % (a, b))
            if div == 10: A("s_mul_hi_u32 s36, s36, 429496730")
            if div == 0: A("s_mov_b32 s36, 0")
            if div == -1: A("s_mul_i32 s36, s36, 500")
            A("s_add_u32 s36, s36, 15000\ns_add_u32 s36, s36, s40")
            A("L_spin:\ns_sleep 4\ns_memrealtime s[42:43]\ns_waitcnt lgkmcnt(0)\ns_sub_u32 s37, s42, s36\ns_cmp_lt_i32 s37, 0\ns_cbranch_scc1 L_spin")
        elif s.stamps:
            A("s_waitcnt vmcnt(0)")
            A("s_memrealtime s[42:43]\ns_memtime s[46:47]\ns_getreg_b32 s62, hwreg(HW_REG_XCC_ID)\ns_mov_b32 s63, 0\ns_waitcnt lgkmcnt(0)")
            A("s_mov_b32 s68, s64\ns_mov_b32 s69, s65\ns_mov_b32 s70, 0x100000\ns_mov_b32 s71, 0x20000")
            A("s_lshl_b32 s37, s2, 2\ns_add_u32 s37, s37, s3\ns_mul_i32 s37, s37, 96\nv_mov_b32 v3, s37")
            if s.instr == 3:
                A("s_lshl_b32 s38, s2, 2\ns_add_u32 s38, s38, s3\ns_lshl_b32 s38, s38, 9\ns_add_u32 s38, s38, 0x20000\nv_lshlrev_b32 v4, 3, v0\nv_add_u32 v4, s38, v4")
                A("buffer_store_dwordx2 v[46:47], v4, s[68:71], 0 offen")
            for j, r in enumerate([40, 42, 44, 46] + list(range(48, 64, 2))):
                A("v_mov_b32 v8, s%d\nv_mov_b32 v9, s%d" % (r, r + 1))
                A("buffer_store_dwordx2 v[8:9], v3, s[68:71], 0 offen offset:%d" % (j * 8))
                A("s_nop 1")
        A("L_end:\ns_endpgm")
        A("L_redo:")
        A("s_mov_b32 s%d, 1\ns_mov_b32 s%d, 0" % (sPASS, sSOK))
        A("s_waitcnt vmcnt(0)")
        A("L_maxpass:")
        A("s_barrier")
        for x in group(True, 0): A(x)
        A("s_waitcnt vmcnt(0)\ns_barrier")
        for j in range(4):
            for t in range(4): A(s.kread(0, 0, j, t))
            A("s_waitcnt lgkmcnt(0)")
            for qb in range(4):
                for t in range(4): A(s.qk(0, qb, t, zero=True))
            A("s_nop 7")
            for qb in range(4):
                S = vS(qb)
                A("v_max3_f32 v%d, v%d, v%d, v%d" % (vM(qb), vM(qb), S, S + 1))
                A("v_max3_f32 v%d, v%d, v%d, v%d" % (vM(qb), vM(qb), S + 2, S + 3))
        A("s_cmp_lt_u32 s%d, 0x80000\ns_cbranch_scc1 L_maxpass" % sSOK)
        A("s_barrier\ns_branch L_start")
        A("L_last:")
        A('.section .rodata,"a"\n.p2align 6\n.amdhsa_kernel %s' % KN)
        A("  .amdhsa_next_free_vgpr 512\n  .amdhsa_next_free_sgpr 102\n  .amdhsa_accum_offset 256\n  .amdhsa_group_segment_fixed_size 0\n  .amdhsa_kernarg_size 48\n  .amdhsa_user_sgpr_count 2\n  .amdhsa_user_sgpr_kernarg_segment_ptr 1\n  .amdhsa_system_sgpr_workgroup_id_x 1\n  .amdhsa_float_denorm_mode_32 3\n.end_amdhsa_kernel")
        vb = not (s.nodma or s.novalu or s.nolds)
        errs = hazards.check(s.lines[:n2], "linear", vb) + hazards.check(body + body, "loop", vb) + hazards.check(s.lines[n0:n1] + s.lines[n2:], "tail", vb)
        return "\n".join(s.lines) + "\n", errs

def gen(name, **kw):
    txt, errs = Gen(**kw).build()
    open(name, "w").write(txt)
    return errs

if __name__ == "__main__":
    import ast
    name = sys.argv[1]
    kw = {}
    for a in sys.argv[2:]:
        k, v = a.split("=", 1)
        try: kw[k] = ast.literal_eval(v)
        except Exception: kw[k] = v
    e = gen(name, **kw)
    print(name, "hazards:", len(e))
```

```python
import sys, struct
import hazards

KN = "standalone__mha_softmax__near_ridge_kernel"
PITCH = 1056
SLOT = 16 * PITCH
VBASE = 4 * SLOT
FLAG_OFF = 8 * SLOT
LDS_BYTES = 8 * SLOT + 64
BIASB = 1888

def f32(x): return "0x%08x" % struct.unpack("<I", struct.pack("<f", x))[0]
def R(p, b, n): return "%s[%d:%d]" % (p, b, b + n - 1)

vDMA = 2
vK = 6
vV = 7
vQA = 8
vOA = 9
def vA(qb): return 12 + qb
def vM(qb): return 16 + qb
vT = 20
def vS(qb, st=0): return (100 if st else 48) + 4 * qb
def vNM(qb): return 64 + 4 * qb
vONE = 80
def vL(qb): return 84 + 4 * qb
vE = 100
vQR = 40
vW = 32
vOR = 44
vV2 = 33
vBP = 36
def vP(buf, qb, ks): return 128 + buf * 64 + qb * 16 + ks * 4
def aO(qb, db): return (qb * 8 + db) * 4
def aQ(qb, t): return 128 + (qb * 4 + t) * 4
def aK(buf, t): return 192 + buf * 16 + 4 * t
def aV(buf, ks): return 224 + buf * 16 + 4 * ks

sW = 3
sQ, sK, sV, sO = 4, 8, 12, 16
sSOK, sSOV = 20, 21
sWL = 22
sCNT = 23
sPASS = 32
sC = 34
sT = 36
sSEL = 84
vIDX = 45
sQB = 80
MF = "v_mfma_f32_16x16x32_bf16"

PATHS = {
    "row": [(q, k) for q in range(4) for k in range(4)],
    "rsn": [(q, 3 - k if q & 1 else k) for q in range(4) for k in range(4)],
    "rsr": [(3 - q, 3 - k if q & 1 else k) for q in range(4) for k in range(4)],
    "col": [(q, k) for k in range(4) for q in range(4)],
    "csn": [(3 - q if k & 1 else q, k) for k in range(4) for q in range(4)],
    "hil": [(0,0),(0,1),(1,1),(1,0),(2,0),(3,0),(3,1),(2,1),(2,2),(3,2),(3,3),(2,3),(1,3),(1,2),(0,2),(0,3)],
    "zig": [(0,0),(0,1),(1,1),(1,0),(2,0),(2,1),(3,1),(3,0),(3,2),(3,3),(2,3),(2,2),(1,2),(1,3),(0,3),(0,2)],
    "zg2": [(0,0),(1,0),(1,1),(0,1),(0,2),(1,2),(1,3),(0,3),(2,3),(3,3),(3,2),(2,2),(2,1),(3,1),(3,0),(2,0)],
}

class Gen:
    def __init__(s, ld="nt", qld="nt", st="nt", stamps=0, bias=10.0, thr=2.0 ** 40, summode="sp", nodma=0, nobar=0, novalu=0, nolds=0,
                 warm=1, instr=0, probe=None, dbg=None, dmagaps=None, pad=0, otlb=8, ones4=1, prepass=1, mspos=23, nfirst=12, nsecond=16, hmap=0, lim=0, lim1=0, padn=0, perm=0, smpl=1, lim2=0, share=(), latev=0, pre0=0, pre1=0, pre2=0, lin=1, dist=0, s0=-1, npre=None, fcnt=None, vtlb=0, newtail=1, nq=(4, 4, 4, 4), rot=0, tst=0, nost=0, pst=0, pvswap=0, qkswap=0, order=0, snake=0, qo=None, po=None, sdb=0, off=0, qseq=(0, 1, 2, 3), ones1=0, tb=3, tlat=5, wpos=(2, 3), tnv=2, operm=0, w128=0, clag=2, tord=0, vlat=4, cst=2, tad=0, f7=2, lim7=0, sfrom=0, sprio=0, peel=0, ecnt=None, edist=8, warm2=0):
        s.__dict__.update(locals())
        s.lines = []
        s.msum_qb = {"mfma": (0, 1, 2, 3), "hybrid": (0, 2), "valu": (), "sp": (0, 1, 2, 3), "sphy": (0, 2)}[summode]
        s.sp = summode.startswith("sp")
        s.dmagaps = {1: (24,), 2: (24, 28), 3: (24, 26, 28), 4: (24, 26, 28, 30)}
        if dmagaps: s.dmagaps[len(dmagaps)] = dmagaps
        s.vm1 = 2 * (3 - s0)
        s.vm2 = 2 * (7 - s0) - 12
        if npre is None: s.npre = -2 * s0
        if fcnt is None:
            rest = 2 * (8 - s0) - f7 - s.npre
            s.fcnt = [rest // 7 + (1 if i < rest % 7 else 0) for i in range(7)]
        assert sum(s.fcnt) + s.npre + f7 == 2 * (8 - s0) and max(s.fcnt) <= 4
        if peel:
            if ecnt is None: s.ecnt = ([2] * (12 + s0) + [0] * 16)[:16]
            assert sum(s.ecnt) == 24 + 2 * s0
            ev = [(32 * b + g, 2 * (b - s0) + i) for b in range(-4, 0) for i, g in enumerate(s.dmagaps[2])]
            p = -2 * s0
            for b in range(16):
                for g in (s.dmagaps[s.ecnt[b]] if s.ecnt[b] else ()):
                    assert b >= {4: 3, 5: 7}.get(p >> 2, -1)
                    ev.append((32 * b + g, p)); p += 1
            s.ev = ev
        s.add_qb = tuple(q for q in range(4) if q not in s.msum_qb)
    def A(s, x): s.lines.append(x)

    def m0set(s, lds_off): return "s_add_u32 m0, s%d, %d" % (sWL, lds_off)
    def dma(s, isK, i):
        return "buffer_load_dwordx4 v%d, %s, s%d offen offset:%d %s lds" % (vDMA + i, R("s", sK if isK else sV, 4), sSOK if isK else sSOV, i * PITCH, s.ld)
    def adv(s, isK):
        so = sSOK if isK else sSOV
        if s.rot: return "s_add_u32 s%d, s%d, 0x4000\ns_and_b32 s%d, s%d, 0x7ffff" % (so, so, so, so)
        return "s_add_u32 s%d, s%d, 0x4000" % (so, so)
    def kread(s, buf, slot, j, t):
        return "ds_read_b128 %s, v%d offset:%d" % (R("a", aK(buf, t), 4), vK, slot * SLOT + j * 256 + t * 64)
    def vread(s, buf, slot0, db, r, va=vV):
        ks, u = r >> 1, r & 1
        return "ds_read_b64_tr_b16 %s, v%d offset:%d" % (R("a", aV(buf, ks) + 2 * u, 2), va, (slot0 + (ks >> 1)) * SLOT + (2 * (ks & 1) + u) * 256 + db * 32)
    def qk(s, buf, qb, t, zero=False, rev=False, start=None):
        st = buf if s.sdb and not zero else 0
        if start is None: start = t == 0
        c = R("v", vS(qb, st), 4) if not start else ("0" if zero else R("v", vNM(qb), 4))
        if rev: t = 3 - t
        if s.qkswap: return "%s %s, %s, %s, %s" % (MF, R("v", vS(qb, st), 4), R("a", aQ(qb, t), 4), R("a", aK(buf, t), 4), c)
        return "%s %s, %s, %s, %s" % (MF, R("v", vS(qb, st), 4), R("a", aK(buf, t), 4), R("a", aQ(qb, t), 4), c)
    def pv(s, buf, pbuf, qb, db, ks):
        o = R("a", aO(qb, db), 4)
        if s.pvswap: return "%s %s, %s, %s, %s" % (MF, o, R("v", vP(pbuf, qb, ks), 4), R("a", aV(buf, ks), 4), o)
        return "%s %s, %s, %s, %s" % (MF, o, R("a", aV(buf, ks), 4), R("v", vP(pbuf, qb, ks), 4), o)
    def msum(s, pbuf, qb, ks):
        o = R("v", vL(qb), 4)
        return "%s %s, %s, %s, %s" % (MF, o, R("v", vONE, 4), R("v", vP(pbuf, qb, ks), 4), o)

    def msums(s, pbuf, qb):
        if not s.sp: return [s.msum(pbuf, qb, ks) for ks in range(4)]
        return ["v_smfmac_f32_16x16x64_bf16 %s, %s, %s, v%d" % (R("v", vL(qb), 4), R("v", vONE, 4), R("v", vP(pbuf, qb, 2 * h), 8), vIDX) for h in range(2)]

    def sm_table(s, first=False):
        t = []
        if first:
            for qb in range(4):
                for e in range(4):
                    t.append((4 * qb + 6 + e, "exp", qb, e))
                    if qb in s.add_qb: t.append((4 * qb + 7 + e, "add", qb, e))
                for h in range(2): t.append((4 * qb + 8 + 2 * h, "cvt", qb, h))
        else:
            addslot = {1: (16, 20, 26, 30), 3: (32, 36, 40, 44), 0: (10, 14, 18, 22), 2: (26, 30, 34, 38)}
            for j, qb in enumerate(s.qseq):
                for e in range(4): t.append((s.off + 8 * j + 7 + 2 * e, "exp", qb, e))
                for h in range(2): t.append((s.off + 8 * j + 10 + 4 * h, "cvt", qb, h))
            for qb in s.add_qb:
                for e in range(4): t.append((addslot[qb][e], "add", qb, e))
        return t
    def sm_op(s, kind, qb, i, wbuf, bb):
        S = vS(qb, bb & 1 if s.sdb else 0)
        if kind == "exp": return "v_exp_f32 v%d, v%d" % (S + i, S + i)
        if kind == "add": return "v_add_f32 v%d, v%d, v%d" % (vA(qb), vA(qb), S + i)
        d = vP(wbuf, qb, bb >> 1) + 2 * (bb & 1) + i
        if s.perm: return "v_perm_b32 v%d, v%d, v%d, s%d" % (d, S + 2 * i + 1, S + 2 * i, sSEL)
        return "v_cvt_pk_bf16_f32 v%d, v%d, v%d" % (d, S + 2 * i, S + 2 * i + 1)

    def seq(s, p, par):
        grp, piece, pp = (p % 16) >> 2, p & 3, (par + p // 16) & 1
        isK = grp in (0, 3)
        slot = (2 * pp + (4, 2, 3, 5)[grp]) & 3
        return (isK, slot * SLOT + (0 if isK else VBASE), piece)
    def dma_plan(s, par, b, first=False):
        if first:
            p0 = s.npre + sum(s.fcnt[:b])
            return [s.seq(p, par) for p in range(p0, p0 + (s.fcnt[b] if b < 7 else s.f7))]
        return [s.seq(2 * (b - s.s0) + i, par) for i in range(2)]

    def eseq(s, p):
        if p < 16: return s.seq(p, 1)
        return (False, ((p >> 2) - 4) * SLOT, p & 3)
    def after(s, pos, p):
        return sum(1 for g, q in s.ev if g <= pos and q > p)

    def block(s, par, b, do_qk=True, do_pv=True, first=False, last=False, extra=None, eb=None):
        n = 16 if first else 32
        sh = [[] for _ in range(n)]
        mem = [[] for _ in range(n)]
        va = [[] for _ in range(n)]
        flush = []
        if not s.novalu:
            tab = s.sm_table(first)
            if (do_qk or b == 0) and not (first and b == 0):
                pp = par if b else par ^ 1
                for g, kind, qb, i in tab:
                    if g >= n: va[g - n].append(s.sm_op(kind, qb, i, pp ^ 1, (b - 1) & 7))
            if do_qk:
                for g, kind, qb, i in tab:
                    if g < n: va[g].append(s.sm_op(kind, qb, i, par ^ 1, b))
                if first and b == 7:
                    keep = set((k, q, i) for g, k, q, i in s.sm_table(False) if g >= 32)
                    for g, kind, qb, i in sorted(tab):
                        if g >= n and (kind, qb, i) not in keep: flush.append(s.sm_op(kind, qb, i, par ^ 1, b))
        buf = b & 1
        nb = (b + 1) & 7
        npar = par if b < 7 else par ^ 1
        plan = s.dma_plan(par, b, first) if do_qk else []
        if eb is not None: plan = [s.eseq(q) for g, q in s.ev if g >> 5 == eb]
        gaps = s.dmagaps[len(plan)] if plan else ()
        if first: gaps = {0: (), 1: (5,), 2: (3, 11), 3: (1, 7, 13), 4: (1, 5, 9, 13)}[len(plan)]
        if first: dsg = [0, 2, 4, 6] + list(range(8, 16))
        else: dsg = [g for g in range(0, 32, 2) if g not in gaps or g in s.share]
        if do_qk:
            kslot = (2 if npar == 0 else 0) + (nb >> 2)
            for t in range(4):
                if not s.nolds and eb != 15: mem[dsg[t]].append(s.kread(buf ^ 1, kslot, nb & 3, t))
        if (do_pv and (do_qk or b < 7)) or (b == 7 and do_qk):
            for r in range(8):
                if not s.nolds: mem[dsg[4 + r]].append(s.vread(buf ^ 1, 0 if npar == 0 or eb == 15 else 2, nb, r, vV2 if eb == 15 else vV))
        if do_qk:
            for (isK, off, piece), g in zip(plan, gaps):
                if not s.nodma:
                    if piece == 0 or g == gaps[0] and s.instr == 3: sh[g - 1].append(s.m0set(off))
                    if first and s.lim1: mem[g].append("s_waitcnt vmcnt(%d)" % ((s.lim7 if b == 7 and s.lim7 else s.lim1) - 1))
                    if not first and s.lim2: sh[g].append("s_waitcnt vmcnt(%d)" % (s.lim2 - 1))
                    mem[g].append(s.dma(isK, piece))
                if piece == 3: sh[g + 1].append(s.adv(isK))
            if eb is not None:
                lastp = {}
                for g, q in s.ev: lastp[g >> 5] = (g, q)
                for bb, (g, q) in lastp.items():
                    x = g + s.dist
                    if s.dist and x >> 5 == eb and eb < s.edist: sh[x & 31].append("s_waitcnt vmcnt(%d)" % s.after(x - 1, q))
            elif s.dist and not first:
                g2 = gaps[-1]; x = (g2 + s.dist) % 32
                cnt = sum(1 for k in range(1, s.dist) if (g2 + k) % 32 in gaps)
                sh[x].append("s_waitcnt vmcnt(%d)" % cnt)
            if eb in (2, 6, 10, 14):
                w = "s_waitcnt vmcnt(%d) lgkmcnt(0)" % s.after(32 * eb + 31, {2: -1, 6: 11, 10: 15, 14: 23}[eb])
            elif b in (2, 6):
                w = "s_waitcnt vmcnt(%d) lgkmcnt(0)" % ((s.npre + sum(s.fcnt[:3]) if first else s.vm1) if b == 2 else s.vm2 - (s.f7 - 2 if first else 0))
            elif s.latev and not first and b != 7:
                w = "s_waitcnt lgkmcnt(8)"
            else:
                w = "s_waitcnt lgkmcnt(0)"
            if s.latev and not first and b not in (0, 3, 7):
                sh[3].append("s_waitcnt lgkmcnt(%d)" % sum(1 for g in dsg if g < 3))
            if first and b == 6 and s.pre2:
                n0 = len(s.lines); s.dummy(s.pre2); flush += s.lines[n0:]; del s.lines[n0:]
            if flush: flush.append(w)
            else: sh[n - 1].append(w)
            if b in (3, 7):
                if not s.nobar: sh[0].insert(0, "s_barrier")
                if s.instr == 3:
                    sh[0].insert(1, "s_memrealtime s[72:73]\ns_memtime s[74:75]\ns_waitcnt lgkmcnt(0)\ns_mov_b32 m0, s76\ns_nop 1\nv_writelane_b32 v46, s72, m0\nv_writelane_b32 v47, s74, m0\ns_add_u32 s76, s76, 1")
        else:
            sh[n - 1].append("s_waitcnt lgkmcnt(0)")
        if s.instr == 4 and do_qk:
            if b == 7: sh[1].append("s_memrealtime s[72:73]")
            if b == 0 and not first:
                sh[1].append("s_sub_u32 s75, s72, s74")
                sh[2].append("s_mov_b32 s74, s72")
                sh[4].append("s_cmp_gt_i32 s75, 310\ns_cselect_b32 s75, 1, 0\ns_cselect_b32 s79, s72, s77")
                sh[5].append("s_add_u32 s76, s76, s75")
                sh[6].append("s_min_u32 s77, s77, s79")
        if last:
            sh[31 if any("s_add" in x for x in sh[31]) else 30].append("s_sub_u32 s%d, s%d, 1" % (sCNT, sCNT))
        ms = None
        if do_pv and do_qk and s.msum_qb:
            place = {4: {1: 0, 3: 1, 5: 2, 7: 3}, 2: {1: 0, 5: 1}}[len(s.msum_qb)]
            if b in place: ms = s.msums(par, s.msum_qb[place[b]])
            if s.smpl == 2 and len(s.msum_qb) == 4:
                x = s.msums(par, b >> 1); k = len(x) // 2
                ms = x[k * (b & 1): k * (b & 1) + k]
        for pos in range(n):
            m = None
            if first: m = s.qk(buf, pos >> 2, pos & 3, rev=s.qo == "rsn" and pos & 4)
            else:
                ch, k = pos >> 2, pos & 3
                isq, qb = [((1, 0), (0, 0), (1, 1), (0, 1), (1, 2), (0, 2), (1, 3), (0, 3)),
                           ((1, 0), (1, 1), (1, 2), (1, 3), (0, 0), (0, 1), (0, 2), (0, 3)),
                           ((1, 0), (1, 1), (0, 0), (0, 1), (1, 2), (1, 3), (0, 2), (0, 3))][s.order][ch]
                rev = s.snake and (qb & 1)
                if s.qo:
                    path = PATHS[s.qo if pos < 16 else s.po]
                    qb, k = path[pos & 15]
                    if pos < 16: m = s.qk(buf, qb, k, start=all(q != qb for q, _ in path[:pos]))
                    else: m = s.pv(buf, par, qb, b, k)
                elif isq:
                    if do_qk: m = s.qk(buf, qb, k, rev=rev)
                elif do_pv: m = s.pv(buf, par, qb, b, 3 - k if rev else k)
            if m: s.A(m)
            for o in sh[pos] + mem[pos] + va[pos]: s.A(o)
            if extra:
                for o in extra(pos): s.A(o)
            if s.pad and m: s.A("s_nop %d" % (s.pad - 1))
            if s.padn and not first and do_qk and (pos & 1) and (pos >> 1) % (16 // s.padn) == 0: s.A("s_nop 0")
            if ms is not None and pos == s.mspos:
                for x in ms: s.A(x)
        for o in flush: s.A(o)

    def tail2(s):
        assert s.pvswap and s.sp
        chains = [(qb, 0) for qb in range(4)] + [(qb, db) for qb in range(4) for db in (1, 2, 3)] + [(qb, db) for qb in range(4) for db in (4, 5, 6, 7)]
        vset = [("a", aV(0, 0)), ("a", aV(1, 0)), ("a", aK(0, 0)), ("a", aK(1, 0)), ("a", aV(0, 0)), ("v", 128), ("v", 144), ("v", 160)]
        reg = (0, 3, 1, 2)
        RB = (176, 184, 64, 72)
        RI = vE
        def mf(n, k):
            qb, db = chains[n]
            ks = 3 - k if n & 1 else k
            o = R("a", aO(qb, db), 4)
            return "%s %s, %s, %s, %s" % (MF, o, R("v", vP(1, qb, ks), 4), R(vset[db][0], vset[db][1] + 4 * ks, 4), o)
        def vrd(db, r):
            ks, u = r >> 1, r & 1
            return "ds_read_b64_tr_b16 %s, v%d offset:%d" % (R(vset[db][0], vset[db][1] + 4 * ks + 2 * u, 2), vV, (2 + (ks >> 1)) * SLOT + (2 * (ks & 1) + u) * 256 + db * 32)
        def wr(n, p):
            qb, db = chains[n]
            o = aO(qb, db) + 2 * p
            b = reg[qb] * (SLOT // 256) + 2 * p
            return "ds_write2st64_b32 v%d, a%d, a%d offset0:%d offset1:%d" % (vW + (db & 3), o, o + 1, b, b + 1)
        units = [(qb, h, i) for h in range(2) for qb in range(4) for i in range(2)]
        def rd(u, x):
            qb, h, i = units[u]
            return "ds_read_b128 %s, v%d offset:%d" % (R("v", RB[u % 4] + 4 * x, 4), (vOR, vBP + 1)[x], reg[qb] * SLOT + i * 512)
        def fin(u):
            qb, h, i = units[u]
            b = RB[u % 4]
            ops = []
            for j in range(4):
                ops += ["v_mul_f32 v%d, v%d, v%d" % (b + 2 * j + x, b + 2 * j + x, RI + 2 * qb + i) for x in range(2)]
                if j: ops.append("v_cvt_pk_bf16_f32 v%d, v%d, v%d" % (b + j - 1, b + 2 * j - 2, b + 2 * j - 1))
            ops.append("v_cvt_pk_bf16_f32 v%d, v%d, v%d" % (b + 3, b + 6, b + 7))
            ops.append("buffer_store_dwordx4 %s, v%d, %s, s%d offen offset:%d %s" % (R("v", b, 4), vOA, R("s", sO, 4), sQB + qb, i * 512 + h * 128, s.st))
            return ops
        M = [("s", x) for x in s.msums(1, 0) + s.msums(1, 1) + s.msums(1, 2)]
        for n in range(32):
            M += [((n, k), mf(n, k)) for k in range(4)]
            if n == 0: M += [("s", x) for x in s.msums(1, 3)]
        at = {t: g for g, (t, x) in enumerate(M) if t != "s"}
        NG = len(M)
        fixed = [[] for _ in range(NG + 8)]
        scal = [[] for _ in range(NG + 8)]
        left = [s.sm_op(k, q, i, 1, 7) for g, k, q, i in sorted(s.sm_table(False)) if g >= 32]
        for i, x in enumerate(left): fixed[i].append(x)
        scal[0].append("s_mov_b32 s%d, %s" % (sT, f32(s.thr)))
        wdone = {}
        for n in range(32):
            for p in range(2):
                g = at[(n + 1, s.wpos[p])] if n < 31 else NG
                fixed[g].append(wr(n, p)); wdone[n] = g
        scal[at[(3, s.wpos[0])]].append("s_waitcnt vmcnt(%d)" % (-2 * s.s0))
        scal[at[(4, s.wpos[0])]].append("s_waitcnt vmcnt(%d)" % max(0, -2 * s.s0 - 4))
        avail = [wdone[max(n for n in range(32) if chains[n][0] == qb and chains[n][1] >> 2 == h)] for qb, h, i in units]
        vq = []
        for db in range(1, 8):
            first = min(n for n in range(32) if chains[n][1] == db)
            order = range(8) if not first & 1 else (6, 7, 4, 5, 2, 3, 0, 1)
            vq += [(at[(3, 3)] if db == 4 else 0, vrd(db, r)) for r in order]
        misc = []
        for qb in range(4):
            e = (8, 10, 12, at[(2, 0)])[qb]
            misc += [(e, "v_add_f32 v%d, v%d, v%d" % (vL(qb), vL(qb), vL(qb) + 1)), (e + 1, "v_rcp_f32 v%d, v%d" % (vT + qb, vL(qb)))]
        for qb in range(4):
            misc += [(0, "ds_bpermute_b32 v%d, v%d, v%d offset:%d" % (RI + 2 * qb + i, vBP, vT + qb, 8 * i)) for i in range(2)]
        misc += [(0, "v_add_f32 v%d, v%d, v%d" % (vT + 5, vL(0), vL(1))), (0, "v_add_f32 v%d, v%d, v%d" % (vT + 6, vL(2), vL(3))),
                 (0, "v_add_f32 v%d, v%d, v%d" % (vT + 5, vT + 5, vT + 6)), (0, "v_cmp_nge_f32 vcc, s%d, v%d" % (sT, vT + 5))]
        T = []
        nrd = 0; rdat = {}; cur = 0; ops = fin(0); lastst = {}
        cost = lambda x: 2 if x.startswith(("v_exp", "v_rcp")) else 1
        for g in range(NG + 1):
            if g < NG: T.append(M[g][1])
            T += scal[g] + fixed[g]
            used = sum(cost(x) for x in fixed[g])
            budget = s.tb if g < NG else 1000
            nv = 0
            while used < budget:
                u = nrd >> 1
                if u < 16 and avail[u] <= g and (u < 4 or lastst.get(u - 4, 1000) < g or g == NG and cur > u - 4):
                    T.append(rd(u, nrd & 1)); rdat[u] = g; nrd += 1
                elif misc and misc[0][0] <= g and (nv or not vq or len(vq) < 36):
                    x = misc.pop(0)[1]; T.append(x); used += cost(x) - 1
                elif any(e <= g for e, x in vq) and nv < s.tnv:
                    T.append(vq.pop([e <= g for e, x in vq].index(True))[1]); nv += 1
                elif cur < 16 and nrd >= 2 * cur + 2 and (rdat[cur] + s.tlat <= g or g == NG) and not misc:
                    T.append(ops.pop(0))
                    if not ops:
                        lastst[cur] = g; cur += 1
                        if cur < 16: ops = fin(cur)
                else: break
                used += 1
            if s.tst and g < NG and M[g][0] in [(n, 3) for n in (3, 11, 19, 27, 31)]:
                j = (3, 11, 19, 27, 31).index(M[g][0][0])
                T.append("s_memtime s[%d:%d]" % (48 + 2 * j, 49 + 2 * j))
        assert cur == 16 and not vq and not misc
        for qb in range(4):
            assert T.index(rd(2 * qb + 1, 1)) < T.index(wr(16 + 4 * qb, 0))
        return T

    def tail3(s):
        assert s.pvswap and s.sp and not s.ones1
        if s.tord == 0: chains = [(qb, 0) for qb in range(4)] + [(qb, db) for qb in range(4) for db in (1, 2, 3)]
        else: chains = [(qb, db) for db in (0, 1) for qb in range(4)] + [(qb, db) for qb in range(4) for db in (2, 3)]
        chains += [(qb, db) for qb in range(4) for db in (4, 5, 6, 7)]
        vset = [("a", aV(0, 0)), ("a", aV(1, 0)), ("a", aK(0, 0)), ("a", aK(1, 0)), ("a", aV(0, 0)), ("v", 128), ("v", 144), ("v", 160)]
        reg = (0, 3, 1, 2)
        def lo(qb, h): return (2 + (qb >> 1)) * SLOT + (qb & 1) * 2048 if s.peel else reg[qb] * SLOT + h * 2048
        X = (64, 72)
        W = (176, 184, 100, 108)
        def mf(n, k):
            qb, db = chains[n]
            ks = 3 - k if n & 1 else k
            o = R("a", aO(qb, db), 4)
            return "%s %s, %s, %s, %s" % (MF, o, R("v", vP(1, qb, ks), 4), R(vset[db][0], vset[db][1] + 4 * ks, 4), o)
        def vrd(db, r):
            ks, u = r >> 1, r & 1
            return "ds_read_b64_tr_b16 %s, v%d offset:%d" % (R(vset[db][0], vset[db][1] + 4 * ks + 2 * u, 2), vV2 if s.peel else vV, ((0 if s.peel else 2) + (ks >> 1)) * SLOT + (2 * (ks & 1) + u) * 256 + db * 32)
        M = [("s", x) for x in s.msums(1, 0) + s.msums(1, 1) + s.msums(1, 2)]
        for n in range(32):
            M += [((n, k), mf(n, k)) for k in range(4)]
            if n == 0: M += [("s", x) for x in s.msums(1, 3)]
        at = {t: g for g, (t, x) in enumerate(M) if t != "s"}
        NG = len(M)
        fixed = [[] for _ in range(NG + 1)]
        scal = [[] for _ in range(NG + 1)]
        left = [s.sm_op(k, q, i, 1, 7) for g, k, q, i in sorted(s.sm_table(False)) if g >= 32]
        for i, x in enumerate(left): fixed[i].append(x)
        scal[0].append("s_mov_b32 s%d, %s" % (sT, f32(s.thr)))
        rinv = {}
        for qb in range(4):
            e = (6, 8, 10, at[(2, 0)])[qb]
            fixed[e].append("v_add_f32 v%d, v%d, v%d" % (vL(qb), vL(qb), vL(qb) + 1))
            fixed[e + 1].append("v_rcp_f32 v%d, v%d" % (vT + qb, vL(qb)))
            for gq in range(1, 4):
                fixed[e + 1 + 2 * gq].append("v_mov_b32_dpp v%d, v%d row_shl:%d row_mask:0x%x bank_mask:0xf" % (vT + qb, vT + qb, 4 * gq, 1 << gq))
            rinv[qb] = e + 9
        e = at[(3, 0)]
        fixed[e] += ["v_add_f32 v%d, v%d, v%d" % (vT + 5, vL(0), vL(1)), "v_add_f32 v%d, v%d, v%d" % (vT + 6, vL(2), vL(3))]
        fixed[e + 1].append("v_add_f32 v%d, v%d, v%d" % (vT + 5, vT + 5, vT + 6))
        fixed[e + 2].append("v_cmp_nge_f32 vcc, s%d, v%d" % (sT, vT + 5))
        if not s.peel: scal[at[(5, 0)]].append("s_waitcnt vmcnt(%d)" % max(0, -2 * s.s0 - 4))
        vq = []
        for db in range(1, 8):
            first = min(n for n in range(32) if chains[n][1] == db)
            order = range(8) if not first & 1 else (6, 7, 4, 5, 2, 3, 0, 1)
            vq += [(at[(3, 3)] + 1 if db == 4 else 0, at[(first, j >> 1)], vrd(db, r)) for j, r in enumerate(order)]
        groups = [(qb, h) for h in range(2) for qb in range(4)]
        units = []
        for gi, (qb, h) in enumerate(groups):
            for p in range(2): units.append((max(chains.index((qb, 4 * h + 2 * p + e2)) for e2 in range(2)), gi, p))
        units.sort()
        cq = []
        for ui, (_, gi, p) in enumerate(units):
            qb, h = groups[gi]
            w = W[gi & 3]
            for e2 in range(2):
                db = 4 * h + 2 * p + e2
                rdy = max(at[(chains.index((qb, db)), 3)] + 1 + s.clag, rinv[qb])
                x = X[ui & 1] + 4 * e2
                cq += [(rdy, "v_accvgpr_read_b32 v%d, a%d" % (x + r, aO(qb, db) + r), []) for r in range(4)]
                cq += [(rdy, "v_mul_f32_dpp v%d, v%d, v%d row_newbcast:%d row_mask:0xf bank_mask:0xf" % (x + r, vT + qb, x + r, r), []) for r in range(4)]
            for r in range(4):
                rel = []
                if p:
                    rel.append(("w", "ds_write_b64 v%d, %s offset:%d" % (vW, R("v", w + 2 * r, 2), lo(qb, h) + r * 128), None))
                    if r & 1:
                        i = r >> 1
                        rel += [("r", "ds_read_b64_tr_b16 %s, v%d offset:%d" % (R("a", aO(qb, 4 * h) + 4 * i + 2 * x, 2), (vOR, vBP + 1)[x], lo(qb, h) + i * 256), (gi, i) if x else None) for x in range(2)]
                cq.append((rdy, "v_cvt_pk_bf16_f32 v%d, v%d, v%d" % (w + 2 * r + p, X[ui & 1] + r, X[ui & 1] + 4 + r), rel))
        def st(gi, i):
            qb, h = groups[gi]
            return "buffer_store_dwordx4 %s, v%d, %s, s%d offen offset:%d %s" % (R("a", aO(qb, 4 * h) + 4 * i, 4), vOA, R("s", sO, 4), sQB + qb, i * 512 + h * 128, s.st)
        T = []; sq = []; oq = []
        cost = lambda x: 2 if x.startswith(("v_exp", "v_rcp")) else 1
        def popo(g):
            k, o, tag = oq.pop(0); T.append(o)
            if tag: sq.append((g + s.tlat, st(*tag)))
            return k
        for g in range(NG):
            T.append(M[g][1])
            T += scal[g]
            used = 0
            ok = [e <= g for e, d, x in vq]
            need = max([j + 1 - (d - s.vlat - g) for j, (e, d, x) in enumerate(vq)] + [0])
            if any(ok) and need >= 1:
                for _ in range(min(2, need)):
                    ok = [e <= g for e, d, x in vq]
                    if any(ok): T.append(vq.pop(ok.index(True))[2]); used += 1
            elif sq and sq[0][0] <= g and g >= s.sfrom and not (oq and s.sfrom and g < NG - s.sprio): T.append(sq.pop(0)[1]); used += s.cst
            elif oq:
                k = popo(g); used += 3 if k == "w" else 1
                if k == "r" and oq and oq[0][0] == "r": popo(g); used += 1
            elif any(ok):
                T.append(vq.pop(ok.index(True))[2]); used += 1
                ok = [e <= g for e, d, x in vq]
                if any(ok) and not fixed[g] and not (cq and cq[0][0] <= g): T.append(vq.pop(ok.index(True))[2]); used += 1
            T += fixed[g]
            used += sum(cost(x) for x in fixed[g])
            budget = s.tb[g % len(s.tb)] if isinstance(s.tb, tuple) else s.tb
            if s.tad:
                nr = next((j for j, x in enumerate(cq) if x[0] > g), len(cq))
                nx = cq[nr][0] - g if nr < len(cq) else NG - g
                budget = max(2, min(s.tb, used + -(-nr // max(1, min(nx + s.tad - 1, NG - g)))))
            while used < budget and cq and cq[0][0] <= g:
                e, o, rel = cq.pop(0); T.append(o); oq += rel; used += 1
            if s.tst and M[g][0] in [(n, 3) for n in (3, 11, 19, 27, 31)]:
                j = (3, 11, 19, 27, 31).index(M[g][0][0])
                T.append("s_memtime s[%d:%d]" % (48 + 2 * j, 49 + 2 * j))
        while oq: popo(NG)
        for e, o, rel in cq: T.append(o); oq += rel
        oq.sort(key=lambda x: x[0] == "r")
        while oq: popo(NG)
        T += [x for g, x in sq]
        assert not vq
        for db in range(1, 8):
            n = min(n for n in range(32) if chains[n][1] == db)
            assert max(T.index(vrd(db, r)) for r in range(8)) < T.index(mf(n, 3))
        wrs = [k for k, x in enumerate(T) if x.startswith("ds_write_b64")]
        cvs = [k for k, x in enumerate(T) if x.startswith("v_cvt_pk")]
        for gi in range(4): assert wrs[4 * gi + 3] < min(k for k in cvs if T[k].split()[1] == "v%d," % W[gi] and k > wrs[4 * gi])
        return T

    def dummy(s, n):
        for i in range(n):
            s.A("%s v[120:123], v[%d:%d], v[%d:%d], %s" % (MF, 104 + 4 * (i & 1), 107 + 4 * (i & 1), 112 + 4 * ((i >> 1) & 1), 115 + 4 * ((i >> 1) & 1), "v[120:123]" if i & 3 else "0"))
    def stamp(s, idx, force=False):
        if s.tst and idx < 5: return
        if s.pst and not force: return
        if s.stamps: s.A("%s s[%d:%d]" % ("s_memrealtime" if s.stamps == 2 else "s_memtime", 48 + 2 * idx, 49 + 2 * idx))

    def build(s):
        A = s.A
        A("; @launch grid=(256,1,1) block=(256,1,1) lds=%d" % LDS_BYTES)
        A('.amdgcn_target "amdgcn-amd-amdhsa--gfx950"')
        A(".text")
        A(".globl %s\n.p2align 8\n.type %s,@function\n%s:" % (KN, KN, KN))
        A("s_cmp_ge_u32 s2, 256\ns_cbranch_scc1 L_end")
        if s.stamps: A("s_memrealtime s[40:41]\ns_memtime s[44:45]")
        A("s_load_dwordx4 s[24:27], s[0:1], 0\ns_load_dwordx4 s[28:31], s[0:1], 16")
        if s.stamps: A("s_load_dwordx2 s[64:65], s[0:1], 40")
        if s.warm:
            A("s_getpc_b64 s[36:37]\nL_pc:")
            if s.warm2:
                A("v_lshlrev_b32 v1, 6, v0\nglobal_load_dword v11, v1, s[36:37]")
                A("v_lshlrev_b32 v38, 6, v0\nv_add_u32 v38, 16384, v38\nv_min_u32 v38, L_end-L_pc, v38\ns_mov_b64 s[86:87], s[36:37]")
            else:
                A("v_lshlrev_b32 v1, 7, v0\nv_min_u32 v1, L_end-L_pc, v1\nglobal_load_dword v11, v1, s[36:37]")
        A("v_lshrrev_b32 v1, 6, v0\nv_and_b32 v0, 63, v0\ns_nop 0\nv_readfirstlane_b32 s%d, v1" % sW)
        A("v_lshrrev_b32 v20, 4, v0\nv_and_b32 v21, 15, v0")
        A("s_mul_i32 s%d, s%d, %d" % (sWL, sW, 4 * PITCH))
        if s.lin:
            A("s_lshl_b32 s%d, s%d, 12\nv_lshlrev_b32 v22, 4, v0\nv_add_u32 v22, s%d, v22" % (sT, sW, sT))
        else:
            A("v_lshlrev_b32 v22, 12, v20\nv_lshl_add_u32 v22, v21, 4, v22")
            A("s_lshr_b32 s%d, s%d, 1\ns_lshl_b32 s%d, s%d, 11\ns_and_b32 s%d, s%d, 1\ns_lshl_b32 s%d, s%d, 9\ns_add_u32 s%d, s%d, s%d" % (sT, sW, sT, sT, sT + 1, sW, sT + 1, sT + 1, sT, sT, sT + 1))
            A("v_add_u32 v22, s%d, v22" % sT)
        for i in range(4):
            goff = i * 1024 if s.lin else (4 * (i & 1) + (i >> 1)) * 256
            A("v_add_u32 v%d, %d, v22" % (vDMA + i, goff - PITCH * i + BIASB))
        A("s_lshl_b32 s%d, s%d, 14" % (sT, sW))
        A("v_lshlrev_b32 v23, 2, v20\nv_xor_b32 v23, v23, v21\nv_lshlrev_b32 v23, 4, v23\nv_lshl_add_u32 v23, v20, 8, v23\nv_add_u32 v%d, s%d, v23" % (vQA, sT))
        if s.newtail == 3:
            A("v_bfe_u32 v23, v0, 3, 1\nv_lshl_add_u32 v23, v20, 2, v23\nv_and_b32 v24, 3, v0\nv_lshlrev_b32 v24, 5, v24\nv_lshl_add_u32 v23, v23, 8, v24")
            A("v_bfe_u32 v24, v0, 2, 1\nv_lshl_add_u32 v23, v24, 4, v23\nv_add_u32 v%d, s%d, v23" % (vOA, sT))
        elif s.newtail == 2:
            A("v_bfe_u32 v23, v0, 3, 1\nv_lshl_add_u32 v23, v20, 2, v23\nv_lshlrev_b32 v%d, 2, v23\nv_and_b32 v24, 7, v0\nv_lshlrev_b32 v24, 4, v24\nv_lshl_add_u32 v23, v23, 8, v24\nv_add_u32 v%d, s%d, v23" % (vBP, vOA, sT))
        elif s.operm:
            A("v_lshrrev_b32 v23, 3, v0\nv_and_b32 v24, 3, v0\nv_lshlrev_b32 v24, 5, v24\nv_lshl_add_u32 v23, v23, 8, v24\nv_bfe_u32 v24, v0, 2, 1\nv_lshl_add_u32 v23, v24, 4, v23\nv_add_u32 v%d, s%d, v23" % (vOA, sT))
        else:
            A("v_lshrrev_b32 v23, 3, v0\nv_and_b32 v24, 7, v0\nv_lshlrev_b32 v24, 4, v24\nv_lshl_add_u32 v23, v23, 8, v24\nv_add_u32 v%d, s%d, v23" % (vOA, sT))
        for qb in range(4): A("s_mov_b32 s%d, %d" % (sQB + qb, qb * 4096))
        if s.pst == 1: s.stamp(0, True)
        A("s_waitcnt lgkmcnt(0)")
        if s.pst == 1: s.stamp(1, True)
        hd = 2
        if s.hmap == 1:
            hd = 33; A("s_xor_b32 s33, s2, 1")
        if s.hmap == 2:
            hd = 33; A("s_and_b32 s33, s2, 7\ns_lshl_b32 s33, s33, 5\ns_lshr_b32 s36, s2, 3\ns_add_u32 s33, s33, s36")
        A("s_lshl_b32 s%d, s%d, 19" % (sT, hd))
        A("s_sub_u32 s26, s26, %d\ns_subb_u32 s27, s27, 0\ns_sub_u32 s28, s28, %d\ns_subb_u32 s29, s29, 0" % (BIASB, BIASB))
        A("s_add_u32 s%d, s26, s%d\ns_addc_u32 s%d, s27, 0\ns_mov_b32 s%d, %d\ns_mov_b32 s%d, 0x20000" % (sK, sT, sK + 1, sK + 2, 0x80000 + BIASB, sK + 3))
        A("s_add_u32 s%d, s28, s%d\ns_addc_u32 s%d, s29, 0\ns_mov_b32 s%d, %d\ns_mov_b32 s%d, 0x20000" % (sV, sT, sV + 1, sV + 2, 0x80000 + BIASB, sV + 3))
        A("s_lshl_b32 s%d, s%d, 16" % (sT, hd))
        A("s_add_u32 s%d, s24, s%d\ns_addc_u32 s%d, s25, 0\ns_mov_b32 s%d, 0x10000\ns_mov_b32 s%d, 0x20000" % (sQ, sT, sQ + 1, sQ + 2, sQ + 3))
        A("s_add_u32 s%d, s30, s%d\ns_addc_u32 s%d, s31, 0\ns_mov_b32 s%d, 0x10000\ns_mov_b32 s%d, 0x20000" % (sO, sT, sO + 1, sO + 2, sO + 3))
        A("s_mov_b32 s%d, 0" % sPASS)
        for qb in range(4): A("v_mov_b32 v%d, 0xff800000" % vM(qb))
        A("L_start:")
        if s.rot: A("s_mul_i32 s%d, s2, %d\ns_and_b32 s%d, s%d, 31\ns_lshl_b32 s%d, s%d, 14\ns_mov_b32 s%d, s%d" % (sSOK, s.rot, sSOK, sSOK, sSOK, sSOK, sSOV, sSOK))
        else: A("s_mov_b32 s%d, 0\ns_mov_b32 s%d, 0" % (sSOK, sSOV))
        def group(isK, off, n=4):
            return [s.m0set(off), "s_nop 0"] + [s.dma(isK, i) for i in range(n)] + ([s.adv(isK)] if n == 4 else [])
        PERM = (0, 3, 1, 2)
        def qgroup(qb):
            out = []
            for i in range(4):
                out.append(["s_add_u32 m0, s%d, %d" % (sWL, VBASE + qb * SLOT + i * PITCH - PERM[i] * 1024), "s_nop 0",
                            "buffer_load_dwordx4 v%d, %s, s%d offen offset:%d %s lds" % (vQA, R("s", sQ, 4), sQB + qb, PERM[i] * 1024, s.qld)])
            return out
        def pieces(isK, off, n=4):
            out = [[s.dma(isK, i)] for i in range(n)]
            if n: out[0] = [s.m0set(off), "s_nop 0"] + out[0]
            if n == 4: out[3].append(s.adv(isK))
            return out
        Q = [("K0", p) for p in pieces(True, 0)]
        for qb in range(4): Q += [("Q%d" % qb, p) for p in qgroup(qb)]
        Q += [("K1", p) for p in pieces(True, SLOT)]
        for p in range(s.npre):
            isK, off, piece = s.seq(p, 1)
            ops = ([s.m0set(off), "s_nop 0"] if piece == 0 else []) + [s.dma(isK, piece)] + ([s.adv(isK)] if piece == 3 else [])
            Q.append((("K2", "V0", "V1", "K3")[p >> 2], ops))
        if s.vtlb: Q.insert(s.vtlb, ("X", ["buffer_load_dword v127, v%d, %s, 0 offen" % (vDMA, R("s", sV, 4))]))
        if s.otlb: Q.insert(s.otlb, ("X", ["buffer_load_dword v10, v%d, %s, 0 offen" % (vOA, R("s", sO, 4))]))
        st = {"n": 0}
        def issue(k=1):
            for _ in range(k):
                if st["n"] < len(Q):
                    if s.lim and st["n"] >= s.lim: A("s_waitcnt vmcnt(%d)" % (s.lim - 1))
                    for x in Q[st["n"]][1]: A(x)
                    st["n"] += 1
        def waitfor(tag):
            last = max(i for i, x in enumerate(Q) if x[0] == tag)
            if st["n"] <= last: issue(last + 1 - st["n"])
            A("s_waitcnt vmcnt(%d)" % (st["n"] - 1 - last))
        if s.pst == 1: s.stamp(2, True)
        issue(s.nfirst)
        if s.pst == 1: s.stamp(3, True)
        A("v_and_b32 v22, 3, v0\nv_bfe_u32 v23, v0, 2, 1\nv_lshl_add_u32 v22, v22, 1, v23\nv_and_b32 v23, 8, v0\nv_add_u32 v22, v22, v23")
        A("v_mul_u32_u24 v22, %d, v22\nv_lshrrev_b32 v23, 4, v0\nv_lshl_add_u32 v%d, v23, 4, v22" % (PITCH, vK))
        A("v_bfe_u32 v22, v0, 2, 2\nv_bfe_u32 v23, v0, 4, 1\nv_lshl_add_u32 v22, v22, 1, v23\nv_lshrrev_b32 v23, 5, v0\nv_lshl_add_u32 v22, v23, 3, v22")
        A("v_mul_u32_u24 v22, %d, v22\nv_and_b32 v23, 3, v0\nv_lshl_add_u32 v22, v23, 3, v22\nv_add_u32 v%d, %d, v22" % (PITCH, vV, VBASE))
        A("v_bfe_u32 v22, v0, 2, 2\nv_lshlrev_b32 v22, 1, v22\nv_mov_b32 v23, 0x78\nv_lshrrev_b32 v22, v22, v23\nv_and_b32 v22, 3, v22")
        A("v_mul_u32_u24 v22, %d, v22\nv_and_b32 v23, 3, v0\nv_lshl_add_u32 v22, v23, 8, v22\nv_lshrrev_b32 v24, 4, v0\nv_lshl_add_u32 v22, v24, 4, v22" % PITCH)
        A("v_add_u32 v22, s%d, v22\nv_add_u32 v22, %d, v22" % (sWL, VBASE))
        for t in range(4): A("v_xor_b32 v24, %d, v23\nv_lshl_add_u32 v%d, v24, 6, v22" % (t, vQR + t))
        if s.newtail == 3:
            sh = 4 if s.w128 else 3
            A("v_lshrrev_b32 v%d, 4, v0\nv_lshlrev_b32 v%d, 9, v%d\nv_add_u32 v%d, s%d, v%d" % (vE, vE + 1, vE, vE + 1, sWL, vE + 1))
            A("v_and_b32 v%d, 1, v%d\nv_lshlrev_b32 v%d, 2, v%d" % (vE, vE, vE, vE))
            A("v_and_b32 v%d, 15, v0\nv_xor_b32 v%d, v%d, v%d\nv_lshl_add_u32 v%d, v%d, %d, v%d" % (vE + 2, vE + 2, vE + 2, vE, vW, vE + 2, sh, vE + 1))
            A("v_bfe_u32 v%d, v0, 1, 1\nv_lshl_add_u32 v%d, v%d, %d, v%d" % (vE + 2, vE + 1, vE + 2, 3 if s.w128 else 7, vE + 1))
            A("v_and_b32 v%d, 1, v0\nv_bfe_u32 v%d, v0, 2, 2\nv_lshl_add_u32 v%d, v%d, 3, v%d\nv_xor_b32 v%d, v%d, v%d" % (vE + 2, vE + 3, vE + 2, vE + 2, vE + 3, vE + 2, vE + 2, vE))
            A("v_lshl_add_u32 v%d, v%d, %d, v%d\nv_xor_b32 v%d, 4, v%d\nv_lshl_add_u32 v%d, v%d, %d, v%d" % (vOR, vE + 2, sh, vE + 1, vE + 2, vE + 2, vBP + 1, vE + 2, sh, vE + 1))
        elif s.newtail == 2:
            A("v_bfe_u32 v%d, v0, 4, 1\nv_mul_u32_u24 v%d, 5, v%d\nv_lshrrev_b32 v%d, 4, v0\nv_lshlrev_b32 v%d, 10, v%d" % (vE, vE, vE, vE + 1, vE + 1, vE + 1))
            A("v_and_b32 v%d, 3, v0\nv_lshl_add_u32 v%d, v%d, 2, v%d\nv_add_u32 v%d, s%d, v%d" % (vE + 2, vE + 1, vE + 2, vE + 1, vE + 1, sWL, vE + 1))
            A("v_bfe_u32 v%d, v0, 2, 2\nv_xor_b32 v%d, v%d, v%d" % (vE + 2, vE + 2, vE + 2, vE))
            for e in range(4): A("v_xor_b32 v%d, %d, v%d\nv_lshl_add_u32 v%d, v%d, 4, v%d" % (vW + e, 4 * e, vE + 2, vW + e, vW + e, vE + 1))
            A("v_and_b32 v%d, 7, v0\nv_lshlrev_b32 v%d, 1, v%d\nv_xor_b32 v%d, v%d, v%d" % (vE + 2, vE + 2, vE + 2, vE + 2, vE + 2, vE))
            A("v_lshlrev_b32 v%d, 6, v%d\nv_add_u32 v%d, s%d, v%d" % (vE + 1, vBP, vE + 1, sWL, vE + 1))
            A("v_lshl_add_u32 v%d, v%d, 4, v%d\nv_xor_b32 v%d, 1, v%d\nv_lshl_add_u32 v%d, v%d, 4, v%d" % (vOR, vE + 2, vE + 1, vE + 2, vE + 2, vBP + 1, vE + 2, vE + 1))
        else:
            A("v_and_b32 v%d, 15, v0\nv_lshrrev_b32 v%d, 5, v0\nv_xor_b32 v%d, v%d, v%d\nv_lshlrev_b32 v%d, 4, v%d" % (vE, vE + 1, vE + 1, vE + 1, vE, vE + 1, vE + 1))
            A("v_lshl_add_u32 v%d, v%d, 8, v%d\nv_bfe_u32 v%d, v0, 4, 1\nv_lshl_add_u32 v%d, v%d, 3, v%d" % (vE + 1, vE, vE + 1, vE, vE + 1, vE, vE + 1))
            for db in range(8): A("v_xor_b32 v%d, %d, v%d\nv_add_u32 v%d, s%d, v%d" % (vW + db, db * 32, vE + 1, vW + db, sWL, vW + db))
            A("v_lshrrev_b32 v%d, 3, v0\nv_and_b32 v%d, 7, v0\nv_xor_b32 v%d, v%d, v%d\nv_lshlrev_b32 v%d, 4, v%d" % (vE, vE + 1, vE + 1, vE + 1, vE, vE + 1, vE + 1))
            A("v_lshl_add_u32 v%d, v%d, 8, v%d\nv_add_u32 v%d, s%d, v%d" % (vE + 1, vE, vE + 1, vOR, sWL, vE + 1))
        c = 1.4426950408889634 / (128.0 ** 0.5)
        A("s_mov_b32 s%d, %s\ns_mov_b32 s%d, %s" % (sC, f32(c), sC + 1, f32(c)))
        A("s_mov_b32 s%d, %d" % (sCNT, 6 if s.peel else 7))
        if s.peel: A("v_subrev_u32 v%d, %d, v%d" % (vV2, VBASE, vV))
        A("s_mov_b32 s%d, 0x07060302" % sSEL)
        if s.sp:
            A("v_and_b32 v22, %d, v0\nv_cmp_gt_u32 vcc, 2, v22\nv_mov_b32 v23, 0x3f803f80\nv_and_b32 v22, 1, v0\nv_cndmask_b32 v%d, 0, v23, vcc" % (15 if s.ones1 else 3, vONE))
            A("v_cmp_eq_u32 vcc, 0, v22\nv_mov_b32 v23, 0x44444444\nv_mov_b32 v24, 0xeeeeeeee\nv_cndmask_b32 v%d, v24, v23, vcc" % vIDX)
        elif s.ones4:
            A("v_and_b32 v22, 3, v0\nv_cmp_eq_u32 vcc, 0, v22\nv_mov_b32 v23, 0x3f803f80\ns_nop 0\nv_cndmask_b32 v%d, 0, v23, vcc" % vONE)
        else:
            A("v_mov_b32 v%d, 0x3f803f80" % vONE)
        for i in range(1, 4): A("v_mov_b32 v%d, v%d" % (vONE + i, vONE))
        if s.pst == 1: s.stamp(4, True)
        for i in range(128): A("v_accvgpr_write_b32 a%d, 0" % i)
        for i in range(16): A("v_mov_b32 v%d, 0" % (vL(0) + i))
        for qb in range(4): A("v_mov_b32 v%d, 0" % vA(qb))
        s.stamp(0)
        if s.pst == 1:
            s.stamp(5, True)
            A("s_waitcnt vmcnt(%d)" % (s.nfirst - 1))
            s.stamp(6, True)
        if s.pre0 or s.pre1 or s.pre2:
            A("s_mov_b32 s85, 0x9e3779b1\nv_add_u32 v100, 1, v0")
            for i in range(16):
                A("v_mul_lo_u32 v100, v100, s85\nv_and_b32 v%d, 0xbfffbfff, v100\nv_or_b32 v%d, 0x3c003c00, v%d" % (104 + i, 104 + i, 104 + i))
            s.dummy(s.pre0)
        issue(s.nsecond - st["n"])
        for qb in range(4):
            if qb and s.pre1: s.dummy(s.pre1)
            waitfor("Q%d" % qb)
            if qb == 0: s.stamp(1)
            for t in range(4): A("ds_read_b128 %s, v%d offset:%d" % (R("v", 128 + 4 * t, 4), vQR + t, qb * SLOT))
            if qb == 0:
                A("s_barrier")
                for t in range(4): A(s.kread(0, 0, 0, t))
                if s.prepass == 2:
                    for t in range(4): A(s.kread(1, 0, 1, t))
            for f in range(4):
                b = 128 + 4 * f
                if f < s.nq[qb] and st["n"] < len(Q) and Q[st["n"]][0] not in ["V%d" % x for x in range(qb, 4)]: issue(1)
                A("s_waitcnt lgkmcnt(%d)" % (3 - f + (4 * s.prepass if qb == 0 else 0)))
                for i in range(4):
                    A("v_lshlrev_b32 v%d, 16, v%d\nv_and_b32 v%d, 0xffff0000, v%d" % (vT + 2 * i, b + i, vT + 2 * i + 1, b + i))
                for i in range(4):
                    A("v_pk_mul_f32 %s, %s, %s" % (R("v", vT + 2 * i, 2), R("v", vT + 2 * i, 2), R("s", sC, 2)))
                for i in range(4):
                    A("v_cvt_pk_bf16_f32 v%d, v%d, v%d" % (vT + 8 + i, vT + 2 * i, vT + 2 * i + 1))
                for i in range(4):
                    A("v_accvgpr_write_b32 a%d, v%d" % (aQ(qb, f) + i, vT + 8 + i))
        s.stamp(2)
        A("s_waitcnt lgkmcnt(0)")
        for rep in range(s.prepass):
            for qb in range(4):
                for t in range(4): A(s.qk(rep, qb, t, zero=True))
                if qb & 1: issue(1)
            A("s_nop 4")
            for qb in range(4):
                S = vS(qb)
                A("v_max3_f32 v%d, v%d, v%d, v%d" % (vM(qb), vM(qb), S, S + 1))
            for qb in range(4):
                S = vS(qb)
                A("v_max3_f32 v%d, v%d, v%d, v%d" % (vM(qb), vM(qb), S + 2, S + 3))
        for sw in ("v_permlane32_swap_b32", "v_permlane16_swap_b32"):
            for qb in range(4): A("v_mov_b32 v%d, v%d" % (vT + qb, vM(qb)))
            for qb in range(4): A("%s v%d, v%d" % (sw, vT + qb, vM(qb)))
            for qb in range(4): A("v_max_f32 v%d, v%d, v%d" % (vM(qb), vM(qb), vT + qb))
            issue(1)
        issue(len(Q))
        A("s_mov_b32 s%d, %s" % (sT, f32(-s.bias)))
        for qb in range(4): A("v_sub_f32 v%d, s%d, v%d" % (vNM(qb), sT, vM(qb)))
        for qb in range(4):
            for i in range(1, 4): A("v_mov_b32 v%d, v%d" % (vNM(qb) + i, vNM(qb)))
        if s.novalu:
            for i in range(128): A("v_accvgpr_read_b32 v%d, a%d" % (128 + i, 128 + (i & 63)))
        if s.nolds:
            for t in range(4): A(s.kread(1, 0, 1, t))
            for bf in range(2):
                for r in range(8): A(s.vread(bf, 2, bf, r))
            A("s_waitcnt lgkmcnt(0)")
        if s.instr == 3: A("s_mov_b32 s76, 0")
        if s.instr == 4: A("s_mov_b32 s76, 0\ns_add_u32 s77, s40, 7000\ns_memrealtime s[74:75]\ns_waitcnt lgkmcnt(0)\ns_add_u32 s74, s74, 200\ns_mov_b32 s78, 0")
        A("s_nop 0")
        s.stamp(3)
        n0 = len(s.lines)
        for b in range(8): s.block(1, b, do_pv=False, first=True)
        if s.warm2: A("global_load_dword v39, v38, s[86:87]")
        s.lines = hazards.pad(s.lines)
        s.stamp(4)
        A(".p2align 6")
        A("L_loop:")
        n0 = len(s.lines)
        for b in range(8): s.block(0, b, last=(b == 7))
        A("s_cbranch_scc1 L_tail")
        n1 = len(s.lines)
        for b in range(8): s.block(1, b)
        body = s.lines[n0:]
        A("s_branch L_loop")
        A("L_tail:")
        n2 = len(s.lines)
        if s.peel:
            for eb in range(16): s.block(1 - (eb >> 3), eb & 7, eb=eb)
        s.stamp(5)
        assert s.sp and len(s.msum_qb) == 4
        def conv(n):
            qb, db = n & 3, n >> 2
            tb = vE + 6 * (n % 4)
            o = aO(qb, db)
            ops = ["v_accvgpr_read_b32 v%d, a%d" % (tb + i, o + i) for i in range(4)]
            ops += ["v_mul_f32 v%d, v%d, v%d" % (tb + i, tb + i, vT + qb) for i in range(4)]
            ops += ["v_cvt_pk_bf16_f32 v%d, v%d, v%d" % (tb + 4 + i, tb + 2 * i, tb + 2 * i + 1) for i in range(2)]
            return ops
        def owrite(n): return "ds_write_b64 v%d, %s offset:%d" % (vW + (n >> 2), R("v", vE + 6 * (n % 4) + 4, 2), (n & 3) * SLOT)
        def oread(h, qb, i):
            return "ds_read_b128 %s, v%d offset:%d" % (R("v", 128 + 32 * h + 8 * qb + 4 * i, 4), vOR, qb * SLOT + i * 2048 + ((h ^ i) * 128))
        def ostore(h, qb, i):
            return "buffer_store_dwordx4 %s, v%d, %s, s%d offen offset:%d %s" % (R("v", 128 + 32 * h + 8 * qb + 4 * i, 4), vOA, R("s", sO, 4), sQB + qb, i * 2048 + h * 128, s.st)
        def lfin(qb): return ["v_add_f32 v%d, v%d, v%d" % (vL(qb), vL(qb), vL(qb) + 1), "v_rcp_f32 v%d, v%d" % (vT + qb, vL(qb))]
        left = [s.sm_op(k, q, i, 1, 7) for g, k, q, i in sorted(s.sm_table(False)) if g >= 32]
        T = []
        m = s.msums(1, 0) + s.msums(1, 1) + s.msums(1, 2)
        for i, x in enumerate(m):
            T.append(x)
            if i == 0: T.append("s_mov_b32 s%d, %s" % (sT, f32(s.thr)))
            if i < len(left): T.append(left[i])
        sh = [[[] for k in range(4)] for n in range(32)]
        ds = [[[] for k in range(4)] for n in range(32)]
        va = [[[] for k in range(4)] for n in range(32)]
        for n in range(32):
            qb, db = n & 3, n >> 2
            if db < 7:
                for u in range(2): ds[n][2 * u].append(s.vread((db + 1) & 1, 2, db + 1, 2 * qb + u))
            if n >= 2:
                c = conv(n - 2)
                for k, (x, y) in enumerate(((0, 3), (3, 6), (6, 8), (8, 10))): va[n][k] += c[x:y]
            if n >= 3: ds[n][1].append(owrite(n - 3))
        sh[3][1].append("s_waitcnt vmcnt(2)")
        sh[5][1].append("s_waitcnt vmcnt(0)")
        for j, qb in enumerate((0, 1, 2)):
            x = lfin(qb); va[0 if j < 1 else 1][(2, 0, 2)[j]].append(x[0]); va[0 if j < 1 else 1][(3, 1, 3)[j]].append(x[1])
        x = lfin(3); va[3][2].append(x[0]); va[3][3].append(x[1])
        va[4][2].append("v_add_f32 v%d, v%d, v%d" % (vT + 5, vL(0), vL(1)))
        va[4][3].append("v_add_f32 v%d, v%d, v%d" % (vT + 6, vL(2), vL(3)))
        va[5][2].append("v_add_f32 v%d, v%d, v%d" % (vT + 5, vT + 5, vT + 6))
        va[5][3].append("v_cmp_nge_f32 vcc, s%d, v%d" % (sT, vT + 5))
        for j in range(8):
            ds[15 + j][3].append(oread(0, j >> 1, j & 1))
            ds[17 + j][2].append(ostore(0, j >> 1, j & 1))
        ds[31][2].append(oread(1, 0, 0)); ds[31][3].append(oread(1, 0, 1))
        for n in range(32):
            qb, db = n & 3, n >> 2
            for k in range(4):
                T.append(s.pv(db & 1, 1, qb, db, k))
                T += sh[n][k] + ds[n][k] + va[n][k]
            if n == 0: T += s.msums(1, 3)
            if s.tst and n in (3, 11, 19, 27, 31): T.append("s_memtime s[%d:%d]" % (48 + 2 * (3, 11, 19, 27, 31).index(n), 49 + 2 * (3, 11, 19, 27, 31).index(n)))
        T += [owrite(29), oread(1, 1, 0), oread(1, 1, 1)] + conv(30) + [ostore(1, 0, 0), ostore(1, 0, 1), owrite(30), oread(1, 2, 0), oread(1, 2, 1)]
        T += conv(31) + [ostore(1, 1, 0), ostore(1, 1, 1), owrite(31), oread(1, 3, 0), oread(1, 3, 1)]
        T += [ostore(1, 2, 0), ostore(1, 2, 1), ostore(1, 3, 0), ostore(1, 3, 1)]
        if s.newtail == 2: T = s.tail2()
        if s.newtail == 3: T = s.tail3()
        if s.nost: T = [x for x in T if not x.startswith("buffer_store")]
        for x in hazards.autowait(T): A(x)
        pre = s.lines[n0:n1]
        s.lines[n2:] = hazards.pad(pre + s.lines[n2:], start=len(pre))[len(pre):]
        s.stamp(6)
        if s.nodma or s.novalu or s.nolds: A("s_branch L_fin")
        A("s_cmp_lg_u32 s%d, 0\ns_cbranch_scc1 L_fin" % sPASS)
        A("s_cmp_lg_u64 vcc, 0\ns_cselect_b32 s%d, 1, 0" % sT)
        A("s_lshl_b32 s%d, s%d, 2\ns_add_u32 s%d, s%d, %d" % (sT + 1, sW, sT + 1, sT + 1, FLAG_OFF))
        A("v_mov_b32 v%d, s%d\nv_mov_b32 v%d, s%d\nv_mov_b32 v%d, %d" % (vT, sT, vT + 1, sT + 1, vT + 2, FLAG_OFF))
        A("ds_write_b32 v%d, v%d\ns_waitcnt lgkmcnt(0)\ns_barrier" % (vT + 1, vT))
        A("ds_read_b128 %s, v%d\ns_waitcnt lgkmcnt(0)" % (R("v", vT + 8, 4), vT + 2))
        A("v_or3_b32 v%d, v%d, v%d, v%d\nv_or_b32 v%d, v%d, v%d\ns_nop 1" % (vT, vT + 8, vT + 9, vT + 10, vT, vT, vT + 11))
        A("v_readfirstlane_b32 s%d, v%d\ns_nop 3\ns_cmp_eq_u32 s%d, 0\ns_cbranch_scc0 L_redo" % (sT, vT, sT))
        A("L_fin:")
        if s.dbg == -1:
            A("s_waitcnt vmcnt(0)")
            A("s_memrealtime s[42:43]\ns_memtime s[46:47]\ns_load_dwordx2 s[64:65], s[0:1], 32\ns_waitcnt lgkmcnt(0)")
            A("s_mov_b32 s68, s64\ns_mov_b32 s69, s65\ns_mov_b32 s70, 256\ns_mov_b32 s71, 0x20000")
            A("s_cmp_ge_u32 s2, 8\ns_cbranch_scc1 L_end\ns_cmp_lg_u32 s3, 0\ns_cbranch_scc1 L_end")
            A("s_lshl_b32 s36, s2, 2\nv_mov_b32 v3, s36\ns_mov_b64 exec, 1")
            A("s_sub_u32 s36, s42, s40\nv_mov_b32 v8, s36\ns_sub_u32 s36, s46, s44\nv_mov_b32 v9, s36")
            A("buffer_store_dword v8, v3, s[68:71], 0 offen\nbuffer_store_dword v9, v3, s[68:71], 0 offen offset:32")
        elif s.probe is not None:
            A("s_waitcnt vmcnt(0)")
            A("s_memrealtime s[42:43]\ns_memtime s[46:47]\ns_waitcnt lgkmcnt(0)")
            A("s_cmp_lg_u32 s2, %d\ns_cbranch_scc1 L_end" % s.probe[3])
            a, b, div = s.probe[:3]
            A("s_sub_u32 s36, s%d, s%d" % (a, b))
            if div == 10: A("s_mul_hi_u32 s36, s36, 429496730")
            if div == 0: A("s_mov_b32 s36, 0")
            if div == -1: A("s_mul_i32 s36, s36, 500")
            A("s_add_u32 s36, s36, 15000\ns_add_u32 s36, s36, s40")
            A("L_spin:\ns_sleep 4\ns_memrealtime s[42:43]\ns_waitcnt lgkmcnt(0)\ns_sub_u32 s37, s42, s36\ns_cmp_lt_i32 s37, 0\ns_cbranch_scc1 L_spin")
        elif s.stamps:
            A("s_waitcnt vmcnt(0)")
            A("s_memrealtime s[42:43]\ns_memtime s[46:47]\ns_getreg_b32 s62, hwreg(HW_REG_XCC_ID)\ns_mov_b32 s63, 0\ns_waitcnt lgkmcnt(0)")
            A("s_mov_b32 s68, s64\ns_mov_b32 s69, s65\ns_mov_b32 s70, 0x100000\ns_mov_b32 s71, 0x20000")
            A("s_lshl_b32 s37, s2, 2\ns_add_u32 s37, s37, s3\ns_mul_i32 s37, s37, 96\nv_mov_b32 v3, s37")
            if s.instr == 3:
                A("s_lshl_b32 s38, s2, 2\ns_add_u32 s38, s38, s3\ns_lshl_b32 s38, s38, 9\ns_add_u32 s38, s38, 0x20000\nv_lshlrev_b32 v4, 3, v0\nv_add_u32 v4, s38, v4")
                A("buffer_store_dwordx2 v[46:47], v4, s[68:71], 0 offen")
            for j, r in enumerate([40, 42, 44, 46] + list(range(48, 64, 2))):
                A("v_mov_b32 v8, s%d\nv_mov_b32 v9, s%d" % (r, r + 1))
                A("buffer_store_dwordx2 v[8:9], v3, s[68:71], 0 offen offset:%d" % (j * 8))
                A("s_nop 1")
        A("L_end:\ns_endpgm")
        A("L_redo:")
        A("s_mov_b32 s%d, 1\ns_mov_b32 s%d, 0" % (sPASS, sSOK))
        A("s_waitcnt vmcnt(0)")
        A("L_maxpass:")
        A("s_barrier")
        for x in group(True, 0): A(x)
        A("s_waitcnt vmcnt(0)\ns_barrier")
        for j in range(4):
            for t in range(4): A(s.kread(0, 0, j, t))
            A("s_waitcnt lgkmcnt(0)")
            for qb in range(4):
                for t in range(4): A(s.qk(0, qb, t, zero=True))
            A("s_nop 7")
            for qb in range(4):
                S = vS(qb)
                A("v_max3_f32 v%d, v%d, v%d, v%d" % (vM(qb), vM(qb), S, S + 1))
                A("v_max3_f32 v%d, v%d, v%d, v%d" % (vM(qb), vM(qb), S + 2, S + 3))
        A("s_cmp_lt_u32 s%d, 0x80000\ns_cbranch_scc1 L_maxpass" % sSOK)
        A("s_barrier\ns_branch L_start")
        A("L_last:")
        A('.section .rodata,"a"\n.p2align 6\n.amdhsa_kernel %s' % KN)
        A("  .amdhsa_next_free_vgpr 512\n  .amdhsa_next_free_sgpr 102\n  .amdhsa_accum_offset 256\n  .amdhsa_group_segment_fixed_size 0\n  .amdhsa_kernarg_size 48\n  .amdhsa_user_sgpr_count 2\n  .amdhsa_user_sgpr_kernarg_segment_ptr 1\n  .amdhsa_system_sgpr_workgroup_id_x 1\n  .amdhsa_float_denorm_mode_32 3\n.end_amdhsa_kernel")
        vb = not (s.nodma or s.novalu or s.nolds)
        errs = hazards.check(s.lines[:n2], "linear", vb) + hazards.check(body + body, "loop", vb) + hazards.check(s.lines[n0:n1] + s.lines[n2:], "tail", vb)
        return "\n".join(s.lines) + "\n", errs

def gen(name, **kw):
    txt, errs = Gen(**kw).build()
    open(name, "w").write(txt)
    return errs

if __name__ == "__main__":
    import ast
    name = sys.argv[1]
    kw = {}
    for a in sys.argv[2:]:
        k, v = a.split("=", 1)
        try: kw[k] = ast.literal_eval(v)
        except Exception: kw[k] = v
    e = gen(name, **kw)
    print(name, "hazards:", len(e))
```

```python
import sys, struct
import hazards

KN = "standalone__mha_softmax__near_ridge_kernel"
PITCH = 1056
SLOT = 16 * PITCH
VBASE = 4 * SLOT
FLAG_OFF = 8 * SLOT
LDS_BYTES = 8 * SLOT + 64
BIASB = 1888

def f32(x): return "0x%08x" % struct.unpack("<I", struct.pack("<f", x))[0]
def R(p, b, n): return "%s[%d:%d]" % (p, b, b + n - 1)

vDMA = 2
vK = 6
vV = 7
vQA = 8
vOA = 9
def vA(qb): return 12 + qb
def vM(qb): return 16 + qb
vT = 20
def vS(qb, st=0): return (100 if st else 48) + 4 * qb
def vNM(qb): return 64 + 4 * qb
vONE = 80
def vL(qb): return 84 + 4 * qb
vE = 100
vQR = 40
vW = 32
vOR = 44
vV2 = 33
vBP = 36
def vP(buf, qb, ks): return 128 + buf * 64 + qb * 16 + ks * 4
def aO(qb, db): return (qb * 8 + db) * 4
def aQ(qb, t): return 128 + (qb * 4 + t) * 4
def aK(buf, t): return 192 + buf * 16 + 4 * t
def aV(buf, ks): return 224 + buf * 16 + 4 * ks

sW = 3
sQ, sK, sV, sO = 4, 8, 12, 16
sSOK, sSOV = 20, 21
sWL = 22
sCNT = 23
sPASS = 32
sC = 34
sT = 36
sSEL = 84
vIDX = 45
sQB = 80
MF = "v_mfma_f32_16x16x32_bf16"

PATHS = {
    "row": [(q, k) for q in range(4) for k in range(4)],
    "rsn": [(q, 3 - k if q & 1 else k) for q in range(4) for k in range(4)],
    "rsr": [(3 - q, 3 - k if q & 1 else k) for q in range(4) for k in range(4)],
    "col": [(q, k) for k in range(4) for q in range(4)],
    "csn": [(3 - q if k & 1 else q, k) for k in range(4) for q in range(4)],
    "hil": [(0,0),(0,1),(1,1),(1,0),(2,0),(3,0),(3,1),(2,1),(2,2),(3,2),(3,3),(2,3),(1,3),(1,2),(0,2),(0,3)],
    "zig": [(0,0),(0,1),(1,1),(1,0),(2,0),(2,1),(3,1),(3,0),(3,2),(3,3),(2,3),(2,2),(1,2),(1,3),(0,3),(0,2)],
    "zg2": [(0,0),(1,0),(1,1),(0,1),(0,2),(1,2),(1,3),(0,3),(2,3),(3,3),(3,2),(2,2),(2,1),(3,1),(3,0),(2,0)],
}

class Gen:
    def __init__(s, ld="nt", qld="nt", st="nt", stamps=0, bias=10.0, thr=2.0 ** 40, summode="sp", nodma=0, nobar=0, novalu=0, nolds=0,
                 warm=1, instr=0, probe=None, dbg=None, dmagaps=None, pad=0, otlb=8, ones4=1, prepass=1, mspos=23, nfirst=12, nsecond=16, hmap=0, lim=0, lim1=0, padn=0, perm=0, smpl=1, lim2=0, share=(), latev=0, pre0=0, pre1=0, pre2=0, lin=1, dist=0, s0=-1, npre=None, fcnt=None, vtlb=0, newtail=1, nq=(4, 4, 4, 4), rot=0, tst=0, nost=0, pst=0, pvswap=0, qkswap=0, order=0, snake=0, qo=None, po=None, sdb=0, off=0, qseq=(0, 1, 2, 3), ones1=0, tb=3, tlat=5, wpos=(2, 3), tnv=2, operm=0, w128=0, clag=2, tord=0, vlat=4, cst=2, tad=0, f7=2, lim7=0, sfrom=0, sprio=0, peel=0, ecnt=None, edist=8, warm2=0, dg3=None, dg4=None, dist2=0):
        s.__dict__.update(locals())
        s.lines = []
        s.msum_qb = {"mfma": (0, 1, 2, 3), "hybrid": (0, 2), "valu": (), "sp": (0, 1, 2, 3), "sphy": (0, 2)}[summode]
        s.sp = summode.startswith("sp")
        s.dmagaps = {1: (24,), 2: (24, 28), 3: (24, 26, 28), 4: (24, 26, 28, 30)}
        if dmagaps: s.dmagaps[len(dmagaps)] = dmagaps
        if dg3: s.dmagaps[3] = dg3
        if dg4: s.dmagaps[4] = dg4
        s.vm1 = 2 * (3 - s0)
        s.vm2 = 2 * (7 - s0) - 12
        if npre is None: s.npre = -2 * s0
        if fcnt is None:
            rest = 2 * (8 - s0) - f7 - s.npre
            s.fcnt = [rest // 7 + (1 if i < rest % 7 else 0) for i in range(7)]
        assert sum(s.fcnt) + s.npre + f7 == 2 * (8 - s0) and max(s.fcnt) <= 4
        if peel:
            if ecnt is None: s.ecnt = ([2] * (12 + s0) + [0] * 16)[:16]
            assert sum(s.ecnt) == 24 + 2 * s0
            ev = [(32 * b + g, 2 * (b - s0) + i) for b in range(-4, 0) for i, g in enumerate(s.dmagaps[2])]
            p = -2 * s0
            for b in range(16):
                for g in (s.dmagaps[s.ecnt[b]] if s.ecnt[b] else ()):
                    assert b >= {4: 3, 5: 7}.get(p >> 2, -1)
                    ev.append((32 * b + g, p)); p += 1
            s.ev = ev
        s.add_qb = tuple(q for q in range(4) if q not in s.msum_qb)
    def A(s, x): s.lines.append(x)

    def m0set(s, lds_off): return "s_add_u32 m0, s%d, %d" % (sWL, lds_off)
    def dma(s, isK, i):
        return "buffer_load_dwordx4 v%d, %s, s%d offen offset:%d %s lds" % (vDMA + i, R("s", sK if isK else sV, 4), sSOK if isK else sSOV, i * PITCH, s.ld)
    def adv(s, isK):
        so = sSOK if isK else sSOV
        if s.rot: return "s_add_u32 s%d, s%d, 0x4000\ns_and_b32 s%d, s%d, 0x7ffff" % (so, so, so, so)
        return "s_add_u32 s%d, s%d, 0x4000" % (so, so)
    def kread(s, buf, slot, j, t):
        return "ds_read_b128 %s, v%d offset:%d" % (R("a", aK(buf, t), 4), vK, slot * SLOT + j * 256 + t * 64)
    def vread(s, buf, slot0, db, r, va=vV):
        ks, u = r >> 1, r & 1
        return "ds_read_b64_tr_b16 %s, v%d offset:%d" % (R("a", aV(buf, ks) + 2 * u, 2), va, (slot0 + (ks >> 1)) * SLOT + (2 * (ks & 1) + u) * 256 + db * 32)
    def qk(s, buf, qb, t, zero=False, rev=False, start=None):
        st = buf if s.sdb and not zero else 0
        if start is None: start = t == 0
        c = R("v", vS(qb, st), 4) if not start else ("0" if zero else R("v", vNM(qb), 4))
        if rev: t = 3 - t
        if s.qkswap: return "%s %s, %s, %s, %s" % (MF, R("v", vS(qb, st), 4), R("a", aQ(qb, t), 4), R("a", aK(buf, t), 4), c)
        return "%s %s, %s, %s, %s" % (MF, R("v", vS(qb, st), 4), R("a", aK(buf, t), 4), R("a", aQ(qb, t), 4), c)
    def pv(s, buf, pbuf, qb, db, ks):
        o = R("a", aO(qb, db), 4)
        if s.pvswap: return "%s %s, %s, %s, %s" % (MF, o, R("v", vP(pbuf, qb, ks), 4), R("a", aV(buf, ks), 4), o)
        return "%s %s, %s, %s, %s" % (MF, o, R("a", aV(buf, ks), 4), R("v", vP(pbuf, qb, ks), 4), o)
    def msum(s, pbuf, qb, ks):
        o = R("v", vL(qb), 4)
        return "%s %s, %s, %s, %s" % (MF, o, R("v", vONE, 4), R("v", vP(pbuf, qb, ks), 4), o)

    def msums(s, pbuf, qb):
        if not s.sp: return [s.msum(pbuf, qb, ks) for ks in range(4)]
        return ["v_smfmac_f32_16x16x64_bf16 %s, %s, %s, v%d" % (R("v", vL(qb), 4), R("v", vONE, 4), R("v", vP(pbuf, qb, 2 * h), 8), vIDX) for h in range(2)]

    def sm_table(s, first=False):
        t = []
        if first:
            for qb in range(4):
                for e in range(4):
                    t.append((4 * qb + 6 + e, "exp", qb, e))
                    if qb in s.add_qb: t.append((4 * qb + 7 + e, "add", qb, e))
                for h in range(2): t.append((4 * qb + 8 + 2 * h, "cvt", qb, h))
        else:
            addslot = {1: (16, 20, 26, 30), 3: (32, 36, 40, 44), 0: (10, 14, 18, 22), 2: (26, 30, 34, 38)}
            for j, qb in enumerate(s.qseq):
                for e in range(4): t.append((s.off + 8 * j + 7 + 2 * e, "exp", qb, e))
                for h in range(2): t.append((s.off + 8 * j + 10 + 4 * h, "cvt", qb, h))
            for qb in s.add_qb:
                for e in range(4): t.append((addslot[qb][e], "add", qb, e))
        return t
    def sm_op(s, kind, qb, i, wbuf, bb):
        S = vS(qb, bb & 1 if s.sdb else 0)
        if kind == "exp": return "v_exp_f32 v%d, v%d" % (S + i, S + i)
        if kind == "add": return "v_add_f32 v%d, v%d, v%d" % (vA(qb), vA(qb), S + i)
        d = vP(wbuf, qb, bb >> 1) + 2 * (bb & 1) + i
        if s.perm: return "v_perm_b32 v%d, v%d, v%d, s%d" % (d, S + 2 * i + 1, S + 2 * i, sSEL)
        return "v_cvt_pk_bf16_f32 v%d, v%d, v%d" % (d, S + 2 * i, S + 2 * i + 1)

    def seq(s, p, par):
        grp, piece, pp = (p % 16) >> 2, p & 3, (par + p // 16) & 1
        isK = grp in (0, 3)
        slot = (2 * pp + (4, 2, 3, 5)[grp]) & 3
        return (isK, slot * SLOT + (0 if isK else VBASE), piece)
    def dma_plan(s, par, b, first=False):
        if first:
            p0 = s.npre + sum(s.fcnt[:b])
            return [s.seq(p, par) for p in range(p0, p0 + (s.fcnt[b] if b < 7 else s.f7))]
        return [s.seq(2 * (b - s.s0) + i, par) for i in range(2)]

    def eseq(s, p):
        if p < 16: return s.seq(p, 1)
        return (False, ((p >> 2) - 4) * SLOT, p & 3)
    def after(s, pos, p):
        return sum(1 for g, q in s.ev if g <= pos and q > p)

    def block(s, par, b, do_qk=True, do_pv=True, first=False, last=False, extra=None, eb=None):
        n = 16 if first else 32
        sh = [[] for _ in range(n)]
        mem = [[] for _ in range(n)]
        va = [[] for _ in range(n)]
        flush = []
        if not s.novalu:
            tab = s.sm_table(first)
            if (do_qk or b == 0) and not (first and b == 0):
                pp = par if b else par ^ 1
                for g, kind, qb, i in tab:
                    if g >= n: va[g - n].append(s.sm_op(kind, qb, i, pp ^ 1, (b - 1) & 7))
            if do_qk:
                for g, kind, qb, i in tab:
                    if g < n: va[g].append(s.sm_op(kind, qb, i, par ^ 1, b))
                if first and b == 7:
                    keep = set((k, q, i) for g, k, q, i in s.sm_table(False) if g >= 32)
                    for g, kind, qb, i in sorted(tab):
                        if g >= n and (kind, qb, i) not in keep: flush.append(s.sm_op(kind, qb, i, par ^ 1, b))
        buf = b & 1
        nb = (b + 1) & 7
        npar = par if b < 7 else par ^ 1
        plan = s.dma_plan(par, b, first) if do_qk else []
        if eb is not None: plan = [s.eseq(q) for g, q in s.ev if g >> 5 == eb]
        gaps = s.dmagaps[len(plan)] if plan else ()
        if first: gaps = {0: (), 1: (5,), 2: (3, 11), 3: (1, 7, 13), 4: (1, 5, 9, 13)}[len(plan)]
        if first: dsg = [0, 2, 4, 6] + list(range(8, 16))
        else: dsg = [g for g in range(0, 32, 2) if g not in gaps or g in s.share]
        if do_qk:
            kslot = (2 if npar == 0 else 0) + (nb >> 2)
            for t in range(4):
                if not s.nolds and eb != 15: mem[dsg[t]].append(s.kread(buf ^ 1, kslot, nb & 3, t))
        if (do_pv and (do_qk or b < 7)) or (b == 7 and do_qk):
            for r in range(8):
                if not s.nolds: mem[dsg[4 + r]].append(s.vread(buf ^ 1, 0 if npar == 0 or eb == 15 else 2, nb, r, vV2 if eb == 15 else vV))
        if do_qk:
            for (isK, off, piece), g in zip(plan, gaps):
                if not s.nodma:
                    if piece == 0 or g == gaps[0] and s.instr == 3: sh[g - 1].append(s.m0set(off))
                    if first and s.lim1: mem[g].append("s_waitcnt vmcnt(%d)" % ((s.lim7 if b == 7 and s.lim7 else s.lim1) - 1))
                    if not first and s.lim2: sh[g].append("s_waitcnt vmcnt(%d)" % (s.lim2 - 1))
                    mem[g].append(s.dma(isK, piece))
                if piece == 3: sh[g + 1].append(s.adv(isK))
            if eb is not None:
                lastp = {}
                for g, q in s.ev: lastp[g if s.dist2 else g >> 5] = (g, q)
                for bb, (g, q) in lastp.items():
                    x = g + s.dist
                    if s.dist and x >> 5 == eb and eb < s.edist: sh[x & 31].append("s_waitcnt vmcnt(%d)" % s.after(x - 1, q))
            elif s.dist and not first:
                for g2 in (gaps if s.dist2 else gaps[-1:]):
                    x = (g2 + s.dist) % 32
                    cnt = sum(1 for k in range(1, s.dist) if (g2 + k) % 32 in gaps)
                    sh[x].append("s_waitcnt vmcnt(%d)" % cnt)
            if eb in (2, 6, 10, 14):
                w = "s_waitcnt vmcnt(%d) lgkmcnt(0)" % s.after(32 * eb + 31, {2: -1, 6: 11, 10: 15, 14: 23}[eb])
            elif b in (2, 6):
                w = "s_waitcnt vmcnt(%d) lgkmcnt(0)" % ((s.npre + sum(s.fcnt[:3]) if first else s.vm1) if b == 2 else s.vm2 - (s.f7 - 2 if first else 0))
            elif s.latev and not first and b != 7:
                w = "s_waitcnt lgkmcnt(8)"
            else:
                w = "s_waitcnt lgkmcnt(0)"
            if s.latev and not first and b not in (0, 3, 7):
                lv = 15 if s.qo else 3
                sh[lv].append("s_waitcnt lgkmcnt(%d)" % sum(1 for g in dsg[:12] if g < lv))
            if first and b == 6 and s.pre2:
                n0 = len(s.lines); s.dummy(s.pre2); flush += s.lines[n0:]; del s.lines[n0:]
            if flush: flush.append(w)
            else: sh[n - 1].append(w)
            if b in (3, 7):
                if not s.nobar: sh[0].insert(0, "s_barrier")
                if s.instr == 3:
                    sh[0].insert(1, "s_memrealtime s[72:73]\ns_memtime s[74:75]\ns_waitcnt lgkmcnt(0)\ns_mov_b32 m0, s76\ns_nop 1\nv_writelane_b32 v46, s72, m0\nv_writelane_b32 v47, s74, m0\ns_add_u32 s76, s76, 1")
        else:
            sh[n - 1].append("s_waitcnt lgkmcnt(0)")
        if s.instr == 4 and do_qk:
            if b == 7: sh[1].append("s_memrealtime s[72:73]")
            if b == 0 and not first:
                sh[1].append("s_sub_u32 s75, s72, s74")
                sh[2].append("s_mov_b32 s74, s72")
                sh[4].append("s_cmp_gt_i32 s75, 310\ns_cselect_b32 s75, 1, 0\ns_cselect_b32 s79, s72, s77")
                sh[5].append("s_add_u32 s76, s76, s75")
                sh[6].append("s_min_u32 s77, s77, s79")
        if last:
            sh[31 if any("s_add" in x for x in sh[31]) else 30].append("s_sub_u32 s%d, s%d, 1" % (sCNT, sCNT))
        ms = None
        if do_pv and do_qk and s.msum_qb:
            place = {4: {1: 0, 3: 1, 5: 2, 7: 3}, 2: {1: 0, 5: 1}}[len(s.msum_qb)]
            if b in place: ms = s.msums(par, s.msum_qb[place[b]])
            if s.smpl == 2 and len(s.msum_qb) == 4:
                x = s.msums(par, b >> 1); k = len(x) // 2
                ms = x[k * (b & 1): k * (b & 1) + k]
        for pos in range(n):
            m = None
            if first: m = s.qk(buf, pos >> 2, pos & 3, rev=s.qo == "rsn" and pos & 4)
            else:
                ch, k = pos >> 2, pos & 3
                isq, qb = [((1, 0), (0, 0), (1, 1), (0, 1), (1, 2), (0, 2), (1, 3), (0, 3)),
                           ((1, 0), (1, 1), (1, 2), (1, 3), (0, 0), (0, 1), (0, 2), (0, 3)),
                           ((1, 0), (1, 1), (0, 0), (0, 1), (1, 2), (1, 3), (0, 2), (0, 3))][s.order][ch]
                rev = s.snake and (qb & 1)
                if s.qo:
                    path = PATHS[s.qo if pos < 16 else s.po]
                    qb, k = path[pos & 15]
                    if pos < 16: m = s.qk(buf, qb, k, start=all(q != qb for q, _ in path[:pos]))
                    else: m = s.pv(buf, par, qb, b, k)
                elif isq:
                    if do_qk: m = s.qk(buf, qb, k, rev=rev)
                elif do_pv: m = s.pv(buf, par, qb, b, 3 - k if rev else k)
            if m: s.A(m)
            for o in sh[pos] + mem[pos] + va[pos]: s.A(o)
            if extra:
                for o in extra(pos): s.A(o)
            if s.pad and m: s.A("s_nop %d" % (s.pad - 1))
            if s.padn and not first and do_qk and (pos & 1) and (pos >> 1) % (16 // s.padn) == 0: s.A("s_nop 0")
            if ms is not None and pos == s.mspos:
                for x in ms: s.A(x)
        for o in flush: s.A(o)

    def tail2(s):
        assert s.pvswap and s.sp
        chains = [(qb, 0) for qb in range(4)] + [(qb, db) for qb in range(4) for db in (1, 2, 3)] + [(qb, db) for qb in range(4) for db in (4, 5, 6, 7)]
        vset = [("a", aV(0, 0)), ("a", aV(1, 0)), ("a", aK(0, 0)), ("a", aK(1, 0)), ("a", aV(0, 0)), ("v", 128), ("v", 144), ("v", 160)]
        reg = (0, 3, 1, 2)
        RB = (176, 184, 64, 72)
        RI = vE
        def mf(n, k):
            qb, db = chains[n]
            ks = 3 - k if n & 1 else k
            o = R("a", aO(qb, db), 4)
            return "%s %s, %s, %s, %s" % (MF, o, R("v", vP(1, qb, ks), 4), R(vset[db][0], vset[db][1] + 4 * ks, 4), o)
        def vrd(db, r):
            ks, u = r >> 1, r & 1
            return "ds_read_b64_tr_b16 %s, v%d offset:%d" % (R(vset[db][0], vset[db][1] + 4 * ks + 2 * u, 2), vV, (2 + (ks >> 1)) * SLOT + (2 * (ks & 1) + u) * 256 + db * 32)
        def wr(n, p):
            qb, db = chains[n]
            o = aO(qb, db) + 2 * p
            b = reg[qb] * (SLOT // 256) + 2 * p
            return "ds_write2st64_b32 v%d, a%d, a%d offset0:%d offset1:%d" % (vW + (db & 3), o, o + 1, b, b + 1)
        units = [(qb, h, i) for h in range(2) for qb in range(4) for i in range(2)]
        def rd(u, x):
            qb, h, i = units[u]
            return "ds_read_b128 %s, v%d offset:%d" % (R("v", RB[u % 4] + 4 * x, 4), (vOR, vBP + 1)[x], reg[qb] * SLOT + i * 512)
        def fin(u):
            qb, h, i = units[u]
            b = RB[u % 4]
            ops = []
            for j in range(4):
                ops += ["v_mul_f32 v%d, v%d, v%d" % (b + 2 * j + x, b + 2 * j + x, RI + 2 * qb + i) for x in range(2)]
                if j: ops.append("v_cvt_pk_bf16_f32 v%d, v%d, v%d" % (b + j - 1, b + 2 * j - 2, b + 2 * j - 1))
            ops.append("v_cvt_pk_bf16_f32 v%d, v%d, v%d" % (b + 3, b + 6, b + 7))
            ops.append("buffer_store_dwordx4 %s, v%d, %s, s%d offen offset:%d %s" % (R("v", b, 4), vOA, R("s", sO, 4), sQB + qb, i * 512 + h * 128, s.st))
            return ops
        M = [("s", x) for x in s.msums(1, 0) + s.msums(1, 1) + s.msums(1, 2)]
        for n in range(32):
            M += [((n, k), mf(n, k)) for k in range(4)]
            if n == 0: M += [("s", x) for x in s.msums(1, 3)]
        at = {t: g for g, (t, x) in enumerate(M) if t != "s"}
        NG = len(M)
        fixed = [[] for _ in range(NG + 8)]
        scal = [[] for _ in range(NG + 8)]
        left = [s.sm_op(k, q, i, 1, 7) for g, k, q, i in sorted(s.sm_table(False)) if g >= 32]
        for i, x in enumerate(left): fixed[i].append(x)
        scal[0].append("s_mov_b32 s%d, %s" % (sT, f32(s.thr)))
        wdone = {}
        for n in range(32):
            for p in range(2):
                g = at[(n + 1, s.wpos[p])] if n < 31 else NG
                fixed[g].append(wr(n, p)); wdone[n] = g
        scal[at[(3, s.wpos[0])]].append("s_waitcnt vmcnt(%d)" % (-2 * s.s0))
        scal[at[(4, s.wpos[0])]].append("s_waitcnt vmcnt(%d)" % max(0, -2 * s.s0 - 4))
        avail = [wdone[max(n for n in range(32) if chains[n][0] == qb and chains[n][1] >> 2 == h)] for qb, h, i in units]
        vq = []
        for db in range(1, 8):
            first = min(n for n in range(32) if chains[n][1] == db)
            order = range(8) if not first & 1 else (6, 7, 4, 5, 2, 3, 0, 1)
            vq += [(at[(3, 3)] if db == 4 else 0, vrd(db, r)) for r in order]
        misc = []
        for qb in range(4):
            e = (8, 10, 12, at[(2, 0)])[qb]
            misc += [(e, "v_add_f32 v%d, v%d, v%d" % (vL(qb), vL(qb), vL(qb) + 1)), (e + 1, "v_rcp_f32 v%d, v%d" % (vT + qb, vL(qb)))]
        for qb in range(4):
            misc += [(0, "ds_bpermute_b32 v%d, v%d, v%d offset:%d" % (RI + 2 * qb + i, vBP, vT + qb, 8 * i)) for i in range(2)]
        misc += [(0, "v_add_f32 v%d, v%d, v%d" % (vT + 5, vL(0), vL(1))), (0, "v_add_f32 v%d, v%d, v%d" % (vT + 6, vL(2), vL(3))),
                 (0, "v_add_f32 v%d, v%d, v%d" % (vT + 5, vT + 5, vT + 6)), (0, "v_cmp_nge_f32 vcc, s%d, v%d" % (sT, vT + 5))]
        T = []
        nrd = 0; rdat = {}; cur = 0; ops = fin(0); lastst = {}
        cost = lambda x: 2 if x.startswith(("v_exp", "v_rcp")) else 1
        for g in range(NG + 1):
            if g < NG: T.append(M[g][1])
            T += scal[g] + fixed[g]
            used = sum(cost(x) for x in fixed[g])
            budget = s.tb if g < NG else 1000
            nv = 0
            while used < budget:
                u = nrd >> 1
                if u < 16 and avail[u] <= g and (u < 4 or lastst.get(u - 4, 1000) < g or g == NG and cur > u - 4):
                    T.append(rd(u, nrd & 1)); rdat[u] = g; nrd += 1
                elif misc and misc[0][0] <= g and (nv or not vq or len(vq) < 36):
                    x = misc.pop(0)[1]; T.append(x); used += cost(x) - 1
                elif any(e <= g for e, x in vq) and nv < s.tnv:
                    T.append(vq.pop([e <= g for e, x in vq].index(True))[1]); nv += 1
                elif cur < 16 and nrd >= 2 * cur + 2 and (rdat[cur] + s.tlat <= g or g == NG) and not misc:
                    T.append(ops.pop(0))
                    if not ops:
                        lastst[cur] = g; cur += 1
                        if cur < 16: ops = fin(cur)
                else: break
                used += 1
            if s.tst and g < NG and M[g][0] in [(n, 3) for n in (3, 11, 19, 27, 31)]:
                j = (3, 11, 19, 27, 31).index(M[g][0][0])
                T.append("s_memtime s[%d:%d]" % (48 + 2 * j, 49 + 2 * j))
        assert cur == 16 and not vq and not misc
        for qb in range(4):
            assert T.index(rd(2 * qb + 1, 1)) < T.index(wr(16 + 4 * qb, 0))
        return T

    def tail3(s):
        assert s.pvswap and s.sp and not s.ones1
        if s.tord == 0: chains = [(qb, 0) for qb in range(4)] + [(qb, db) for qb in range(4) for db in (1, 2, 3)]
        else: chains = [(qb, db) for db in (0, 1) for qb in range(4)] + [(qb, db) for qb in range(4) for db in (2, 3)]
        chains += [(qb, db) for qb in range(4) for db in (4, 5, 6, 7)]
        vset = [("a", aV(0, 0)), ("a", aV(1, 0)), ("a", aK(0, 0)), ("a", aK(1, 0)), ("a", aV(0, 0)), ("v", 128), ("v", 144), ("v", 160)]
        reg = (0, 3, 1, 2)
        def lo(qb, h): return (2 + (qb >> 1)) * SLOT + (qb & 1) * 2048 if s.peel else reg[qb] * SLOT + h * 2048
        X = (64, 72)
        W = (176, 184, 100, 108)
        def mf(n, k):
            qb, db = chains[n]
            ks = 3 - k if n & 1 else k
            o = R("a", aO(qb, db), 4)
            return "%s %s, %s, %s, %s" % (MF, o, R("v", vP(1, qb, ks), 4), R(vset[db][0], vset[db][1] + 4 * ks, 4), o)
        def vrd(db, r):
            ks, u = r >> 1, r & 1
            return "ds_read_b64_tr_b16 %s, v%d offset:%d" % (R(vset[db][0], vset[db][1] + 4 * ks + 2 * u, 2), vV2 if s.peel else vV, ((0 if s.peel else 2) + (ks >> 1)) * SLOT + (2 * (ks & 1) + u) * 256 + db * 32)
        M = [("s", x) for x in s.msums(1, 0) + s.msums(1, 1) + s.msums(1, 2)]
        for n in range(32):
            M += [((n, k), mf(n, k)) for k in range(4)]
            if n == 0: M += [("s", x) for x in s.msums(1, 3)]
        at = {t: g for g, (t, x) in enumerate(M) if t != "s"}
        NG = len(M)
        fixed = [[] for _ in range(NG + 1)]
        scal = [[] for _ in range(NG + 1)]
        left = [s.sm_op(k, q, i, 1, 7) for g, k, q, i in sorted(s.sm_table(False)) if g >= 32]
        for i, x in enumerate(left): fixed[i].append(x)
        scal[0].append("s_mov_b32 s%d, %s" % (sT, f32(s.thr)))
        rinv = {}
        for qb in range(4):
            e = (6, 8, 10, at[(2, 0)])[qb]
            fixed[e].append("v_add_f32 v%d, v%d, v%d" % (vL(qb), vL(qb), vL(qb) + 1))
            fixed[e + 1].append("v_rcp_f32 v%d, v%d" % (vT + qb, vL(qb)))
            for gq in range(1, 4):
                fixed[e + 1 + 2 * gq].append("v_mov_b32_dpp v%d, v%d row_shl:%d row_mask:0x%x bank_mask:0xf" % (vT + qb, vT + qb, 4 * gq, 1 << gq))
            rinv[qb] = e + 9
        e = at[(3, 0)]
        fixed[e] += ["v_add_f32 v%d, v%d, v%d" % (vT + 5, vL(0), vL(1)), "v_add_f32 v%d, v%d, v%d" % (vT + 6, vL(2), vL(3))]
        fixed[e + 1].append("v_add_f32 v%d, v%d, v%d" % (vT + 5, vT + 5, vT + 6))
        fixed[e + 2].append("v_cmp_nge_f32 vcc, s%d, v%d" % (sT, vT + 5))
        if not s.peel: scal[at[(5, 0)]].append("s_waitcnt vmcnt(%d)" % max(0, -2 * s.s0 - 4))
        vq = []
        for db in range(1, 8):
            first = min(n for n in range(32) if chains[n][1] == db)
            order = range(8) if not first & 1 else (6, 7, 4, 5, 2, 3, 0, 1)
            vq += [(at[(3, 3)] + 1 if db == 4 else 0, at[(first, j >> 1)], vrd(db, r)) for j, r in enumerate(order)]
        groups = [(qb, h) for h in range(2) for qb in range(4)]
        units = []
        for gi, (qb, h) in enumerate(groups):
            for p in range(2): units.append((max(chains.index((qb, 4 * h + 2 * p + e2)) for e2 in range(2)), gi, p))
        units.sort()
        cq = []
        for ui, (_, gi, p) in enumerate(units):
            qb, h = groups[gi]
            w = W[gi & 3]
            for e2 in range(2):
                db = 4 * h + 2 * p + e2
                rdy = max(at[(chains.index((qb, db)), 3)] + 1 + s.clag, rinv[qb])
                x = X[ui & 1] + 4 * e2
                cq += [(rdy, "v_accvgpr_read_b32 v%d, a%d" % (x + r, aO(qb, db) + r), []) for r in range(4)]
                cq += [(rdy, "v_mul_f32_dpp v%d, v%d, v%d row_newbcast:%d row_mask:0xf bank_mask:0xf" % (x + r, vT + qb, x + r, r), []) for r in range(4)]
            for r in range(4):
                rel = []
                if p:
                    rel.append(("w", "ds_write_b64 v%d, %s offset:%d" % (vW, R("v", w + 2 * r, 2), lo(qb, h) + r * 128), None))
                    if r & 1:
                        i = r >> 1
                        rel += [("r", "ds_read_b64_tr_b16 %s, v%d offset:%d" % (R("a", aO(qb, 4 * h) + 4 * i + 2 * x, 2), (vOR, vBP + 1)[x], lo(qb, h) + i * 256), (gi, i) if x else None) for x in range(2)]
                cq.append((rdy, "v_cvt_pk_bf16_f32 v%d, v%d, v%d" % (w + 2 * r + p, X[ui & 1] + r, X[ui & 1] + 4 + r), rel))
        def st(gi, i):
            qb, h = groups[gi]
            return "buffer_store_dwordx4 %s, v%d, %s, s%d offen offset:%d %s" % (R("a", aO(qb, 4 * h) + 4 * i, 4), vOA, R("s", sO, 4), sQB + qb, i * 512 + h * 128, s.st)
        T = []; sq = []; oq = []
        cost = lambda x: 2 if x.startswith(("v_exp", "v_rcp")) else 1
        def popo(g):
            k, o, tag = oq.pop(0); T.append(o)
            if tag: sq.append((g + s.tlat, st(*tag)))
            return k
        for g in range(NG):
            T.append(M[g][1])
            T += scal[g]
            used = 0
            ok = [e <= g for e, d, x in vq]
            need = max([j + 1 - (d - s.vlat - g) for j, (e, d, x) in enumerate(vq)] + [0])
            if any(ok) and need >= 1:
                for _ in range(min(2, need)):
                    ok = [e <= g for e, d, x in vq]
                    if any(ok): T.append(vq.pop(ok.index(True))[2]); used += 1
            elif sq and sq[0][0] <= g and g >= s.sfrom and not (oq and s.sfrom and g < NG - s.sprio): T.append(sq.pop(0)[1]); used += s.cst
            elif oq:
                k = popo(g); used += 3 if k == "w" else 1
                if k == "r" and oq and oq[0][0] == "r": popo(g); used += 1
            elif any(ok):
                T.append(vq.pop(ok.index(True))[2]); used += 1
                ok = [e <= g for e, d, x in vq]
                if any(ok) and not fixed[g] and not (cq and cq[0][0] <= g): T.append(vq.pop(ok.index(True))[2]); used += 1
            T += fixed[g]
            used += sum(cost(x) for x in fixed[g])
            budget = s.tb[g % len(s.tb)] if isinstance(s.tb, tuple) else s.tb
            if s.tad:
                nr = next((j for j, x in enumerate(cq) if x[0] > g), len(cq))
                nx = cq[nr][0] - g if nr < len(cq) else NG - g
                budget = max(2, min(s.tb, used + -(-nr // max(1, min(nx + s.tad - 1, NG - g)))))
            while used < budget and cq and cq[0][0] <= g:
                e, o, rel = cq.pop(0); T.append(o); oq += rel; used += 1
            if s.tst and M[g][0] in [(n, 3) for n in (3, 11, 19, 27, 31)]:
                j = (3, 11, 19, 27, 31).index(M[g][0][0])
                T.append("s_memtime s[%d:%d]" % (48 + 2 * j, 49 + 2 * j))
        while oq: popo(NG)
        for e, o, rel in cq: T.append(o); oq += rel
        oq.sort(key=lambda x: x[0] == "r")
        while oq: popo(NG)
        T += [x for g, x in sq]
        assert not vq
        for db in range(1, 8):
            n = min(n for n in range(32) if chains[n][1] == db)
            assert max(T.index(vrd(db, r)) for r in range(8)) < T.index(mf(n, 3))
        wrs = [k for k, x in enumerate(T) if x.startswith("ds_write_b64")]
        cvs = [k for k, x in enumerate(T) if x.startswith("v_cvt_pk")]
        for gi in range(4): assert wrs[4 * gi + 3] < min(k for k in cvs if T[k].split()[1] == "v%d," % W[gi] and k > wrs[4 * gi])
        return T

    def dummy(s, n):
        for i in range(n):
            s.A("%s v[120:123], v[%d:%d], v[%d:%d], %s" % (MF, 104 + 4 * (i & 1), 107 + 4 * (i & 1), 112 + 4 * ((i >> 1) & 1), 115 + 4 * ((i >> 1) & 1), "v[120:123]" if i & 3 else "0"))
    def stamp(s, idx, force=False):
        if s.tst and idx < 5: return
        if s.pst and not force: return
        if s.stamps: s.A("%s s[%d:%d]" % ("s_memrealtime" if s.stamps == 2 else "s_memtime", 48 + 2 * idx, 49 + 2 * idx))

    def build(s):
        A = s.A
        A("; @launch grid=(256,1,1) block=(256,1,1) lds=%d" % LDS_BYTES)
        A('.amdgcn_target "amdgcn-amd-amdhsa--gfx950"')
        A(".text")
        A(".globl %s\n.p2align 8\n.type %s,@function\n%s:" % (KN, KN, KN))
        A("s_cmp_ge_u32 s2, 256\ns_cbranch_scc1 L_end")
        if s.stamps: A("s_memrealtime s[40:41]\ns_memtime s[44:45]")
        A("s_load_dwordx4 s[24:27], s[0:1], 0\ns_load_dwordx4 s[28:31], s[0:1], 16")
        if s.stamps: A("s_load_dwordx2 s[64:65], s[0:1], 40")
        if s.warm:
            A("s_getpc_b64 s[36:37]\nL_pc:")
            if s.warm2:
                A("v_lshlrev_b32 v1, 6, v0\nglobal_load_dword v11, v1, s[36:37]")
                A("v_lshlrev_b32 v38, 6, v0\nv_add_u32 v38, 16384, v38\nv_min_u32 v38, L_end-L_pc, v38\ns_mov_b64 s[86:87], s[36:37]")
            else:
                A("v_lshlrev_b32 v1, 7, v0\nv_min_u32 v1, L_end-L_pc, v1\nglobal_load_dword v11, v1, s[36:37]")
        A("v_lshrrev_b32 v1, 6, v0\nv_and_b32 v0, 63, v0\ns_nop 0\nv_readfirstlane_b32 s%d, v1" % sW)
        A("v_lshrrev_b32 v20, 4, v0\nv_and_b32 v21, 15, v0")
        A("s_mul_i32 s%d, s%d, %d" % (sWL, sW, 4 * PITCH))
        if s.lin:
            A("s_lshl_b32 s%d, s%d, 12\nv_lshlrev_b32 v22, 4, v0\nv_add_u32 v22, s%d, v22" % (sT, sW, sT))
        else:
            A("v_lshlrev_b32 v22, 12, v20\nv_lshl_add_u32 v22, v21, 4, v22")
            A("s_lshr_b32 s%d, s%d, 1\ns_lshl_b32 s%d, s%d, 11\ns_and_b32 s%d, s%d, 1\ns_lshl_b32 s%d, s%d, 9\ns_add_u32 s%d, s%d, s%d" % (sT, sW, sT, sT, sT + 1, sW, sT + 1, sT + 1, sT, sT, sT + 1))
            A("v_add_u32 v22, s%d, v22" % sT)
        for i in range(4):
            goff = i * 1024 if s.lin else (4 * (i & 1) + (i >> 1)) * 256
            A("v_add_u32 v%d, %d, v22" % (vDMA + i, goff - PITCH * i + BIASB))
        A("s_lshl_b32 s%d, s%d, 14" % (sT, sW))
        A("v_lshlrev_b32 v23, 2, v20\nv_xor_b32 v23, v23, v21\nv_lshlrev_b32 v23, 4, v23\nv_lshl_add_u32 v23, v20, 8, v23\nv_add_u32 v%d, s%d, v23" % (vQA, sT))
        if s.newtail == 3:
            A("v_bfe_u32 v23, v0, 3, 1\nv_lshl_add_u32 v23, v20, 2, v23\nv_and_b32 v24, 3, v0\nv_lshlrev_b32 v24, 5, v24\nv_lshl_add_u32 v23, v23, 8, v24")
            A("v_bfe_u32 v24, v0, 2, 1\nv_lshl_add_u32 v23, v24, 4, v23\nv_add_u32 v%d, s%d, v23" % (vOA, sT))
        elif s.newtail == 2:
            A("v_bfe_u32 v23, v0, 3, 1\nv_lshl_add_u32 v23, v20, 2, v23\nv_lshlrev_b32 v%d, 2, v23\nv_and_b32 v24, 7, v0\nv_lshlrev_b32 v24, 4, v24\nv_lshl_add_u32 v23, v23, 8, v24\nv_add_u32 v%d, s%d, v23" % (vBP, vOA, sT))
        elif s.operm:
            A("v_lshrrev_b32 v23, 3, v0\nv_and_b32 v24, 3, v0\nv_lshlrev_b32 v24, 5, v24\nv_lshl_add_u32 v23, v23, 8, v24\nv_bfe_u32 v24, v0, 2, 1\nv_lshl_add_u32 v23, v24, 4, v23\nv_add_u32 v%d, s%d, v23" % (vOA, sT))
        else:
            A("v_lshrrev_b32 v23, 3, v0\nv_and_b32 v24, 7, v0\nv_lshlrev_b32 v24, 4, v24\nv_lshl_add_u32 v23, v23, 8, v24\nv_add_u32 v%d, s%d, v23" % (vOA, sT))
        for qb in range(4): A("s_mov_b32 s%d, %d" % (sQB + qb, qb * 4096))
        if s.pst == 1: s.stamp(0, True)
        A("s_waitcnt lgkmcnt(0)")
        if s.pst == 1: s.stamp(1, True)
        hd = 2
        if s.hmap == 1:
            hd = 33; A("s_xor_b32 s33, s2, 1")
        if s.hmap == 2:
            hd = 33; A("s_and_b32 s33, s2, 7\ns_lshl_b32 s33, s33, 5\ns_lshr_b32 s36, s2, 3\ns_add_u32 s33, s33, s36")
        A("s_lshl_b32 s%d, s%d, 19" % (sT, hd))
        A("s_sub_u32 s26, s26, %d\ns_subb_u32 s27, s27, 0\ns_sub_u32 s28, s28, %d\ns_subb_u32 s29, s29, 0" % (BIASB, BIASB))
        A("s_add_u32 s%d, s26, s%d\ns_addc_u32 s%d, s27, 0\ns_mov_b32 s%d, %d\ns_mov_b32 s%d, 0x20000" % (sK, sT, sK + 1, sK + 2, 0x80000 + BIASB, sK + 3))
        A("s_add_u32 s%d, s28, s%d\ns_addc_u32 s%d, s29, 0\ns_mov_b32 s%d, %d\ns_mov_b32 s%d, 0x20000" % (sV, sT, sV + 1, sV + 2, 0x80000 + BIASB, sV + 3))
        A("s_lshl_b32 s%d, s%d, 16" % (sT, hd))
        A("s_add_u32 s%d, s24, s%d\ns_addc_u32 s%d, s25, 0\ns_mov_b32 s%d, 0x10000\ns_mov_b32 s%d, 0x20000" % (sQ, sT, sQ + 1, sQ + 2, sQ + 3))
        A("s_add_u32 s%d, s30, s%d\ns_addc_u32 s%d, s31, 0\ns_mov_b32 s%d, 0x10000\ns_mov_b32 s%d, 0x20000" % (sO, sT, sO + 1, sO + 2, sO + 3))
        A("s_mov_b32 s%d, 0" % sPASS)
        for qb in range(4): A("v_mov_b32 v%d, 0xff800000" % vM(qb))
        A("L_start:")
        if s.rot: A("s_mul_i32 s%d, s2, %d\ns_and_b32 s%d, s%d, 31\ns_lshl_b32 s%d, s%d, 14\ns_mov_b32 s%d, s%d" % (sSOK, s.rot, sSOK, sSOK, sSOK, sSOK, sSOV, sSOK))
        else: A("s_mov_b32 s%d, 0\ns_mov_b32 s%d, 0" % (sSOK, sSOV))
        def group(isK, off, n=4):
            return [s.m0set(off), "s_nop 0"] + [s.dma(isK, i) for i in range(n)] + ([s.adv(isK)] if n == 4 else [])
        PERM = (0, 3, 1, 2)
        def qgroup(qb):
            out = []
            for i in range(4):
                out.append(["s_add_u32 m0, s%d, %d" % (sWL, VBASE + qb * SLOT + i * PITCH - PERM[i] * 1024), "s_nop 0",
                            "buffer_load_dwordx4 v%d, %s, s%d offen offset:%d %s lds" % (vQA, R("s", sQ, 4), sQB + qb, PERM[i] * 1024, s.qld)])
            return out
        def pieces(isK, off, n=4):
            out = [[s.dma(isK, i)] for i in range(n)]
            if n: out[0] = [s.m0set(off), "s_nop 0"] + out[0]
            if n == 4: out[3].append(s.adv(isK))
            return out
        Q = [("K0", p) for p in pieces(True, 0)]
        for qb in range(4): Q += [("Q%d" % qb, p) for p in qgroup(qb)]
        Q += [("K1", p) for p in pieces(True, SLOT)]
        for p in range(s.npre):
            isK, off, piece = s.seq(p, 1)
            ops = ([s.m0set(off), "s_nop 0"] if piece == 0 else []) + [s.dma(isK, piece)] + ([s.adv(isK)] if piece == 3 else [])
            Q.append((("K2", "V0", "V1", "K3")[p >> 2], ops))
        if s.vtlb: Q.insert(s.vtlb, ("X", ["buffer_load_dword v127, v%d, %s, 0 offen" % (vDMA, R("s", sV, 4))]))
        if s.otlb: Q.insert(s.otlb, ("X", ["buffer_load_dword v10, v%d, %s, 0 offen" % (vOA, R("s", sO, 4))]))
        st = {"n": 0}
        def issue(k=1):
            for _ in range(k):
                if st["n"] < len(Q):
                    if s.lim and st["n"] >= s.lim: A("s_waitcnt vmcnt(%d)" % (s.lim - 1))
                    for x in Q[st["n"]][1]: A(x)
                    st["n"] += 1
        def waitfor(tag):
            last = max(i for i, x in enumerate(Q) if x[0] == tag)
            if st["n"] <= last: issue(last + 1 - st["n"])
            A("s_waitcnt vmcnt(%d)" % (st["n"] - 1 - last))
        if s.pst == 1: s.stamp(2, True)
        issue(s.nfirst)
        if s.pst == 1: s.stamp(3, True)
        A("v_and_b32 v22, 3, v0\nv_bfe_u32 v23, v0, 2, 1\nv_lshl_add_u32 v22, v22, 1, v23\nv_and_b32 v23, 8, v0\nv_add_u32 v22, v22, v23")
        A("v_mul_u32_u24 v22, %d, v22\nv_lshrrev_b32 v23, 4, v0\nv_lshl_add_u32 v%d, v23, 4, v22" % (PITCH, vK))
        A("v_bfe_u32 v22, v0, 2, 2\nv_bfe_u32 v23, v0, 4, 1\nv_lshl_add_u32 v22, v22, 1, v23\nv_lshrrev_b32 v23, 5, v0\nv_lshl_add_u32 v22, v23, 3, v22")
        A("v_mul_u32_u24 v22, %d, v22\nv_and_b32 v23, 3, v0\nv_lshl_add_u32 v22, v23, 3, v22\nv_add_u32 v%d, %d, v22" % (PITCH, vV, VBASE))
        A("v_bfe_u32 v22, v0, 2, 2\nv_lshlrev_b32 v22, 1, v22\nv_mov_b32 v23, 0x78\nv_lshrrev_b32 v22, v22, v23\nv_and_b32 v22, 3, v22")
        A("v_mul_u32_u24 v22, %d, v22\nv_and_b32 v23, 3, v0\nv_lshl_add_u32 v22, v23, 8, v22\nv_lshrrev_b32 v24, 4, v0\nv_lshl_add_u32 v22, v24, 4, v22" % PITCH)
        A("v_add_u32 v22, s%d, v22\nv_add_u32 v22, %d, v22" % (sWL, VBASE))
        for t in range(4): A("v_xor_b32 v24, %d, v23\nv_lshl_add_u32 v%d, v24, 6, v22" % (t, vQR + t))
        if s.newtail == 3:
            sh = 4 if s.w128 else 3
            A("v_lshrrev_b32 v%d, 4, v0\nv_lshlrev_b32 v%d, 9, v%d\nv_add_u32 v%d, s%d, v%d" % (vE, vE + 1, vE, vE + 1, sWL, vE + 1))
            A("v_and_b32 v%d, 1, v%d\nv_lshlrev_b32 v%d, 2, v%d" % (vE, vE, vE, vE))
            A("v_and_b32 v%d, 15, v0\nv_xor_b32 v%d, v%d, v%d\nv_lshl_add_u32 v%d, v%d, %d, v%d" % (vE + 2, vE + 2, vE + 2, vE, vW, vE + 2, sh, vE + 1))
            A("v_bfe_u32 v%d, v0, 1, 1\nv_lshl_add_u32 v%d, v%d, %d, v%d" % (vE + 2, vE + 1, vE + 2, 3 if s.w128 else 7, vE + 1))
            A("v_and_b32 v%d, 1, v0\nv_bfe_u32 v%d, v0, 2, 2\nv_lshl_add_u32 v%d, v%d, 3, v%d\nv_xor_b32 v%d, v%d, v%d" % (vE + 2, vE + 3, vE + 2, vE + 2, vE + 3, vE + 2, vE + 2, vE))
            A("v_lshl_add_u32 v%d, v%d, %d, v%d\nv_xor_b32 v%d, 4, v%d\nv_lshl_add_u32 v%d, v%d, %d, v%d" % (vOR, vE + 2, sh, vE + 1, vE + 2, vE + 2, vBP + 1, vE + 2, sh, vE + 1))
        elif s.newtail == 2:
            A("v_bfe_u32 v%d, v0, 4, 1\nv_mul_u32_u24 v%d, 5, v%d\nv_lshrrev_b32 v%d, 4, v0\nv_lshlrev_b32 v%d, 10, v%d" % (vE, vE, vE, vE + 1, vE + 1, vE + 1))
            A("v_and_b32 v%d, 3, v0\nv_lshl_add_u32 v%d, v%d, 2, v%d\nv_add_u32 v%d, s%d, v%d" % (vE + 2, vE + 1, vE + 2, vE + 1, vE + 1, sWL, vE + 1))
            A("v_bfe_u32 v%d, v0, 2, 2\nv_xor_b32 v%d, v%d, v%d" % (vE + 2, vE + 2, vE + 2, vE))
            for e in range(4): A("v_xor_b32 v%d, %d, v%d\nv_lshl_add_u32 v%d, v%d, 4, v%d" % (vW + e, 4 * e, vE + 2, vW + e, vW + e, vE + 1))
            A("v_and_b32 v%d, 7, v0\nv_lshlrev_b32 v%d, 1, v%d\nv_xor_b32 v%d, v%d, v%d" % (vE + 2, vE + 2, vE + 2, vE + 2, vE + 2, vE))
            A("v_lshlrev_b32 v%d, 6, v%d\nv_add_u32 v%d, s%d, v%d" % (vE + 1, vBP, vE + 1, sWL, vE + 1))
            A("v_lshl_add_u32 v%d, v%d, 4, v%d\nv_xor_b32 v%d, 1, v%d\nv_lshl_add_u32 v%d, v%d, 4, v%d" % (vOR, vE + 2, vE + 1, vE + 2, vE + 2, vBP + 1, vE + 2, vE + 1))
        else:
            A("v_and_b32 v%d, 15, v0\nv_lshrrev_b32 v%d, 5, v0\nv_xor_b32 v%d, v%d, v%d\nv_lshlrev_b32 v%d, 4, v%d" % (vE, vE + 1, vE + 1, vE + 1, vE, vE + 1, vE + 1))
            A("v_lshl_add_u32 v%d, v%d, 8, v%d\nv_bfe_u32 v%d, v0, 4, 1\nv_lshl_add_u32 v%d, v%d, 3, v%d" % (vE + 1, vE, vE + 1, vE, vE + 1, vE, vE + 1))
            for db in range(8): A("v_xor_b32 v%d, %d, v%d\nv_add_u32 v%d, s%d, v%d" % (vW + db, db * 32, vE + 1, vW + db, sWL, vW + db))
            A("v_lshrrev_b32 v%d, 3, v0\nv_and_b32 v%d, 7, v0\nv_xor_b32 v%d, v%d, v%d\nv_lshlrev_b32 v%d, 4, v%d" % (vE, vE + 1, vE + 1, vE + 1, vE, vE + 1, vE + 1))
            A("v_lshl_add_u32 v%d, v%d, 8, v%d\nv_add_u32 v%d, s%d, v%d" % (vE + 1, vE, vE + 1, vOR, sWL, vE + 1))
        c = 1.4426950408889634 / (128.0 ** 0.5)
        A("s_mov_b32 s%d, %s\ns_mov_b32 s%d, %s" % (sC, f32(c), sC + 1, f32(c)))
        A("s_mov_b32 s%d, %d" % (sCNT, 6 if s.peel else 7))
        if s.peel: A("v_subrev_u32 v%d, %d, v%d" % (vV2, VBASE, vV))
        A("s_mov_b32 s%d, 0x07060302" % sSEL)
        if s.sp:
            A("v_and_b32 v22, %d, v0\nv_cmp_gt_u32 vcc, 2, v22\nv_mov_b32 v23, 0x3f803f80\nv_and_b32 v22, 1, v0\nv_cndmask_b32 v%d, 0, v23, vcc" % (15 if s.ones1 else 3, vONE))
            A("v_cmp_eq_u32 vcc, 0, v22\nv_mov_b32 v23, 0x44444444\nv_mov_b32 v24, 0xeeeeeeee\nv_cndmask_b32 v%d, v24, v23, vcc" % vIDX)
        elif s.ones4:
            A("v_and_b32 v22, 3, v0\nv_cmp_eq_u32 vcc, 0, v22\nv_mov_b32 v23, 0x3f803f80\ns_nop 0\nv_cndmask_b32 v%d, 0, v23, vcc" % vONE)
        else:
            A("v_mov_b32 v%d, 0x3f803f80" % vONE)
        for i in range(1, 4): A("v_mov_b32 v%d, v%d" % (vONE + i, vONE))
        if s.pst == 1: s.stamp(4, True)
        for i in range(128): A("v_accvgpr_write_b32 a%d, 0" % i)
        for i in range(16): A("v_mov_b32 v%d, 0" % (vL(0) + i))
        for qb in range(4): A("v_mov_b32 v%d, 0" % vA(qb))
        s.stamp(0)
        if s.pst == 1:
            s.stamp(5, True)
            A("s_waitcnt vmcnt(%d)" % (s.nfirst - 1))
            s.stamp(6, True)
        if s.pre0 or s.pre1 or s.pre2:
            A("s_mov_b32 s85, 0x9e3779b1\nv_add_u32 v100, 1, v0")
            for i in range(16):
                A("v_mul_lo_u32 v100, v100, s85\nv_and_b32 v%d, 0xbfffbfff, v100\nv_or_b32 v%d, 0x3c003c00, v%d" % (104 + i, 104 + i, 104 + i))
            s.dummy(s.pre0)
        issue(s.nsecond - st["n"])
        for qb in range(4):
            if qb and s.pre1: s.dummy(s.pre1)
            waitfor("Q%d" % qb)
            if qb == 0: s.stamp(1)
            for t in range(4): A("ds_read_b128 %s, v%d offset:%d" % (R("v", 128 + 4 * t, 4), vQR + t, qb * SLOT))
            if qb == 0:
                A("s_barrier")
                for t in range(4): A(s.kread(0, 0, 0, t))
                if s.prepass == 2:
                    for t in range(4): A(s.kread(1, 0, 1, t))
            for f in range(4):
                b = 128 + 4 * f
                if f < s.nq[qb] and st["n"] < len(Q) and Q[st["n"]][0] not in ["V%d" % x for x in range(qb, 4)]: issue(1)
                A("s_waitcnt lgkmcnt(%d)" % (3 - f + (4 * s.prepass if qb == 0 else 0)))
                for i in range(4):
                    A("v_lshlrev_b32 v%d, 16, v%d\nv_and_b32 v%d, 0xffff0000, v%d" % (vT + 2 * i, b + i, vT + 2 * i + 1, b + i))
                for i in range(4):
                    A("v_pk_mul_f32 %s, %s, %s" % (R("v", vT + 2 * i, 2), R("v", vT + 2 * i, 2), R("s", sC, 2)))
                for i in range(4):
                    A("v_cvt_pk_bf16_f32 v%d, v%d, v%d" % (vT + 8 + i, vT + 2 * i, vT + 2 * i + 1))
                for i in range(4):
                    A("v_accvgpr_write_b32 a%d, v%d" % (aQ(qb, f) + i, vT + 8 + i))
        s.stamp(2)
        A("s_waitcnt lgkmcnt(0)")
        for rep in range(s.prepass):
            for qb in range(4):
                for t in range(4): A(s.qk(rep, qb, t, zero=True))
                if qb & 1: issue(1)
            A("s_nop 4")
            for qb in range(4):
                S = vS(qb)
                A("v_max3_f32 v%d, v%d, v%d, v%d" % (vM(qb), vM(qb), S, S + 1))
            for qb in range(4):
                S = vS(qb)
                A("v_max3_f32 v%d, v%d, v%d, v%d" % (vM(qb), vM(qb), S + 2, S + 3))
        for sw in ("v_permlane32_swap_b32", "v_permlane16_swap_b32"):
            for qb in range(4): A("v_mov_b32 v%d, v%d" % (vT + qb, vM(qb)))
            for qb in range(4): A("%s v%d, v%d" % (sw, vT + qb, vM(qb)))
            for qb in range(4): A("v_max_f32 v%d, v%d, v%d" % (vM(qb), vM(qb), vT + qb))
            issue(1)
        issue(len(Q))
        A("s_mov_b32 s%d, %s" % (sT, f32(-s.bias)))
        for qb in range(4): A("v_sub_f32 v%d, s%d, v%d" % (vNM(qb), sT, vM(qb)))
        for qb in range(4):
            for i in range(1, 4): A("v_mov_b32 v%d, v%d" % (vNM(qb) + i, vNM(qb)))
        if s.novalu:
            for i in range(128): A("v_accvgpr_read_b32 v%d, a%d" % (128 + i, 128 + (i & 63)))
        if s.nolds:
            for t in range(4): A(s.kread(1, 0, 1, t))
            for bf in range(2):
                for r in range(8): A(s.vread(bf, 2, bf, r))
            A("s_waitcnt lgkmcnt(0)")
        if s.instr == 3: A("s_mov_b32 s76, 0")
        if s.instr == 4: A("s_mov_b32 s76, 0\ns_add_u32 s77, s40, 7000\ns_memrealtime s[74:75]\ns_waitcnt lgkmcnt(0)\ns_add_u32 s74, s74, 200\ns_mov_b32 s78, 0")
        A("s_nop 0")
        s.stamp(3)
        n0 = len(s.lines)
        for b in range(8): s.block(1, b, do_pv=False, first=True)
        if s.warm2: A("global_load_dword v39, v38, s[86:87]")
        s.lines = hazards.pad(s.lines)
        s.stamp(4)
        A(".p2align 6")
        A("L_loop:")
        n0 = len(s.lines)
        for b in range(8): s.block(0, b, last=(b == 7))
        A("s_cbranch_scc1 L_tail")
        n1 = len(s.lines)
        for b in range(8): s.block(1, b)
        body = s.lines[n0:]
        A("s_branch L_loop")
        A("L_tail:")
        n2 = len(s.lines)
        if s.peel:
            for eb in range(16): s.block(1 - (eb >> 3), eb & 7, eb=eb)
        s.stamp(5)
        assert s.sp and len(s.msum_qb) == 4
        def conv(n):
            qb, db = n & 3, n >> 2
            tb = vE + 6 * (n % 4)
            o = aO(qb, db)
            ops = ["v_accvgpr_read_b32 v%d, a%d" % (tb + i, o + i) for i in range(4)]
            ops += ["v_mul_f32 v%d, v%d, v%d" % (tb + i, tb + i, vT + qb) for i in range(4)]
            ops += ["v_cvt_pk_bf16_f32 v%d, v%d, v%d" % (tb + 4 + i, tb + 2 * i, tb + 2 * i + 1) for i in range(2)]
            return ops
        def owrite(n): return "ds_write_b64 v%d, %s offset:%d" % (vW + (n >> 2), R("v", vE + 6 * (n % 4) + 4, 2), (n & 3) * SLOT)
        def oread(h, qb, i):
            return "ds_read_b128 %s, v%d offset:%d" % (R("v", 128 + 32 * h + 8 * qb + 4 * i, 4), vOR, qb * SLOT + i * 2048 + ((h ^ i) * 128))
        def ostore(h, qb, i):
            return "buffer_store_dwordx4 %s, v%d, %s, s%d offen offset:%d %s" % (R("v", 128 + 32 * h + 8 * qb + 4 * i, 4), vOA, R("s", sO, 4), sQB + qb, i * 2048 + h * 128, s.st)
        def lfin(qb): return ["v_add_f32 v%d, v%d, v%d" % (vL(qb), vL(qb), vL(qb) + 1), "v_rcp_f32 v%d, v%d" % (vT + qb, vL(qb))]
        left = [s.sm_op(k, q, i, 1, 7) for g, k, q, i in sorted(s.sm_table(False)) if g >= 32]
        T = []
        m = s.msums(1, 0) + s.msums(1, 1) + s.msums(1, 2)
        for i, x in enumerate(m):
            T.append(x)
            if i == 0: T.append("s_mov_b32 s%d, %s" % (sT, f32(s.thr)))
            if i < len(left): T.append(left[i])
        sh = [[[] for k in range(4)] for n in range(32)]
        ds = [[[] for k in range(4)] for n in range(32)]
        va = [[[] for k in range(4)] for n in range(32)]
        for n in range(32):
            qb, db = n & 3, n >> 2
            if db < 7:
                for u in range(2): ds[n][2 * u].append(s.vread((db + 1) & 1, 2, db + 1, 2 * qb + u))
            if n >= 2:
                c = conv(n - 2)
                for k, (x, y) in enumerate(((0, 3), (3, 6), (6, 8), (8, 10))): va[n][k] += c[x:y]
            if n >= 3: ds[n][1].append(owrite(n - 3))
        sh[3][1].append("s_waitcnt vmcnt(2)")
        sh[5][1].append("s_waitcnt vmcnt(0)")
        for j, qb in enumerate((0, 1, 2)):
            x = lfin(qb); va[0 if j < 1 else 1][(2, 0, 2)[j]].append(x[0]); va[0 if j < 1 else 1][(3, 1, 3)[j]].append(x[1])
        x = lfin(3); va[3][2].append(x[0]); va[3][3].append(x[1])
        va[4][2].append("v_add_f32 v%d, v%d, v%d" % (vT + 5, vL(0), vL(1)))
        va[4][3].append("v_add_f32 v%d, v%d, v%d" % (vT + 6, vL(2), vL(3)))
        va[5][2].append("v_add_f32 v%d, v%d, v%d" % (vT + 5, vT + 5, vT + 6))
        va[5][3].append("v_cmp_nge_f32 vcc, s%d, v%d" % (sT, vT + 5))
        for j in range(8):
            ds[15 + j][3].append(oread(0, j >> 1, j & 1))
            ds[17 + j][2].append(ostore(0, j >> 1, j & 1))
        ds[31][2].append(oread(1, 0, 0)); ds[31][3].append(oread(1, 0, 1))
        for n in range(32):
            qb, db = n & 3, n >> 2
            for k in range(4):
                T.append(s.pv(db & 1, 1, qb, db, k))
                T += sh[n][k] + ds[n][k] + va[n][k]
            if n == 0: T += s.msums(1, 3)
            if s.tst and n in (3, 11, 19, 27, 31): T.append("s_memtime s[%d:%d]" % (48 + 2 * (3, 11, 19, 27, 31).index(n), 49 + 2 * (3, 11, 19, 27, 31).index(n)))
        T += [owrite(29), oread(1, 1, 0), oread(1, 1, 1)] + conv(30) + [ostore(1, 0, 0), ostore(1, 0, 1), owrite(30), oread(1, 2, 0), oread(1, 2, 1)]
        T += conv(31) + [ostore(1, 1, 0), ostore(1, 1, 1), owrite(31), oread(1, 3, 0), oread(1, 3, 1)]
        T += [ostore(1, 2, 0), ostore(1, 2, 1), ostore(1, 3, 0), ostore(1, 3, 1)]
        if s.newtail == 2: T = s.tail2()
        if s.newtail == 3: T = s.tail3()
        if s.nost: T = [x for x in T if not x.startswith("buffer_store")]
        for x in hazards.autowait(T): A(x)
        pre = s.lines[n0:n1]
        s.lines[n2:] = hazards.pad(pre + s.lines[n2:], start=len(pre))[len(pre):]
        s.stamp(6)
        if s.nodma or s.novalu or s.nolds: A("s_branch L_fin")
        A("s_cmp_lg_u32 s%d, 0\ns_cbranch_scc1 L_fin" % sPASS)
        A("s_cmp_lg_u64 vcc, 0\ns_cselect_b32 s%d, 1, 0" % sT)
        A("s_lshl_b32 s%d, s%d, 2\ns_add_u32 s%d, s%d, %d" % (sT + 1, sW, sT + 1, sT + 1, FLAG_OFF))
        A("v_mov_b32 v%d, s%d\nv_mov_b32 v%d, s%d\nv_mov_b32 v%d, %d" % (vT, sT, vT + 1, sT + 1, vT + 2, FLAG_OFF))
        A("ds_write_b32 v%d, v%d\ns_waitcnt lgkmcnt(0)\ns_barrier" % (vT + 1, vT))
        A("ds_read_b128 %s, v%d\ns_waitcnt lgkmcnt(0)" % (R("v", vT + 8, 4), vT + 2))
        A("v_or3_b32 v%d, v%d, v%d, v%d\nv_or_b32 v%d, v%d, v%d\ns_nop 1" % (vT, vT + 8, vT + 9, vT + 10, vT, vT, vT + 11))
        A("v_readfirstlane_b32 s%d, v%d\ns_nop 3\ns_cmp_eq_u32 s%d, 0\ns_cbranch_scc0 L_redo" % (sT, vT, sT))
        A("L_fin:")
        if s.dbg == -1:
            A("s_waitcnt vmcnt(0)")
            A("s_memrealtime s[42:43]\ns_memtime s[46:47]\ns_load_dwordx2 s[64:65], s[0:1], 32\ns_waitcnt lgkmcnt(0)")
            A("s_mov_b32 s68, s64\ns_mov_b32 s69, s65\ns_mov_b32 s70, 256\ns_mov_b32 s71, 0x20000")
            A("s_cmp_ge_u32 s2, 8\ns_cbranch_scc1 L_end\ns_cmp_lg_u32 s3, 0\ns_cbranch_scc1 L_end")
            A("s_lshl_b32 s36, s2, 2\nv_mov_b32 v3, s36\ns_mov_b64 exec, 1")
            A("s_sub_u32 s36, s42, s40\nv_mov_b32 v8, s36\ns_sub_u32 s36, s46, s44\nv_mov_b32 v9, s36")
            A("buffer_store_dword v8, v3, s[68:71], 0 offen\nbuffer_store_dword v9, v3, s[68:71], 0 offen offset:32")
        elif s.probe is not None:
            A("s_waitcnt vmcnt(0)")
            A("s_memrealtime s[42:43]\ns_memtime s[46:47]\ns_waitcnt lgkmcnt(0)")
            A("s_cmp_lg_u32 s2, %d\ns_cbranch_scc1 L_end" % s.probe[3])
            a, b, div = s.probe[:3]
            A("s_sub_u32 s36, s%d, s%d" % (a, b))
            if div == 10: A("s_mul_hi_u32 s36, s36, 429496730")
            if div == 0: A("s_mov_b32 s36, 0")
            if div == -1: A("s_mul_i32 s36, s36, 500")
            A("s_add_u32 s36, s36, 15000\ns_add_u32 s36, s36, s40")
            A("L_spin:\ns_sleep 4\ns_memrealtime s[42:43]\ns_waitcnt lgkmcnt(0)\ns_sub_u32 s37, s42, s36\ns_cmp_lt_i32 s37, 0\ns_cbranch_scc1 L_spin")
        elif s.stamps:
            A("s_waitcnt vmcnt(0)")
            A("s_memrealtime s[42:43]\ns_memtime s[46:47]\ns_getreg_b32 s62, hwreg(HW_REG_XCC_ID)\ns_mov_b32 s63, 0\ns_waitcnt lgkmcnt(0)")
            A("s_mov_b32 s68, s64\ns_mov_b32 s69, s65\ns_mov_b32 s70, 0x100000\ns_mov_b32 s71, 0x20000")
            A("s_lshl_b32 s37, s2, 2\ns_add_u32 s37, s37, s3\ns_mul_i32 s37, s37, 96\nv_mov_b32 v3, s37")
            if s.instr == 3:
                A("s_lshl_b32 s38, s2, 2\ns_add_u32 s38, s38, s3\ns_lshl_b32 s38, s38, 9\ns_add_u32 s38, s38, 0x20000\nv_lshlrev_b32 v4, 3, v0\nv_add_u32 v4, s38, v4")
                A("buffer_store_dwordx2 v[46:47], v4, s[68:71], 0 offen")
            for j, r in enumerate([40, 42, 44, 46] + list(range(48, 64, 2))):
                A("v_mov_b32 v8, s%d\nv_mov_b32 v9, s%d" % (r, r + 1))
                A("buffer_store_dwordx2 v[8:9], v3, s[68:71], 0 offen offset:%d" % (j * 8))
                A("s_nop 1")
        A("L_end:\ns_endpgm")
        A("L_redo:")
        A("s_mov_b32 s%d, 1\ns_mov_b32 s%d, 0" % (sPASS, sSOK))
        A("s_waitcnt vmcnt(0)")
        A("L_maxpass:")
        A("s_barrier")
        for x in group(True, 0): A(x)
        A("s_waitcnt vmcnt(0)\ns_barrier")
        for j in range(4):
            for t in range(4): A(s.kread(0, 0, j, t))
            A("s_waitcnt lgkmcnt(0)")
            for qb in range(4):
                for t in range(4): A(s.qk(0, qb, t, zero=True))
            A("s_nop 7")
            for qb in range(4):
                S = vS(qb)
                A("v_max3_f32 v%d, v%d, v%d, v%d" % (vM(qb), vM(qb), S, S + 1))
                A("v_max3_f32 v%d, v%d, v%d, v%d" % (vM(qb), vM(qb), S + 2, S + 3))
        A("s_cmp_lt_u32 s%d, 0x80000\ns_cbranch_scc1 L_maxpass" % sSOK)
        A("s_barrier\ns_branch L_start")
        A("L_last:")
        A('.section .rodata,"a"\n.p2align 6\n.amdhsa_kernel %s' % KN)
        A("  .amdhsa_next_free_vgpr 512\n  .amdhsa_next_free_sgpr 102\n  .amdhsa_accum_offset 256\n  .amdhsa_group_segment_fixed_size 0\n  .amdhsa_kernarg_size 48\n  .amdhsa_user_sgpr_count 2\n  .amdhsa_user_sgpr_kernarg_segment_ptr 1\n  .amdhsa_system_sgpr_workgroup_id_x 1\n  .amdhsa_float_denorm_mode_32 3\n.end_amdhsa_kernel")
        vb = not (s.nodma or s.novalu or s.nolds)
        errs = hazards.check(s.lines[:n2], "linear", vb) + hazards.check(body + body, "loop", vb) + hazards.check(s.lines[n0:n1] + s.lines[n2:], "tail", vb)
        return "\n".join(s.lines) + "\n", errs

def gen(name, **kw):
    txt, errs = Gen(**kw).build()
    open(name, "w").write(txt)
    return errs

if __name__ == "__main__":
    import ast
    name = sys.argv[1]
    kw = {}
    for a in sys.argv[2:]:
        k, v = a.split("=", 1)
        try: kw[k] = ast.literal_eval(v)
        except Exception: kw[k] = v
    e = gen(name, **kw)
    print(name, "hazards:", len(e))
```

```python
import sys, struct
import hazards

KN = "standalone__mha_softmax__near_ridge_kernel"
PITCH = 1056
SLOT = 16 * PITCH
VBASE = 4 * SLOT
FLAG_OFF = 8 * SLOT
LDS_BYTES = 8 * SLOT + 64
BIASB = 1888

def f32(x): return "0x%08x" % struct.unpack("<I", struct.pack("<f", x))[0]
def R(p, b, n): return "%s[%d:%d]" % (p, b, b + n - 1)

vDMA = 2
vK = 6
vV = 7
vQA = 8
vOA = 9
def vA(qb): return 12 + qb
def vM(qb): return 16 + qb
vT = 20
def vS(qb, st=0): return (100 if st else 48) + 4 * qb
def vNM(qb): return 64 + 4 * qb
vONE = 80
def vL(qb): return 84 + 4 * qb
vE = 100
vQR = 40
vW = 32
vOR = 44
vV2 = 33
vBP = 36
def vP(buf, qb, ks): return 128 + buf * 64 + qb * 16 + ks * 4
def aO(qb, db): return (qb * 8 + db) * 4
def aQ(qb, t): return 128 + (qb * 4 + t) * 4
def aK(buf, t): return 192 + buf * 16 + 4 * t
def aV(buf, ks): return 224 + buf * 16 + 4 * ks

sW = 3
sQ, sK, sV, sO = 4, 8, 12, 16
sSOK, sSOV = 20, 21
sWL = 22
sCNT = 23
sPASS = 32
sC = 34
sT = 36
sSEL = 84
vIDX = 45
sQB = 80
MF = "v_mfma_f32_16x16x32_bf16"

PATHS = {
    "row": [(q, k) for q in range(4) for k in range(4)],
    "rsn": [(q, 3 - k if q & 1 else k) for q in range(4) for k in range(4)],
    "rsr": [(3 - q, 3 - k if q & 1 else k) for q in range(4) for k in range(4)],
    "col": [(q, k) for k in range(4) for q in range(4)],
    "csn": [(3 - q if k & 1 else q, k) for k in range(4) for q in range(4)],
    "hil": [(0,0),(0,1),(1,1),(1,0),(2,0),(3,0),(3,1),(2,1),(2,2),(3,2),(3,3),(2,3),(1,3),(1,2),(0,2),(0,3)],
    "zig": [(0,0),(0,1),(1,1),(1,0),(2,0),(2,1),(3,1),(3,0),(3,2),(3,3),(2,3),(2,2),(1,2),(1,3),(0,3),(0,2)],
    "zg2": [(0,0),(1,0),(1,1),(0,1),(0,2),(1,2),(1,3),(0,3),(2,3),(3,3),(3,2),(2,2),(2,1),(3,1),(3,0),(2,0)],
}

class Gen:
    def __init__(s, ld="nt", qld="nt", st="nt", stamps=0, bias=10.0, thr=2.0 ** 40, summode="sp", nodma=0, nobar=0, novalu=0, nolds=0,
                 warm=1, instr=0, probe=None, dbg=None, dmagaps=None, pad=0, otlb=8, ones4=1, prepass=1, mspos=23, nfirst=12, nsecond=16, hmap=0, lim=0, lim1=0, padn=0, perm=0, smpl=1, lim2=0, share=(), latev=0, pre0=0, pre1=0, pre2=0, lin=1, dist=0, s0=-1, npre=None, fcnt=None, vtlb=0, newtail=1, nq=(4, 4, 4, 4), rot=0, tst=0, nost=0, pst=0, pvswap=0, qkswap=0, order=0, snake=0, qo=None, po=None, sdb=0, off=0, qseq=(0, 1, 2, 3), ones1=0, tb=3, tlat=5, wpos=(2, 3), tnv=2, operm=0, w128=0, clag=2, tord=0, vlat=4, cst=2, tad=0, f7=2, lim7=0, sfrom=0, sprio=0, peel=0, ecnt=None, edist=8, warm2=0, dg3=None, dg4=None, dist2=0, fast0=0):
        s.__dict__.update(locals())
        s.lines = []
        s.msum_qb = {"mfma": (0, 1, 2, 3), "hybrid": (0, 2), "valu": (), "sp": (0, 1, 2, 3), "sphy": (0, 2)}[summode]
        s.sp = summode.startswith("sp")
        s.dmagaps = {1: (24,), 2: (24, 28), 3: (24, 26, 28), 4: (24, 26, 28, 30)}
        if dmagaps: s.dmagaps[len(dmagaps)] = dmagaps
        if dg3: s.dmagaps[3] = dg3
        if dg4: s.dmagaps[4] = dg4
        s.vm1 = 2 * (3 - s0)
        s.vm2 = 2 * (7 - s0) - 12
        if npre is None: s.npre = -2 * s0
        if fcnt is None:
            rest = 2 * (8 - s0) - f7 - s.npre
            s.fcnt = [rest // 7 + (1 if i < rest % 7 else 0) for i in range(7)]
        assert sum(s.fcnt) + s.npre + f7 == 2 * (8 - s0) and max(s.fcnt) <= 4
        if peel:
            if ecnt is None: s.ecnt = ([2] * (12 + s0) + [0] * 16)[:16]
            assert sum(s.ecnt) == 24 + 2 * s0
            ev = [(32 * b + g, 2 * (b - s0) + i) for b in range(-4, 0) for i, g in enumerate(s.dmagaps[2])]
            p = -2 * s0
            for b in range(16):
                for g in (s.dmagaps[s.ecnt[b]] if s.ecnt[b] else ()):
                    assert b >= {4: 3, 5: 7}.get(p >> 2, -1)
                    ev.append((32 * b + g, p)); p += 1
            s.ev = ev
        s.add_qb = tuple(q for q in range(4) if q not in s.msum_qb)
    def A(s, x): s.lines.append(x)

    def m0set(s, lds_off): return "s_add_u32 m0, s%d, %d" % (sWL, lds_off)
    def dma(s, isK, i):
        return "buffer_load_dwordx4 v%d, %s, s%d offen offset:%d %s lds" % (vDMA + i, R("s", sK if isK else sV, 4), sSOK if isK else sSOV, i * PITCH, s.ld)
    def adv(s, isK):
        so = sSOK if isK else sSOV
        if s.rot: return "s_add_u32 s%d, s%d, 0x4000\ns_and_b32 s%d, s%d, 0x7ffff" % (so, so, so, so)
        return "s_add_u32 s%d, s%d, 0x4000" % (so, so)
    def kread(s, buf, slot, j, t):
        return "ds_read_b128 %s, v%d offset:%d" % (R("a", aK(buf, t), 4), vK, slot * SLOT + j * 256 + t * 64)
    def vread(s, buf, slot0, db, r, va=vV):
        ks, u = r >> 1, r & 1
        return "ds_read_b64_tr_b16 %s, v%d offset:%d" % (R("a", aV(buf, ks) + 2 * u, 2), va, (slot0 + (ks >> 1)) * SLOT + (2 * (ks & 1) + u) * 256 + db * 32)
    def qk(s, buf, qb, t, zero=False, rev=False, start=None):
        st = buf if s.sdb and not zero else 0
        if start is None: start = t == 0
        c = R("v", vS(qb, st), 4) if not start else ("0" if zero else R("v", vNM(qb), 4))
        if rev: t = 3 - t
        if s.qkswap: return "%s %s, %s, %s, %s" % (MF, R("v", vS(qb, st), 4), R("a", aQ(qb, t), 4), R("a", aK(buf, t), 4), c)
        return "%s %s, %s, %s, %s" % (MF, R("v", vS(qb, st), 4), R("a", aK(buf, t), 4), R("a", aQ(qb, t), 4), c)
    def pv(s, buf, pbuf, qb, db, ks):
        o = R("a", aO(qb, db), 4)
        if s.pvswap: return "%s %s, %s, %s, %s" % (MF, o, R("v", vP(pbuf, qb, ks), 4), R("a", aV(buf, ks), 4), o)
        return "%s %s, %s, %s, %s" % (MF, o, R("a", aV(buf, ks), 4), R("v", vP(pbuf, qb, ks), 4), o)
    def msum(s, pbuf, qb, ks):
        o = R("v", vL(qb), 4)
        return "%s %s, %s, %s, %s" % (MF, o, R("v", vONE, 4), R("v", vP(pbuf, qb, ks), 4), o)

    def msums(s, pbuf, qb):
        if not s.sp: return [s.msum(pbuf, qb, ks) for ks in range(4)]
        return ["v_smfmac_f32_16x16x64_bf16 %s, %s, %s, v%d" % (R("v", vL(qb), 4), R("v", vONE, 4), R("v", vP(pbuf, qb, 2 * h), 8), vIDX) for h in range(2)]

    def sm_table(s, first=False):
        t = []
        if first:
            for qb in range(4):
                for e in range(4):
                    t.append((4 * qb + 6 + e, "exp", qb, e))
                    if qb in s.add_qb: t.append((4 * qb + 7 + e, "add", qb, e))
                for h in range(2): t.append((4 * qb + 8 + 2 * h, "cvt", qb, h))
        else:
            addslot = {1: (16, 20, 26, 30), 3: (32, 36, 40, 44), 0: (10, 14, 18, 22), 2: (26, 30, 34, 38)}
            for j, qb in enumerate(s.qseq):
                for e in range(4): t.append((s.off + 8 * j + 7 + 2 * e, "exp", qb, e))
                for h in range(2): t.append((s.off + 8 * j + 10 + 4 * h, "cvt", qb, h))
            for qb in s.add_qb:
                for e in range(4): t.append((addslot[qb][e], "add", qb, e))
        return t
    def sm_op(s, kind, qb, i, wbuf, bb):
        S = vS(qb, bb & 1 if s.sdb else 0)
        if kind == "exp": return "v_exp_f32 v%d, v%d" % (S + i, S + i)
        if kind == "add": return "v_add_f32 v%d, v%d, v%d" % (vA(qb), vA(qb), S + i)
        d = vP(wbuf, qb, bb >> 1) + 2 * (bb & 1) + i
        if s.perm: return "v_perm_b32 v%d, v%d, v%d, s%d" % (d, S + 2 * i + 1, S + 2 * i, sSEL)
        return "v_cvt_pk_bf16_f32 v%d, v%d, v%d" % (d, S + 2 * i, S + 2 * i + 1)

    def seq(s, p, par):
        grp, piece, pp = (p % 16) >> 2, p & 3, (par + p // 16) & 1
        isK = grp in (0, 3)
        slot = (2 * pp + (4, 2, 3, 5)[grp]) & 3
        return (isK, slot * SLOT + (0 if isK else VBASE), piece)
    def dma_plan(s, par, b, first=False):
        if first:
            p0 = s.npre + sum(s.fcnt[:b])
            return [s.seq(p, par) for p in range(p0, p0 + (s.fcnt[b] if b < 7 else s.f7))]
        return [s.seq(2 * (b - s.s0) + i, par) for i in range(2)]

    def eseq(s, p):
        if p < 16: return s.seq(p, 1)
        return (False, ((p >> 2) - 4) * SLOT, p & 3)
    def after(s, pos, p):
        return sum(1 for g, q in s.ev if g <= pos and q > p)

    def block(s, par, b, do_qk=True, do_pv=True, first=False, last=False, extra=None, eb=None):
        n = 16 if first else 32
        sh = [[] for _ in range(n)]
        mem = [[] for _ in range(n)]
        va = [[] for _ in range(n)]
        flush = []
        if not s.novalu:
            tab = s.sm_table(first)
            if (do_qk or b == 0) and not (first and b == 0):
                pp = par if b else par ^ 1
                for g, kind, qb, i in tab:
                    if g >= n: va[g - n].append(s.sm_op(kind, qb, i, pp ^ 1, (b - 1) & 7))
            if do_qk:
                for g, kind, qb, i in tab:
                    if g < n: va[g].append(s.sm_op(kind, qb, i, par ^ 1, b))
                if first and b == 7:
                    keep = set((k, q, i) for g, k, q, i in s.sm_table(False) if g >= 32)
                    for g, kind, qb, i in sorted(tab):
                        if g >= n and (kind, qb, i) not in keep: flush.append(s.sm_op(kind, qb, i, par ^ 1, b))
        buf = b & 1
        nb = (b + 1) & 7
        npar = par if b < 7 else par ^ 1
        plan = s.dma_plan(par, b, first) if do_qk else []
        if eb is not None: plan = [s.eseq(q) for g, q in s.ev if g >> 5 == eb]
        gaps = s.dmagaps[len(plan)] if plan else ()
        if first: gaps = {0: (), 1: (5,), 2: (3, 11), 3: (1, 7, 13), 4: (1, 5, 9, 13)}[len(plan)]
        if first: dsg = [0, 2, 4, 6] + list(range(8, 16))
        else: dsg = [g for g in range(0, 32, 2) if g not in gaps or g in s.share]
        if do_qk:
            kslot = (2 if npar == 0 else 0) + (nb >> 2)
            for t in range(4):
                if not s.nolds and eb != 15: mem[dsg[t]].append(s.kread(buf ^ 1, kslot, nb & 3, t))
        if (do_pv and (do_qk or b < 7)) or (b == 7 and do_qk):
            for r in range(8):
                if not s.nolds: mem[dsg[4 + r]].append(s.vread(buf ^ 1, 0 if npar == 0 or eb == 15 else 2, nb, r, vV2 if eb == 15 else vV))
        if do_qk:
            for (isK, off, piece), g in zip(plan, gaps):
                if not s.nodma:
                    if piece == 0 or g == gaps[0] and s.instr == 3: sh[g - 1].append(s.m0set(off))
                    if first and s.lim1: mem[g].append("s_waitcnt vmcnt(%d)" % ((s.lim7 if b == 7 and s.lim7 else s.lim1) - 1))
                    if not first and s.lim2: sh[g].append("s_waitcnt vmcnt(%d)" % (s.lim2 - 1))
                    mem[g].append(s.dma(isK, piece))
                if piece == 3: sh[g + 1].append(s.adv(isK))
            if eb is not None:
                lastp = {}
                for g, q in s.ev: lastp[g if s.dist2 else g >> 5] = (g, q)
                for bb, (g, q) in lastp.items():
                    x = g + s.dist
                    if s.dist and x >> 5 == eb and eb < s.edist: sh[x & 31].append("s_waitcnt vmcnt(%d)" % s.after(x - 1, q))
            elif s.dist and not first:
                for g2 in (gaps if s.dist2 else gaps[-1:]):
                    x = (g2 + s.dist) % 32
                    cnt = sum(1 for k in range(1, s.dist) if (g2 + k) % 32 in gaps)
                    sh[x].append("s_waitcnt vmcnt(%d)" % cnt)
            if eb in (2, 6, 10, 14):
                w = "s_waitcnt vmcnt(%d) lgkmcnt(0)" % s.after(32 * eb + 31, {2: -1, 6: 11, 10: 15, 14: 23}[eb])
            elif b in (2, 6):
                w = "s_waitcnt vmcnt(%d) lgkmcnt(0)" % ((s.npre + sum(s.fcnt[:3]) if first else s.vm1) if b == 2 else s.vm2 - (s.f7 - 2 if first else 0))
            elif s.latev and not first and b != 7:
                w = "s_waitcnt lgkmcnt(8)"
            else:
                w = "s_waitcnt lgkmcnt(0)"
            if s.latev and not first and b not in (0, 3, 7):
                lv = 15 if s.qo else 3
                sh[lv].append("s_waitcnt lgkmcnt(%d)" % sum(1 for g in dsg[:12] if g < lv))
            if first and b == 6 and s.pre2:
                n0 = len(s.lines); s.dummy(s.pre2); flush += s.lines[n0:]; del s.lines[n0:]
            if flush: flush.append(w)
            else: sh[n - 1].append(w)
            if b in (3, 7):
                if not s.nobar: sh[0].insert(0, "s_barrier")
                if s.instr == 3:
                    sh[0].insert(1, "s_memrealtime s[72:73]\ns_memtime s[74:75]\ns_waitcnt lgkmcnt(0)\ns_mov_b32 m0, s76\ns_nop 1\nv_writelane_b32 v46, s72, m0\nv_writelane_b32 v47, s74, m0\ns_add_u32 s76, s76, 1")
        else:
            sh[n - 1].append("s_waitcnt lgkmcnt(0)")
        if s.instr == 4 and do_qk:
            if b == 7: sh[1].append("s_memrealtime s[72:73]")
            if b == 0 and not first:
                sh[1].append("s_sub_u32 s75, s72, s74")
                sh[2].append("s_mov_b32 s74, s72")
                sh[4].append("s_cmp_gt_i32 s75, 310\ns_cselect_b32 s75, 1, 0\ns_cselect_b32 s79, s72, s77")
                sh[5].append("s_add_u32 s76, s76, s75")
                sh[6].append("s_min_u32 s77, s77, s79")
        if last:
            sh[31 if any("s_add" in x for x in sh[31]) else 30].append("s_sub_u32 s%d, s%d, 1" % (sCNT, sCNT))
        ms = None
        if do_pv and do_qk and s.msum_qb:
            place = {4: {1: 0, 3: 1, 5: 2, 7: 3}, 2: {1: 0, 5: 1}}[len(s.msum_qb)]
            if b in place: ms = s.msums(par, s.msum_qb[place[b]])
            if s.smpl == 2 and len(s.msum_qb) == 4:
                x = s.msums(par, b >> 1); k = len(x) // 2
                ms = x[k * (b & 1): k * (b & 1) + k]
        for pos in range(n):
            m = None
            if first: m = s.qk(buf, pos >> 2, pos & 3, rev=s.qo == "rsn" and pos & 4)
            else:
                ch, k = pos >> 2, pos & 3
                isq, qb = [((1, 0), (0, 0), (1, 1), (0, 1), (1, 2), (0, 2), (1, 3), (0, 3)),
                           ((1, 0), (1, 1), (1, 2), (1, 3), (0, 0), (0, 1), (0, 2), (0, 3)),
                           ((1, 0), (1, 1), (0, 0), (0, 1), (1, 2), (1, 3), (0, 2), (0, 3))][s.order][ch]
                rev = s.snake and (qb & 1)
                if s.qo:
                    path = PATHS[s.qo if pos < 16 else s.po]
                    qb, k = path[pos & 15]
                    if pos < 16: m = s.qk(buf, qb, k, start=all(q != qb for q, _ in path[:pos]))
                    else: m = s.pv(buf, par, qb, b, k)
                elif isq:
                    if do_qk: m = s.qk(buf, qb, k, rev=rev)
                elif do_pv: m = s.pv(buf, par, qb, b, 3 - k if rev else k)
            if m: s.A(m)
            for o in sh[pos] + mem[pos] + va[pos]: s.A(o)
            if extra:
                for o in extra(pos): s.A(o)
            if s.pad and m: s.A("s_nop %d" % (s.pad - 1))
            if s.padn and not first and do_qk and (pos & 1) and (pos >> 1) % (16 // s.padn) == 0: s.A("s_nop 0")
            if ms is not None and pos == s.mspos:
                for x in ms: s.A(x)
        for o in flush: s.A(o)

    def tail2(s):
        assert s.pvswap and s.sp
        chains = [(qb, 0) for qb in range(4)] + [(qb, db) for qb in range(4) for db in (1, 2, 3)] + [(qb, db) for qb in range(4) for db in (4, 5, 6, 7)]
        vset = [("a", aV(0, 0)), ("a", aV(1, 0)), ("a", aK(0, 0)), ("a", aK(1, 0)), ("a", aV(0, 0)), ("v", 128), ("v", 144), ("v", 160)]
        reg = (0, 3, 1, 2)
        RB = (176, 184, 64, 72)
        RI = vE
        def mf(n, k):
            qb, db = chains[n]
            ks = 3 - k if n & 1 else k
            o = R("a", aO(qb, db), 4)
            return "%s %s, %s, %s, %s" % (MF, o, R("v", vP(1, qb, ks), 4), R(vset[db][0], vset[db][1] + 4 * ks, 4), o)
        def vrd(db, r):
            ks, u = r >> 1, r & 1
            return "ds_read_b64_tr_b16 %s, v%d offset:%d" % (R(vset[db][0], vset[db][1] + 4 * ks + 2 * u, 2), vV, (2 + (ks >> 1)) * SLOT + (2 * (ks & 1) + u) * 256 + db * 32)
        def wr(n, p):
            qb, db = chains[n]
            o = aO(qb, db) + 2 * p
            b = reg[qb] * (SLOT // 256) + 2 * p
            return "ds_write2st64_b32 v%d, a%d, a%d offset0:%d offset1:%d" % (vW + (db & 3), o, o + 1, b, b + 1)
        units = [(qb, h, i) for h in range(2) for qb in range(4) for i in range(2)]
        def rd(u, x):
            qb, h, i = units[u]
            return "ds_read_b128 %s, v%d offset:%d" % (R("v", RB[u % 4] + 4 * x, 4), (vOR, vBP + 1)[x], reg[qb] * SLOT + i * 512)
        def fin(u):
            qb, h, i = units[u]
            b = RB[u % 4]
            ops = []
            for j in range(4):
                ops += ["v_mul_f32 v%d, v%d, v%d" % (b + 2 * j + x, b + 2 * j + x, RI + 2 * qb + i) for x in range(2)]
                if j: ops.append("v_cvt_pk_bf16_f32 v%d, v%d, v%d" % (b + j - 1, b + 2 * j - 2, b + 2 * j - 1))
            ops.append("v_cvt_pk_bf16_f32 v%d, v%d, v%d" % (b + 3, b + 6, b + 7))
            ops.append("buffer_store_dwordx4 %s, v%d, %s, s%d offen offset:%d %s" % (R("v", b, 4), vOA, R("s", sO, 4), sQB + qb, i * 512 + h * 128, s.st))
            return ops
        M = [("s", x) for x in s.msums(1, 0) + s.msums(1, 1) + s.msums(1, 2)]
        for n in range(32):
            M += [((n, k), mf(n, k)) for k in range(4)]
            if n == 0: M += [("s", x) for x in s.msums(1, 3)]
        at = {t: g for g, (t, x) in enumerate(M) if t != "s"}
        NG = len(M)
        fixed = [[] for _ in range(NG + 8)]
        scal = [[] for _ in range(NG + 8)]
        left = [s.sm_op(k, q, i, 1, 7) for g, k, q, i in sorted(s.sm_table(False)) if g >= 32]
        for i, x in enumerate(left): fixed[i].append(x)
        scal[0].append("s_mov_b32 s%d, %s" % (sT, f32(s.thr)))
        wdone = {}
        for n in range(32):
            for p in range(2):
                g = at[(n + 1, s.wpos[p])] if n < 31 else NG
                fixed[g].append(wr(n, p)); wdone[n] = g
        scal[at[(3, s.wpos[0])]].append("s_waitcnt vmcnt(%d)" % (-2 * s.s0))
        scal[at[(4, s.wpos[0])]].append("s_waitcnt vmcnt(%d)" % max(0, -2 * s.s0 - 4))
        avail = [wdone[max(n for n in range(32) if chains[n][0] == qb and chains[n][1] >> 2 == h)] for qb, h, i in units]
        vq = []
        for db in range(1, 8):
            first = min(n for n in range(32) if chains[n][1] == db)
            order = range(8) if not first & 1 else (6, 7, 4, 5, 2, 3, 0, 1)
            vq += [(at[(3, 3)] if db == 4 else 0, vrd(db, r)) for r in order]
        misc = []
        for qb in range(4):
            e = (8, 10, 12, at[(2, 0)])[qb]
            misc += [(e, "v_add_f32 v%d, v%d, v%d" % (vL(qb), vL(qb), vL(qb) + 1)), (e + 1, "v_rcp_f32 v%d, v%d" % (vT + qb, vL(qb)))]
        for qb in range(4):
            misc += [(0, "ds_bpermute_b32 v%d, v%d, v%d offset:%d" % (RI + 2 * qb + i, vBP, vT + qb, 8 * i)) for i in range(2)]
        misc += [(0, "v_add_f32 v%d, v%d, v%d" % (vT + 5, vL(0), vL(1))), (0, "v_add_f32 v%d, v%d, v%d" % (vT + 6, vL(2), vL(3))),
                 (0, "v_add_f32 v%d, v%d, v%d" % (vT + 5, vT + 5, vT + 6)), (0, "v_cmp_nge_f32 vcc, s%d, v%d" % (sT, vT + 5))]
        T = []
        nrd = 0; rdat = {}; cur = 0; ops = fin(0); lastst = {}
        cost = lambda x: 2 if x.startswith(("v_exp", "v_rcp")) else 1
        for g in range(NG + 1):
            if g < NG: T.append(M[g][1])
            T += scal[g] + fixed[g]
            used = sum(cost(x) for x in fixed[g])
            budget = s.tb if g < NG else 1000
            nv = 0
            while used < budget:
                u = nrd >> 1
                if u < 16 and avail[u] <= g and (u < 4 or lastst.get(u - 4, 1000) < g or g == NG and cur > u - 4):
                    T.append(rd(u, nrd & 1)); rdat[u] = g; nrd += 1
                elif misc and misc[0][0] <= g and (nv or not vq or len(vq) < 36):
                    x = misc.pop(0)[1]; T.append(x); used += cost(x) - 1
                elif any(e <= g for e, x in vq) and nv < s.tnv:
                    T.append(vq.pop([e <= g for e, x in vq].index(True))[1]); nv += 1
                elif cur < 16 and nrd >= 2 * cur + 2 and (rdat[cur] + s.tlat <= g or g == NG) and not misc:
                    T.append(ops.pop(0))
                    if not ops:
                        lastst[cur] = g; cur += 1
                        if cur < 16: ops = fin(cur)
                else: break
                used += 1
            if s.tst and g < NG and M[g][0] in [(n, 3) for n in (3, 11, 19, 27, 31)]:
                j = (3, 11, 19, 27, 31).index(M[g][0][0])
                T.append("s_memtime s[%d:%d]" % (48 + 2 * j, 49 + 2 * j))
        assert cur == 16 and not vq and not misc
        for qb in range(4):
            assert T.index(rd(2 * qb + 1, 1)) < T.index(wr(16 + 4 * qb, 0))
        return T

    def tail3(s):
        assert s.pvswap and s.sp and not s.ones1
        if s.tord == 0: chains = [(qb, 0) for qb in range(4)] + [(qb, db) for qb in range(4) for db in (1, 2, 3)]
        else: chains = [(qb, db) for db in (0, 1) for qb in range(4)] + [(qb, db) for qb in range(4) for db in (2, 3)]
        chains += [(qb, db) for qb in range(4) for db in (4, 5, 6, 7)]
        vset = [("a", aV(0, 0)), ("a", aV(1, 0)), ("a", aK(0, 0)), ("a", aK(1, 0)), ("a", aV(0, 0)), ("v", 128), ("v", 144), ("v", 160)]
        reg = (0, 3, 1, 2)
        def lo(qb, h): return (2 + (qb >> 1)) * SLOT + (qb & 1) * 2048 if s.peel else reg[qb] * SLOT + h * 2048
        X = (64, 72)
        W = (176, 184, 100, 108)
        def mf(n, k):
            qb, db = chains[n]
            ks = 3 - k if n & 1 else k
            o = R("a", aO(qb, db), 4)
            return "%s %s, %s, %s, %s" % (MF, o, R("v", vP(1, qb, ks), 4), R(vset[db][0], vset[db][1] + 4 * ks, 4), o)
        def vrd(db, r):
            ks, u = r >> 1, r & 1
            return "ds_read_b64_tr_b16 %s, v%d offset:%d" % (R(vset[db][0], vset[db][1] + 4 * ks + 2 * u, 2), vV2 if s.peel else vV, ((0 if s.peel else 2) + (ks >> 1)) * SLOT + (2 * (ks & 1) + u) * 256 + db * 32)
        M = [("s", x) for x in s.msums(1, 0) + s.msums(1, 1) + s.msums(1, 2)]
        for n in range(32):
            M += [((n, k), mf(n, k)) for k in range(4)]
            if n == 0: M += [("s", x) for x in s.msums(1, 3)]
        at = {t: g for g, (t, x) in enumerate(M) if t != "s"}
        NG = len(M)
        fixed = [[] for _ in range(NG + 1)]
        scal = [[] for _ in range(NG + 1)]
        left = [s.sm_op(k, q, i, 1, 7) for g, k, q, i in sorted(s.sm_table(False)) if g >= 32]
        for i, x in enumerate(left): fixed[i].append(x)
        scal[0].append("s_mov_b32 s%d, %s" % (sT, f32(s.thr)))
        rinv = {}
        for qb in range(4):
            e = (6, 8, 10, at[(2, 0)])[qb]
            fixed[e].append("v_add_f32 v%d, v%d, v%d" % (vL(qb), vL(qb), vL(qb) + 1))
            fixed[e + 1].append("v_rcp_f32 v%d, v%d" % (vT + qb, vL(qb)))
            for gq in range(1, 4):
                fixed[e + 1 + 2 * gq].append("v_mov_b32_dpp v%d, v%d row_shl:%d row_mask:0x%x bank_mask:0xf" % (vT + qb, vT + qb, 4 * gq, 1 << gq))
            rinv[qb] = e + 9
        e = at[(3, 0)]
        fixed[e] += ["v_add_f32 v%d, v%d, v%d" % (vT + 5, vL(0), vL(1)), "v_add_f32 v%d, v%d, v%d" % (vT + 6, vL(2), vL(3))]
        fixed[e + 1].append("v_add_f32 v%d, v%d, v%d" % (vT + 5, vT + 5, vT + 6))
        fixed[e + 2].append("v_cmp_nge_f32 vcc, s%d, v%d" % (sT, vT + 5))
        if not s.peel: scal[at[(5, 0)]].append("s_waitcnt vmcnt(%d)" % max(0, -2 * s.s0 - 4))
        vq = []
        for db in range(1, 8):
            first = min(n for n in range(32) if chains[n][1] == db)
            order = range(8) if not first & 1 else (6, 7, 4, 5, 2, 3, 0, 1)
            vq += [(at[(3, 3)] + 1 if db == 4 else 0, at[(first, j >> 1)], vrd(db, r)) for j, r in enumerate(order)]
        groups = [(qb, h) for h in range(2) for qb in range(4)]
        units = []
        for gi, (qb, h) in enumerate(groups):
            for p in range(2): units.append((max(chains.index((qb, 4 * h + 2 * p + e2)) for e2 in range(2)), gi, p))
        units.sort()
        cq = []
        for ui, (_, gi, p) in enumerate(units):
            qb, h = groups[gi]
            w = W[gi & 3]
            for e2 in range(2):
                db = 4 * h + 2 * p + e2
                rdy = max(at[(chains.index((qb, db)), 3)] + 1 + s.clag, rinv[qb])
                x = X[ui & 1] + 4 * e2
                cq += [(rdy, "v_accvgpr_read_b32 v%d, a%d" % (x + r, aO(qb, db) + r), []) for r in range(4)]
                cq += [(rdy, "v_mul_f32_dpp v%d, v%d, v%d row_newbcast:%d row_mask:0xf bank_mask:0xf" % (x + r, vT + qb, x + r, r), []) for r in range(4)]
            for r in range(4):
                rel = []
                if p:
                    rel.append(("w", "ds_write_b64 v%d, %s offset:%d" % (vW, R("v", w + 2 * r, 2), lo(qb, h) + r * 128), None))
                    if r & 1:
                        i = r >> 1
                        rel += [("r", "ds_read_b64_tr_b16 %s, v%d offset:%d" % (R("a", aO(qb, 4 * h) + 4 * i + 2 * x, 2), (vOR, vBP + 1)[x], lo(qb, h) + i * 256), (gi, i) if x else None) for x in range(2)]
                cq.append((rdy, "v_cvt_pk_bf16_f32 v%d, v%d, v%d" % (w + 2 * r + p, X[ui & 1] + r, X[ui & 1] + 4 + r), rel))
        def st(gi, i):
            qb, h = groups[gi]
            return "buffer_store_dwordx4 %s, v%d, %s, s%d offen offset:%d %s" % (R("a", aO(qb, 4 * h) + 4 * i, 4), vOA, R("s", sO, 4), sQB + qb, i * 512 + h * 128, s.st)
        T = []; sq = []; oq = []
        cost = lambda x: 2 if x.startswith(("v_exp", "v_rcp")) else 1
        def popo(g):
            k, o, tag = oq.pop(0); T.append(o)
            if tag: sq.append((g + s.tlat, st(*tag)))
            return k
        for g in range(NG):
            T.append(M[g][1])
            T += scal[g]
            used = 0
            ok = [e <= g for e, d, x in vq]
            need = max([j + 1 - (d - s.vlat - g) for j, (e, d, x) in enumerate(vq)] + [0])
            if any(ok) and need >= 1:
                for _ in range(min(2, need)):
                    ok = [e <= g for e, d, x in vq]
                    if any(ok): T.append(vq.pop(ok.index(True))[2]); used += 1
            elif sq and sq[0][0] <= g and g >= s.sfrom and not (oq and s.sfrom and g < NG - s.sprio): T.append(sq.pop(0)[1]); used += s.cst
            elif oq:
                k = popo(g); used += 3 if k == "w" else 1
                if k == "r" and oq and oq[0][0] == "r": popo(g); used += 1
            elif any(ok):
                T.append(vq.pop(ok.index(True))[2]); used += 1
                ok = [e <= g for e, d, x in vq]
                if any(ok) and not fixed[g] and not (cq and cq[0][0] <= g): T.append(vq.pop(ok.index(True))[2]); used += 1
            T += fixed[g]
            used += sum(cost(x) for x in fixed[g])
            budget = s.tb[g % len(s.tb)] if isinstance(s.tb, tuple) else s.tb
            if s.tad:
                nr = next((j for j, x in enumerate(cq) if x[0] > g), len(cq))
                nx = cq[nr][0] - g if nr < len(cq) else NG - g
                budget = max(2, min(s.tb, used + -(-nr // max(1, min(nx + s.tad - 1, NG - g)))))
            while used < budget and cq and cq[0][0] <= g:
                e, o, rel = cq.pop(0); T.append(o); oq += rel; used += 1
            if s.tst and M[g][0] in [(n, 3) for n in (3, 11, 19, 27, 31)]:
                j = (3, 11, 19, 27, 31).index(M[g][0][0])
                T.append("s_memtime s[%d:%d]" % (48 + 2 * j, 49 + 2 * j))
        while oq: popo(NG)
        for e, o, rel in cq: T.append(o); oq += rel
        oq.sort(key=lambda x: x[0] == "r")
        while oq: popo(NG)
        T += [x for g, x in sq]
        assert not vq
        for db in range(1, 8):
            n = min(n for n in range(32) if chains[n][1] == db)
            assert max(T.index(vrd(db, r)) for r in range(8)) < T.index(mf(n, 3))
        wrs = [k for k, x in enumerate(T) if x.startswith("ds_write_b64")]
        cvs = [k for k, x in enumerate(T) if x.startswith("v_cvt_pk")]
        for gi in range(4): assert wrs[4 * gi + 3] < min(k for k in cvs if T[k].split()[1] == "v%d," % W[gi] and k > wrs[4 * gi])
        return T

    def dummy(s, n):
        for i in range(n):
            s.A("%s v[120:123], v[%d:%d], v[%d:%d], %s" % (MF, 104 + 4 * (i & 1), 107 + 4 * (i & 1), 112 + 4 * ((i >> 1) & 1), 115 + 4 * ((i >> 1) & 1), "v[120:123]" if i & 3 else "0"))
    def stamp(s, idx, force=False):
        if s.tst and idx < 5: return
        if s.pst and not force: return
        if s.stamps: s.A("%s s[%d:%d]" % ("s_memrealtime" if s.stamps == 2 else "s_memtime", 48 + 2 * idx, 49 + 2 * idx))

    def build(s):
        A = s.A
        A("; @launch grid=(256,1,1) block=(256,1,1) lds=%d" % LDS_BYTES)
        A('.amdgcn_target "amdgcn-amd-amdhsa--gfx950"')
        A(".text")
        A(".globl %s\n.p2align 8\n.type %s,@function\n%s:" % (KN, KN, KN))
        A("s_cmp_ge_u32 s2, 256\ns_cbranch_scc1 L_end")
        if s.stamps: A("s_memrealtime s[40:41]\ns_memtime s[44:45]")
        A("s_load_dwordx4 s[24:27], s[0:1], 0\ns_load_dwordx4 s[28:31], s[0:1], 16")
        if s.stamps: A("s_load_dwordx2 s[64:65], s[0:1], 40")
        if s.warm:
            A("s_getpc_b64 s[36:37]\nL_pc:")
            if s.warm2:
                A("v_lshlrev_b32 v1, 6, v0\nglobal_load_dword v11, v1, s[36:37]")
                A("v_lshlrev_b32 v38, 6, v0\nv_add_u32 v38, 16384, v38\nv_min_u32 v38, L_end-L_pc, v38\ns_mov_b64 s[86:87], s[36:37]")
            else:
                A("v_lshlrev_b32 v1, 7, v0\nv_min_u32 v1, L_end-L_pc, v1\nglobal_load_dword v11, v1, s[36:37]")
        A("v_lshrrev_b32 v1, 6, v0\nv_and_b32 v0, 63, v0\ns_nop 0\nv_readfirstlane_b32 s%d, v1" % sW)
        A("v_lshrrev_b32 v20, 4, v0\nv_and_b32 v21, 15, v0")
        A("s_mul_i32 s%d, s%d, %d" % (sWL, sW, 4 * PITCH))
        if s.lin:
            A("s_lshl_b32 s%d, s%d, 12\nv_lshlrev_b32 v22, 4, v0\nv_add_u32 v22, s%d, v22" % (sT, sW, sT))
        else:
            A("v_lshlrev_b32 v22, 12, v20\nv_lshl_add_u32 v22, v21, 4, v22")
            A("s_lshr_b32 s%d, s%d, 1\ns_lshl_b32 s%d, s%d, 11\ns_and_b32 s%d, s%d, 1\ns_lshl_b32 s%d, s%d, 9\ns_add_u32 s%d, s%d, s%d" % (sT, sW, sT, sT, sT + 1, sW, sT + 1, sT + 1, sT, sT, sT + 1))
            A("v_add_u32 v22, s%d, v22" % sT)
        for i in range(4):
            goff = i * 1024 if s.lin else (4 * (i & 1) + (i >> 1)) * 256
            A("v_add_u32 v%d, %d, v22" % (vDMA + i, goff - PITCH * i + BIASB))
        A("s_lshl_b32 s%d, s%d, 14" % (sT, sW))
        A("v_lshlrev_b32 v23, 2, v20\nv_xor_b32 v23, v23, v21\nv_lshlrev_b32 v23, 4, v23\nv_lshl_add_u32 v23, v20, 8, v23\nv_add_u32 v%d, s%d, v23" % (vQA, sT))
        if s.newtail == 3:
            A("v_bfe_u32 v23, v0, 3, 1\nv_lshl_add_u32 v23, v20, 2, v23\nv_and_b32 v24, 3, v0\nv_lshlrev_b32 v24, 5, v24\nv_lshl_add_u32 v23, v23, 8, v24")
            A("v_bfe_u32 v24, v0, 2, 1\nv_lshl_add_u32 v23, v24, 4, v23\nv_add_u32 v%d, s%d, v23" % (vOA, sT))
        elif s.newtail == 2:
            A("v_bfe_u32 v23, v0, 3, 1\nv_lshl_add_u32 v23, v20, 2, v23\nv_lshlrev_b32 v%d, 2, v23\nv_and_b32 v24, 7, v0\nv_lshlrev_b32 v24, 4, v24\nv_lshl_add_u32 v23, v23, 8, v24\nv_add_u32 v%d, s%d, v23" % (vBP, vOA, sT))
        elif s.operm:
            A("v_lshrrev_b32 v23, 3, v0\nv_and_b32 v24, 3, v0\nv_lshlrev_b32 v24, 5, v24\nv_lshl_add_u32 v23, v23, 8, v24\nv_bfe_u32 v24, v0, 2, 1\nv_lshl_add_u32 v23, v24, 4, v23\nv_add_u32 v%d, s%d, v23" % (vOA, sT))
        else:
            A("v_lshrrev_b32 v23, 3, v0\nv_and_b32 v24, 7, v0\nv_lshlrev_b32 v24, 4, v24\nv_lshl_add_u32 v23, v23, 8, v24\nv_add_u32 v%d, s%d, v23" % (vOA, sT))
        for qb in range(4): A("s_mov_b32 s%d, %d" % (sQB + qb, qb * 4096))
        if s.fast0:
            assert not s.hmap and not s.rot
            A("s_lshl_b32 s88, s2, 19\ns_sub_u32 s88, s88, %d\ns_subb_u32 s89, 0, 0\ns_lshl_b32 s90, s2, 16" % BIASB)
            for d, n in ((sK, 0x80000 + BIASB), (sV, 0x80000 + BIASB), (sQ, 0x10000), (sO, 0x10000)): A("s_mov_b32 s%d, %d\ns_mov_b32 s%d, 0x20000" % (d + 2, n, d + 3))
            A("s_mov_b32 s%d, 0" % sPASS)
            for qb in range(4): A("v_mov_b32 v%d, 0xff800000" % vM(qb))
            A("L_start:")
            A("s_mov_b32 s%d, 0\ns_mov_b32 s%d, 0" % (sSOK, sSOV))
            A(s.m0set(0))
        if s.pst == 1: s.stamp(0, True)
        A("s_waitcnt lgkmcnt(0)")
        if s.pst == 1: s.stamp(1, True)
        hd = 2
        if s.hmap == 1:
            hd = 33; A("s_xor_b32 s33, s2, 1")
        if s.hmap == 2:
            hd = 33; A("s_and_b32 s33, s2, 7\ns_lshl_b32 s33, s33, 5\ns_lshr_b32 s36, s2, 3\ns_add_u32 s33, s33, s36")
        if s.fast0:
            A("s_add_u32 s%d, s26, s88\ns_addc_u32 s%d, s27, s89" % (sK, sK + 1))
        else:
            A("s_lshl_b32 s%d, s%d, 19" % (sT, hd))
            A("s_sub_u32 s26, s26, %d\ns_subb_u32 s27, s27, 0\ns_sub_u32 s28, s28, %d\ns_subb_u32 s29, s29, 0" % (BIASB, BIASB))
            A("s_add_u32 s%d, s26, s%d\ns_addc_u32 s%d, s27, 0\ns_mov_b32 s%d, %d\ns_mov_b32 s%d, 0x20000" % (sK, sT, sK + 1, sK + 2, 0x80000 + BIASB, sK + 3))
            A("s_add_u32 s%d, s28, s%d\ns_addc_u32 s%d, s29, 0\ns_mov_b32 s%d, %d\ns_mov_b32 s%d, 0x20000" % (sV, sT, sV + 1, sV + 2, 0x80000 + BIASB, sV + 3))
            A("s_lshl_b32 s%d, s%d, 16" % (sT, hd))
            A("s_add_u32 s%d, s24, s%d\ns_addc_u32 s%d, s25, 0\ns_mov_b32 s%d, 0x10000\ns_mov_b32 s%d, 0x20000" % (sQ, sT, sQ + 1, sQ + 2, sQ + 3))
            A("s_add_u32 s%d, s30, s%d\ns_addc_u32 s%d, s31, 0\ns_mov_b32 s%d, 0x10000\ns_mov_b32 s%d, 0x20000" % (sO, sT, sO + 1, sO + 2, sO + 3))
            A("s_mov_b32 s%d, 0" % sPASS)
            for qb in range(4): A("v_mov_b32 v%d, 0xff800000" % vM(qb))
            A("L_start:")
            if s.rot: A("s_mul_i32 s%d, s2, %d\ns_and_b32 s%d, s%d, 31\ns_lshl_b32 s%d, s%d, 14\ns_mov_b32 s%d, s%d" % (sSOK, s.rot, sSOK, sSOK, sSOK, sSOK, sSOV, sSOK))
            else: A("s_mov_b32 s%d, 0\ns_mov_b32 s%d, 0" % (sSOK, sSOV))
        def group(isK, off, n=4):
            return [s.m0set(off), "s_nop 0"] + [s.dma(isK, i) for i in range(n)] + ([s.adv(isK)] if n == 4 else [])
        PERM = (0, 3, 1, 2)
        def qgroup(qb):
            out = []
            for i in range(4):
                out.append(["s_add_u32 m0, s%d, %d" % (sWL, VBASE + qb * SLOT + i * PITCH - PERM[i] * 1024), "s_nop 0",
                            "buffer_load_dwordx4 v%d, %s, s%d offen offset:%d %s lds" % (vQA, R("s", sQ, 4), sQB + qb, PERM[i] * 1024, s.qld)])
            return out
        def pieces(isK, off, n=4):
            out = [[s.dma(isK, i)] for i in range(n)]
            if n: out[0] = [s.m0set(off), "s_nop 0"] + out[0]
            if n == 4: out[3].append(s.adv(isK))
            return out
        Q = [("K0", p) for p in pieces(True, 0)]
        for qb in range(4): Q += [("Q%d" % qb, p) for p in qgroup(qb)]
        Q += [("K1", p) for p in pieces(True, SLOT)]
        for p in range(s.npre):
            isK, off, piece = s.seq(p, 1)
            ops = ([s.m0set(off), "s_nop 0"] if piece == 0 else []) + [s.dma(isK, piece)] + ([s.adv(isK)] if piece == 3 else [])
            Q.append((("K2", "V0", "V1", "K3")[p >> 2], ops))
        if s.fast0:
            Q[0] = ("K0", Q[0][1][2:])
            Q[0][1].append("s_add_u32 s%d, s24, s90\ns_addc_u32 s%d, s25, 0" % (sQ, sQ + 1))
        if s.vtlb: Q.insert(s.vtlb, ("X", ["buffer_load_dword v127, v%d, %s, 0 offen" % (vDMA, R("s", sV, 4))]))
        if s.otlb: Q.insert(s.otlb, ("X", ["buffer_load_dword v10, v%d, %s, 0 offen" % (vOA, R("s", sO, 4))]))
        st = {"n": 0}
        def issue(k=1):
            for _ in range(k):
                if st["n"] < len(Q):
                    if s.lim and st["n"] >= s.lim: A("s_waitcnt vmcnt(%d)" % (s.lim - 1))
                    for x in Q[st["n"]][1]: A(x)
                    st["n"] += 1
        def waitfor(tag):
            last = max(i for i, x in enumerate(Q) if x[0] == tag)
            if st["n"] <= last: issue(last + 1 - st["n"])
            A("s_waitcnt vmcnt(%d)" % (st["n"] - 1 - last))
        if s.pst == 1: s.stamp(2, True)
        issue(s.nfirst)
        if s.fast0:
            assert s.nfirst <= min(x for x in (s.otlb, s.vtlb, 20) if x)
            A("s_add_u32 s%d, s28, s88\ns_addc_u32 s%d, s29, s89" % (sV, sV + 1))
            A("s_add_u32 s%d, s30, s90\ns_addc_u32 s%d, s31, 0" % (sO, sO + 1))
        if s.pst == 1: s.stamp(3, True)
        A("v_and_b32 v22, 3, v0\nv_bfe_u32 v23, v0, 2, 1\nv_lshl_add_u32 v22, v22, 1, v23\nv_and_b32 v23, 8, v0\nv_add_u32 v22, v22, v23")
        A("v_mul_u32_u24 v22, %d, v22\nv_lshrrev_b32 v23, 4, v0\nv_lshl_add_u32 v%d, v23, 4, v22" % (PITCH, vK))
        A("v_bfe_u32 v22, v0, 2, 2\nv_bfe_u32 v23, v0, 4, 1\nv_lshl_add_u32 v22, v22, 1, v23\nv_lshrrev_b32 v23, 5, v0\nv_lshl_add_u32 v22, v23, 3, v22")
        A("v_mul_u32_u24 v22, %d, v22\nv_and_b32 v23, 3, v0\nv_lshl_add_u32 v22, v23, 3, v22\nv_add_u32 v%d, %d, v22" % (PITCH, vV, VBASE))
        A("v_bfe_u32 v22, v0, 2, 2\nv_lshlrev_b32 v22, 1, v22\nv_mov_b32 v23, 0x78\nv_lshrrev_b32 v22, v22, v23\nv_and_b32 v22, 3, v22")
        A("v_mul_u32_u24 v22, %d, v22\nv_and_b32 v23, 3, v0\nv_lshl_add_u32 v22, v23, 8, v22\nv_lshrrev_b32 v24, 4, v0\nv_lshl_add_u32 v22, v24, 4, v22" % PITCH)
        A("v_add_u32 v22, s%d, v22\nv_add_u32 v22, %d, v22" % (sWL, VBASE))
        for t in range(4): A("v_xor_b32 v24, %d, v23\nv_lshl_add_u32 v%d, v24, 6, v22" % (t, vQR + t))
        if s.newtail == 3:
            sh = 4 if s.w128 else 3
            A("v_lshrrev_b32 v%d, 4, v0\nv_lshlrev_b32 v%d, 9, v%d\nv_add_u32 v%d, s%d, v%d" % (vE, vE + 1, vE, vE + 1, sWL, vE + 1))
            A("v_and_b32 v%d, 1, v%d\nv_lshlrev_b32 v%d, 2, v%d" % (vE, vE, vE, vE))
            A("v_and_b32 v%d, 15, v0\nv_xor_b32 v%d, v%d, v%d\nv_lshl_add_u32 v%d, v%d, %d, v%d" % (vE + 2, vE + 2, vE + 2, vE, vW, vE + 2, sh, vE + 1))
            A("v_bfe_u32 v%d, v0, 1, 1\nv_lshl_add_u32 v%d, v%d, %d, v%d" % (vE + 2, vE + 1, vE + 2, 3 if s.w128 else 7, vE + 1))
            A("v_and_b32 v%d, 1, v0\nv_bfe_u32 v%d, v0, 2, 2\nv_lshl_add_u32 v%d, v%d, 3, v%d\nv_xor_b32 v%d, v%d, v%d" % (vE + 2, vE + 3, vE + 2, vE + 2, vE + 3, vE + 2, vE + 2, vE))
            A("v_lshl_add_u32 v%d, v%d, %d, v%d\nv_xor_b32 v%d, 4, v%d\nv_lshl_add_u32 v%d, v%d, %d, v%d" % (vOR, vE + 2, sh, vE + 1, vE + 2, vE + 2, vBP + 1, vE + 2, sh, vE + 1))
        elif s.newtail == 2:
            A("v_bfe_u32 v%d, v0, 4, 1\nv_mul_u32_u24 v%d, 5, v%d\nv_lshrrev_b32 v%d, 4, v0\nv_lshlrev_b32 v%d, 10, v%d" % (vE, vE, vE, vE + 1, vE + 1, vE + 1))
            A("v_and_b32 v%d, 3, v0\nv_lshl_add_u32 v%d, v%d, 2, v%d\nv_add_u32 v%d, s%d, v%d" % (vE + 2, vE + 1, vE + 2, vE + 1, vE + 1, sWL, vE + 1))
            A("v_bfe_u32 v%d, v0, 2, 2\nv_xor_b32 v%d, v%d, v%d" % (vE + 2, vE + 2, vE + 2, vE))
            for e in range(4): A("v_xor_b32 v%d, %d, v%d\nv_lshl_add_u32 v%d, v%d, 4, v%d" % (vW + e, 4 * e, vE + 2, vW + e, vW + e, vE + 1))
            A("v_and_b32 v%d, 7, v0\nv_lshlrev_b32 v%d, 1, v%d\nv_xor_b32 v%d, v%d, v%d" % (vE + 2, vE + 2, vE + 2, vE + 2, vE + 2, vE))
            A("v_lshlrev_b32 v%d, 6, v%d\nv_add_u32 v%d, s%d, v%d" % (vE + 1, vBP, vE + 1, sWL, vE + 1))
            A("v_lshl_add_u32 v%d, v%d, 4, v%d\nv_xor_b32 v%d, 1, v%d\nv_lshl_add_u32 v%d, v%d, 4, v%d" % (vOR, vE + 2, vE + 1, vE + 2, vE + 2, vBP + 1, vE + 2, vE + 1))
        else:
            A("v_and_b32 v%d, 15, v0\nv_lshrrev_b32 v%d, 5, v0\nv_xor_b32 v%d, v%d, v%d\nv_lshlrev_b32 v%d, 4, v%d" % (vE, vE + 1, vE + 1, vE + 1, vE, vE + 1, vE + 1))
            A("v_lshl_add_u32 v%d, v%d, 8, v%d\nv_bfe_u32 v%d, v0, 4, 1\nv_lshl_add_u32 v%d, v%d, 3, v%d" % (vE + 1, vE, vE + 1, vE, vE + 1, vE, vE + 1))
            for db in range(8): A("v_xor_b32 v%d, %d, v%d\nv_add_u32 v%d, s%d, v%d" % (vW + db, db * 32, vE + 1, vW + db, sWL, vW + db))
            A("v_lshrrev_b32 v%d, 3, v0\nv_and_b32 v%d, 7, v0\nv_xor_b32 v%d, v%d, v%d\nv_lshlrev_b32 v%d, 4, v%d" % (vE, vE + 1, vE + 1, vE + 1, vE, vE + 1, vE + 1))
            A("v_lshl_add_u32 v%d, v%d, 8, v%d\nv_add_u32 v%d, s%d, v%d" % (vE + 1, vE, vE + 1, vOR, sWL, vE + 1))
        c = 1.4426950408889634 / (128.0 ** 0.5)
        A("s_mov_b32 s%d, %s\ns_mov_b32 s%d, %s" % (sC, f32(c), sC + 1, f32(c)))
        A("s_mov_b32 s%d, %d" % (sCNT, 6 if s.peel else 7))
        if s.peel: A("v_subrev_u32 v%d, %d, v%d" % (vV2, VBASE, vV))
        A("s_mov_b32 s%d, 0x07060302" % sSEL)
        if s.sp:
            A("v_and_b32 v22, %d, v0\nv_cmp_gt_u32 vcc, 2, v22\nv_mov_b32 v23, 0x3f803f80\nv_and_b32 v22, 1, v0\nv_cndmask_b32 v%d, 0, v23, vcc" % (15 if s.ones1 else 3, vONE))
            A("v_cmp_eq_u32 vcc, 0, v22\nv_mov_b32 v23, 0x44444444\nv_mov_b32 v24, 0xeeeeeeee\nv_cndmask_b32 v%d, v24, v23, vcc" % vIDX)
        elif s.ones4:
            A("v_and_b32 v22, 3, v0\nv_cmp_eq_u32 vcc, 0, v22\nv_mov_b32 v23, 0x3f803f80\ns_nop 0\nv_cndmask_b32 v%d, 0, v23, vcc" % vONE)
        else:
            A("v_mov_b32 v%d, 0x3f803f80" % vONE)
        for i in range(1, 4): A("v_mov_b32 v%d, v%d" % (vONE + i, vONE))
        if s.pst == 1: s.stamp(4, True)
        for i in range(128): A("v_accvgpr_write_b32 a%d, 0" % i)
        for i in range(16): A("v_mov_b32 v%d, 0" % (vL(0) + i))
        for qb in range(4): A("v_mov_b32 v%d, 0" % vA(qb))
        s.stamp(0)
        if s.pst == 1:
            s.stamp(5, True)
            A("s_waitcnt vmcnt(%d)" % (s.nfirst - 1))
            s.stamp(6, True)
        if s.pre0 or s.pre1 or s.pre2:
            A("s_mov_b32 s85, 0x9e3779b1\nv_add_u32 v100, 1, v0")
            for i in range(16):
                A("v_mul_lo_u32 v100, v100, s85\nv_and_b32 v%d, 0xbfffbfff, v100\nv_or_b32 v%d, 0x3c003c00, v%d" % (104 + i, 104 + i, 104 + i))
            s.dummy(s.pre0)
        issue(s.nsecond - st["n"])
        for qb in range(4):
            if qb and s.pre1: s.dummy(s.pre1)
            waitfor("Q%d" % qb)
            if qb == 0: s.stamp(1)
            for t in range(4): A("ds_read_b128 %s, v%d offset:%d" % (R("v", 128 + 4 * t, 4), vQR + t, qb * SLOT))
            if qb == 0:
                A("s_barrier")
                for t in range(4): A(s.kread(0, 0, 0, t))
                if s.prepass == 2:
                    for t in range(4): A(s.kread(1, 0, 1, t))
            for f in range(4):
                b = 128 + 4 * f
                if f < s.nq[qb] and st["n"] < len(Q) and Q[st["n"]][0] not in ["V%d" % x for x in range(qb, 4)]: issue(1)
                A("s_waitcnt lgkmcnt(%d)" % (3 - f + (4 * s.prepass if qb == 0 else 0)))
                for i in range(4):
                    A("v_lshlrev_b32 v%d, 16, v%d\nv_and_b32 v%d, 0xffff0000, v%d" % (vT + 2 * i, b + i, vT + 2 * i + 1, b + i))
                for i in range(4):
                    A("v_pk_mul_f32 %s, %s, %s" % (R("v", vT + 2 * i, 2), R("v", vT + 2 * i, 2), R("s", sC, 2)))
                for i in range(4):
                    A("v_cvt_pk_bf16_f32 v%d, v%d, v%d" % (vT + 8 + i, vT + 2 * i, vT + 2 * i + 1))
                for i in range(4):
                    A("v_accvgpr_write_b32 a%d, v%d" % (aQ(qb, f) + i, vT + 8 + i))
        s.stamp(2)
        A("s_waitcnt lgkmcnt(0)")
        for rep in range(s.prepass):
            for qb in range(4):
                for t in range(4): A(s.qk(rep, qb, t, zero=True))
                if qb & 1: issue(1)
            A("s_nop 4")
            for qb in range(4):
                S = vS(qb)
                A("v_max3_f32 v%d, v%d, v%d, v%d" % (vM(qb), vM(qb), S, S + 1))
            for qb in range(4):
                S = vS(qb)
                A("v_max3_f32 v%d, v%d, v%d, v%d" % (vM(qb), vM(qb), S + 2, S + 3))
        for sw in ("v_permlane32_swap_b32", "v_permlane16_swap_b32"):
            for qb in range(4): A("v_mov_b32 v%d, v%d" % (vT + qb, vM(qb)))
            for qb in range(4): A("%s v%d, v%d" % (sw, vT + qb, vM(qb)))
            for qb in range(4): A("v_max_f32 v%d, v%d, v%d" % (vM(qb), vM(qb), vT + qb))
            issue(1)
        issue(len(Q))
        A("s_mov_b32 s%d, %s" % (sT, f32(-s.bias)))
        for qb in range(4): A("v_sub_f32 v%d, s%d, v%d" % (vNM(qb), sT, vM(qb)))
        for qb in range(4):
            for i in range(1, 4): A("v_mov_b32 v%d, v%d" % (vNM(qb) + i, vNM(qb)))
        if s.novalu:
            for i in range(128): A("v_accvgpr_read_b32 v%d, a%d" % (128 + i, 128 + (i & 63)))
        if s.nolds:
            for t in range(4): A(s.kread(1, 0, 1, t))
            for bf in range(2):
                for r in range(8): A(s.vread(bf, 2, bf, r))
            A("s_waitcnt lgkmcnt(0)")
        if s.instr == 3: A("s_mov_b32 s76, 0")
        if s.instr == 4: A("s_mov_b32 s76, 0\ns_add_u32 s77, s40, 7000\ns_memrealtime s[74:75]\ns_waitcnt lgkmcnt(0)\ns_add_u32 s74, s74, 200\ns_mov_b32 s78, 0")
        A("s_nop 0")
        s.stamp(3)
        n0 = len(s.lines)
        for b in range(8): s.block(1, b, do_pv=False, first=True)
        if s.warm2: A("global_load_dword v39, v38, s[86:87]")
        s.lines = hazards.pad(s.lines)
        s.stamp(4)
        A(".p2align 6")
        A("L_loop:")
        n0 = len(s.lines)
        for b in range(8): s.block(0, b, last=(b == 7))
        A("s_cbranch_scc1 L_tail")
        n1 = len(s.lines)
        for b in range(8): s.block(1, b)
        body = s.lines[n0:]
        A("s_branch L_loop")
        A("L_tail:")
        n2 = len(s.lines)
        if s.peel:
            for eb in range(16): s.block(1 - (eb >> 3), eb & 7, eb=eb)
        s.stamp(5)
        assert s.sp and len(s.msum_qb) == 4
        def conv(n):
            qb, db = n & 3, n >> 2
            tb = vE + 6 * (n % 4)
            o = aO(qb, db)
            ops = ["v_accvgpr_read_b32 v%d, a%d" % (tb + i, o + i) for i in range(4)]
            ops += ["v_mul_f32 v%d, v%d, v%d" % (tb + i, tb + i, vT + qb) for i in range(4)]
            ops += ["v_cvt_pk_bf16_f32 v%d, v%d, v%d" % (tb + 4 + i, tb + 2 * i, tb + 2 * i + 1) for i in range(2)]
            return ops
        def owrite(n): return "ds_write_b64 v%d, %s offset:%d" % (vW + (n >> 2), R("v", vE + 6 * (n % 4) + 4, 2), (n & 3) * SLOT)
        def oread(h, qb, i):
            return "ds_read_b128 %s, v%d offset:%d" % (R("v", 128 + 32 * h + 8 * qb + 4 * i, 4), vOR, qb * SLOT + i * 2048 + ((h ^ i) * 128))
        def ostore(h, qb, i):
            return "buffer_store_dwordx4 %s, v%d, %s, s%d offen offset:%d %s" % (R("v", 128 + 32 * h + 8 * qb + 4 * i, 4), vOA, R("s", sO, 4), sQB + qb, i * 2048 + h * 128, s.st)
        def lfin(qb): return ["v_add_f32 v%d, v%d, v%d" % (vL(qb), vL(qb), vL(qb) + 1), "v_rcp_f32 v%d, v%d" % (vT + qb, vL(qb))]
        left = [s.sm_op(k, q, i, 1, 7) for g, k, q, i in sorted(s.sm_table(False)) if g >= 32]
        T = []
        m = s.msums(1, 0) + s.msums(1, 1) + s.msums(1, 2)
        for i, x in enumerate(m):
            T.append(x)
            if i == 0: T.append("s_mov_b32 s%d, %s" % (sT, f32(s.thr)))
            if i < len(left): T.append(left[i])
        sh = [[[] for k in range(4)] for n in range(32)]
        ds = [[[] for k in range(4)] for n in range(32)]
        va = [[[] for k in range(4)] for n in range(32)]
        for n in range(32):
            qb, db = n & 3, n >> 2
            if db < 7:
                for u in range(2): ds[n][2 * u].append(s.vread((db + 1) & 1, 2, db + 1, 2 * qb + u))
            if n >= 2:
                c = conv(n - 2)
                for k, (x, y) in enumerate(((0, 3), (3, 6), (6, 8), (8, 10))): va[n][k] += c[x:y]
            if n >= 3: ds[n][1].append(owrite(n - 3))
        sh[3][1].append("s_waitcnt vmcnt(2)")
        sh[5][1].append("s_waitcnt vmcnt(0)")
        for j, qb in enumerate((0, 1, 2)):
            x = lfin(qb); va[0 if j < 1 else 1][(2, 0, 2)[j]].append(x[0]); va[0 if j < 1 else 1][(3, 1, 3)[j]].append(x[1])
        x = lfin(3); va[3][2].append(x[0]); va[3][3].append(x[1])
        va[4][2].append("v_add_f32 v%d, v%d, v%d" % (vT + 5, vL(0), vL(1)))
        va[4][3].append("v_add_f32 v%d, v%d, v%d" % (vT + 6, vL(2), vL(3)))
        va[5][2].append("v_add_f32 v%d, v%d, v%d" % (vT + 5, vT + 5, vT + 6))
        va[5][3].append("v_cmp_nge_f32 vcc, s%d, v%d" % (sT, vT + 5))
        for j in range(8):
            ds[15 + j][3].append(oread(0, j >> 1, j & 1))
            ds[17 + j][2].append(ostore(0, j >> 1, j & 1))
        ds[31][2].append(oread(1, 0, 0)); ds[31][3].append(oread(1, 0, 1))
        for n in range(32):
            qb, db = n & 3, n >> 2
            for k in range(4):
                T.append(s.pv(db & 1, 1, qb, db, k))
                T += sh[n][k] + ds[n][k] + va[n][k]
            if n == 0: T += s.msums(1, 3)
            if s.tst and n in (3, 11, 19, 27, 31): T.append("s_memtime s[%d:%d]" % (48 + 2 * (3, 11, 19, 27, 31).index(n), 49 + 2 * (3, 11, 19, 27, 31).index(n)))
        T += [owrite(29), oread(1, 1, 0), oread(1, 1, 1)] + conv(30) + [ostore(1, 0, 0), ostore(1, 0, 1), owrite(30), oread(1, 2, 0), oread(1, 2, 1)]
        T += conv(31) + [ostore(1, 1, 0), ostore(1, 1, 1), owrite(31), oread(1, 3, 0), oread(1, 3, 1)]
        T += [ostore(1, 2, 0), ostore(1, 2, 1), ostore(1, 3, 0), ostore(1, 3, 1)]
        if s.newtail == 2: T = s.tail2()
        if s.newtail == 3: T = s.tail3()
        if s.nost: T = [x for x in T if not x.startswith("buffer_store")]
        for x in hazards.autowait(T): A(x)
        pre = s.lines[n0:n1]
        s.lines[n2:] = hazards.pad(pre + s.lines[n2:], start=len(pre))[len(pre):]
        s.stamp(6)
        if s.nodma or s.novalu or s.nolds: A("s_branch L_fin")
        A("s_cmp_lg_u32 s%d, 0\ns_cbranch_scc1 L_fin" % sPASS)
        A("s_cmp_lg_u64 vcc, 0\ns_cselect_b32 s%d, 1, 0" % sT)
        A("s_lshl_b32 s%d, s%d, 2\ns_add_u32 s%d, s%d, %d" % (sT + 1, sW, sT + 1, sT + 1, FLAG_OFF))
        A("v_mov_b32 v%d, s%d\nv_mov_b32 v%d, s%d\nv_mov_b32 v%d, %d" % (vT, sT, vT + 1, sT + 1, vT + 2, FLAG_OFF))
        A("ds_write_b32 v%d, v%d\ns_waitcnt lgkmcnt(0)\ns_barrier" % (vT + 1, vT))
        A("ds_read_b128 %s, v%d\ns_waitcnt lgkmcnt(0)" % (R("v", vT + 8, 4), vT + 2))
        A("v_or3_b32 v%d, v%d, v%d, v%d\nv_or_b32 v%d, v%d, v%d\ns_nop 1" % (vT, vT + 8, vT + 9, vT + 10, vT, vT, vT + 11))
        A("v_readfirstlane_b32 s%d, v%d\ns_nop 3\ns_cmp_eq_u32 s%d, 0\ns_cbranch_scc0 L_redo" % (sT, vT, sT))
        A("L_fin:")
        if s.dbg == -1:
            A("s_waitcnt vmcnt(0)")
            A("s_memrealtime s[42:43]\ns_memtime s[46:47]\ns_load_dwordx2 s[64:65], s[0:1], 32\ns_waitcnt lgkmcnt(0)")
            A("s_mov_b32 s68, s64\ns_mov_b32 s69, s65\ns_mov_b32 s70, 256\ns_mov_b32 s71, 0x20000")
            A("s_cmp_ge_u32 s2, 8\ns_cbranch_scc1 L_end\ns_cmp_lg_u32 s3, 0\ns_cbranch_scc1 L_end")
            A("s_lshl_b32 s36, s2, 2\nv_mov_b32 v3, s36\ns_mov_b64 exec, 1")
            A("s_sub_u32 s36, s42, s40\nv_mov_b32 v8, s36\ns_sub_u32 s36, s46, s44\nv_mov_b32 v9, s36")
            A("buffer_store_dword v8, v3, s[68:71], 0 offen\nbuffer_store_dword v9, v3, s[68:71], 0 offen offset:32")
        elif s.probe is not None:
            A("s_waitcnt vmcnt(0)")
            A("s_memrealtime s[42:43]\ns_memtime s[46:47]\ns_waitcnt lgkmcnt(0)")
            A("s_cmp_lg_u32 s2, %d\ns_cbranch_scc1 L_end" % s.probe[3])
            a, b, div = s.probe[:3]
            A("s_sub_u32 s36, s%d, s%d" % (a, b))
            if div == 10: A("s_mul_hi_u32 s36, s36, 429496730")
            if div == 0: A("s_mov_b32 s36, 0")
            if div == -1: A("s_mul_i32 s36, s36, 500")
            A("s_add_u32 s36, s36, 15000\ns_add_u32 s36, s36, s40")
            A("L_spin:\ns_sleep 4\ns_memrealtime s[42:43]\ns_waitcnt lgkmcnt(0)\ns_sub_u32 s37, s42, s36\ns_cmp_lt_i32 s37, 0\ns_cbranch_scc1 L_spin")
        elif s.stamps:
            A("s_waitcnt vmcnt(0)")
            A("s_memrealtime s[42:43]\ns_memtime s[46:47]\ns_getreg_b32 s62, hwreg(HW_REG_XCC_ID)\ns_mov_b32 s63, 0\ns_waitcnt lgkmcnt(0)")
            A("s_mov_b32 s68, s64\ns_mov_b32 s69, s65\ns_mov_b32 s70, 0x100000\ns_mov_b32 s71, 0x20000")
            A("s_lshl_b32 s37, s2, 2\ns_add_u32 s37, s37, s3\ns_mul_i32 s37, s37, 96\nv_mov_b32 v3, s37")
            if s.instr == 3:
                A("s_lshl_b32 s38, s2, 2\ns_add_u32 s38, s38, s3\ns_lshl_b32 s38, s38, 9\ns_add_u32 s38, s38, 0x20000\nv_lshlrev_b32 v4, 3, v0\nv_add_u32 v4, s38, v4")
                A("buffer_store_dwordx2 v[46:47], v4, s[68:71], 0 offen")
            for j, r in enumerate([40, 42, 44, 46] + list(range(48, 64, 2))):
                A("v_mov_b32 v8, s%d\nv_mov_b32 v9, s%d" % (r, r + 1))
                A("buffer_store_dwordx2 v[8:9], v3, s[68:71], 0 offen offset:%d" % (j * 8))
                A("s_nop 1")
        A("L_end:\ns_endpgm")
        A("L_redo:")
        A("s_mov_b32 s%d, 1\ns_mov_b32 s%d, 0" % (sPASS, sSOK))
        A("s_waitcnt vmcnt(0)")
        A("L_maxpass:")
        A("s_barrier")
        for x in group(True, 0): A(x)
        A("s_waitcnt vmcnt(0)\ns_barrier")
        for j in range(4):
            for t in range(4): A(s.kread(0, 0, j, t))
            A("s_waitcnt lgkmcnt(0)")
            for qb in range(4):
                for t in range(4): A(s.qk(0, qb, t, zero=True))
            A("s_nop 7")
            for qb in range(4):
                S = vS(qb)
                A("v_max3_f32 v%d, v%d, v%d, v%d" % (vM(qb), vM(qb), S, S + 1))
                A("v_max3_f32 v%d, v%d, v%d, v%d" % (vM(qb), vM(qb), S + 2, S + 3))
        A("s_cmp_lt_u32 s%d, 0x80000\ns_cbranch_scc1 L_maxpass" % sSOK)
        A("s_barrier\ns_branch L_start")
        A("L_last:")
        A('.section .rodata,"a"\n.p2align 6\n.amdhsa_kernel %s' % KN)
        A("  .amdhsa_next_free_vgpr 512\n  .amdhsa_next_free_sgpr 102\n  .amdhsa_accum_offset 256\n  .amdhsa_group_segment_fixed_size 0\n  .amdhsa_kernarg_size 48\n  .amdhsa_user_sgpr_count 2\n  .amdhsa_user_sgpr_kernarg_segment_ptr 1\n  .amdhsa_system_sgpr_workgroup_id_x 1\n  .amdhsa_float_denorm_mode_32 3\n.end_amdhsa_kernel")
        vb = not (s.nodma or s.novalu or s.nolds)
        errs = hazards.check(s.lines[:n2], "linear", vb) + hazards.check(body + body, "loop", vb) + hazards.check(s.lines[n0:n1] + s.lines[n2:], "tail", vb)
        return "\n".join(s.lines) + "\n", errs

def gen(name, **kw):
    txt, errs = Gen(**kw).build()
    open(name, "w").write(txt)
    return errs

if __name__ == "__main__":
    import ast
    name = sys.argv[1]
    kw = {}
    for a in sys.argv[2:]:
        k, v = a.split("=", 1)
        try: kw[k] = ast.literal_eval(v)
        except Exception: kw[k] = v
    e = gen(name, **kw)
    print(name, "hazards:", len(e))
```

```python
import sys, struct
import hazards

KN = "standalone__mha_softmax__near_ridge_kernel"
PITCH = 1056
SLOT = 16 * PITCH
VBASE = 4 * SLOT
FLAG_OFF = 8 * SLOT
LDS_BYTES = 8 * SLOT + 64
BIASB = 1888

def f32(x): return "0x%08x" % struct.unpack("<I", struct.pack("<f", x))[0]
def R(p, b, n): return "%s[%d:%d]" % (p, b, b + n - 1)

vDMA = 2
vK = 6
vV = 7
vQA = 8
vOA = 9
def vA(qb): return 12 + qb
def vM(qb): return 16 + qb
vT = 20
def vS(qb, st=0): return (100 if st else 48) + 4 * qb
def vNM(qb): return 64 + 4 * qb
vONE = 80
def vL(qb): return 84 + 4 * qb
vE = 100
vQR = 40
vW = 32
vOR = 44
vV2 = 33
vBP = 36
def vP(buf, qb, ks): return 128 + buf * 64 + qb * 16 + ks * 4
def aO(qb, db): return (qb * 8 + db) * 4
def aQ(qb, t): return 128 + (qb * 4 + t) * 4
def aK(buf, t): return 192 + buf * 16 + 4 * t
def aV(buf, ks): return 224 + buf * 16 + 4 * ks

sW = 3
sQ, sK, sV, sO = 4, 8, 12, 16
sSOK, sSOV = 20, 21
sWL = 22
sCNT = 23
sPASS = 32
sC = 34
sT = 36
sSEL = 84
vIDX = 45
sQB = 80
MF = "v_mfma_f32_16x16x32_bf16"

PATHS = {
    "row": [(q, k) for q in range(4) for k in range(4)],
    "rsn": [(q, 3 - k if q & 1 else k) for q in range(4) for k in range(4)],
    "rsr": [(3 - q, 3 - k if q & 1 else k) for q in range(4) for k in range(4)],
    "col": [(q, k) for k in range(4) for q in range(4)],
    "csn": [(3 - q if k & 1 else q, k) for k in range(4) for q in range(4)],
    "hil": [(0,0),(0,1),(1,1),(1,0),(2,0),(3,0),(3,1),(2,1),(2,2),(3,2),(3,3),(2,3),(1,3),(1,2),(0,2),(0,3)],
    "zig": [(0,0),(0,1),(1,1),(1,0),(2,0),(2,1),(3,1),(3,0),(3,2),(3,3),(2,3),(2,2),(1,2),(1,3),(0,3),(0,2)],
    "zg2": [(0,0),(1,0),(1,1),(0,1),(0,2),(1,2),(1,3),(0,3),(2,3),(3,3),(3,2),(2,2),(2,1),(3,1),(3,0),(2,0)],
}

class Gen:
    def __init__(s, ld="nt", qld="nt", st="nt", stamps=0, bias=10.0, thr=2.0 ** 40, summode="sp", nodma=0, nobar=0, novalu=0, nolds=0,
                 warm=1, instr=0, probe=None, dbg=None, dmagaps=None, pad=0, otlb=8, ones4=1, prepass=1, mspos=23, nfirst=12, nsecond=16, hmap=0, lim=0, lim1=0, padn=0, perm=0, smpl=1, lim2=0, share=(), latev=0, pre0=0, pre1=0, pre2=0, lin=1, dist=0, s0=-1, npre=None, fcnt=None, vtlb=0, newtail=1, nq=(4, 4, 4, 4), rot=0, tst=0, nost=0, pst=0, pvswap=0, qkswap=0, order=0, snake=0, qo=None, po=None, sdb=0, off=0, qseq=(0, 1, 2, 3), ones1=0, tb=3, tlat=5, wpos=(2, 3), tnv=2, operm=0, w128=0, clag=2, tord=0, vlat=4, cst=2, tad=0, f7=2, lim7=0, sfrom=0, sprio=0, peel=0, ecnt=None, edist=8, warm2=0, dg3=None, dg4=None, dist2=0, fast0=0, amap=None, wx=()):
        s.__dict__.update(locals())
        s.lines = []
        s.msum_qb = {"mfma": (0, 1, 2, 3), "hybrid": (0, 2), "valu": (), "sp": (0, 1, 2, 3), "sphy": (0, 2)}[summode]
        s.sp = summode.startswith("sp")
        s.dmagaps = {1: (24,), 2: (24, 28), 3: (24, 26, 28), 4: (24, 26, 28, 30)}
        if dmagaps: s.dmagaps[len(dmagaps)] = dmagaps
        if dg3: s.dmagaps[3] = dg3
        if dg4: s.dmagaps[4] = dg4
        s.vm1 = 2 * (3 - s0)
        s.vm2 = 2 * (7 - s0) - 12
        if npre is None: s.npre = -2 * s0
        if fcnt is None:
            rest = 2 * (8 - s0) - f7 - s.npre
            s.fcnt = [rest // 7 + (1 if i < rest % 7 else 0) for i in range(7)]
        assert sum(s.fcnt) + s.npre + f7 == 2 * (8 - s0) and max(s.fcnt) <= 4
        if peel:
            if ecnt is None: s.ecnt = ([2] * (12 + s0) + [0] * 16)[:16]
            assert sum(s.ecnt) == 24 + 2 * s0
            ev = [(32 * b + g, 2 * (b - s0) + i) for b in range(-4, 0) for i, g in enumerate(s.dmagaps[2])]
            p = -2 * s0
            for b in range(16):
                for g in (s.dmagaps[s.ecnt[b]] if s.ecnt[b] else ()):
                    assert b >= {4: 3, 5: 7}.get(p >> 2, -1)
                    ev.append((32 * b + g, p)); p += 1
            s.ev = ev
        s.tmask = 0
        if amap and (len(amap) == 11 or wx):
            global BIASB
            BIASB = 3 * PITCH
            if len(amap) == 6: s.amap = amap = tuple(amap) + (14, 15, 16, 17, 18)
            assert sorted(amap) == list(range(8, 19)) and list(amap[6:]) == sorted(amap[6:]) and fast0
            s.tmask = sum(1 << b for b in amap[6:])
        s.add_qb = tuple(q for q in range(4) if q not in s.msum_qb)
    def A(s, x): s.lines.append(x)

    def m0set(s, lds_off): return "s_add_u32 m0, s%d, %d" % (sWL, lds_off)
    def dma(s, isK, i):
        return "buffer_load_dwordx4 v%d, %s, s%d offen offset:%d %s lds" % (vDMA + i, R("s", sK if isK else sV, 4), sSOK if isK else sSOV, i * PITCH, s.ld)
    def adv(s, isK):
        so = sSOK if isK else sSOV
        if s.tmask: return "s_sub_u32 s%d, s%d, s92\ns_and_b32 s%d, s%d, s92" % (so, so, so, so)
        if s.rot: return "s_add_u32 s%d, s%d, 0x4000\ns_and_b32 s%d, s%d, 0x7ffff" % (so, so, so, so)
        return "s_add_u32 s%d, s%d, 0x4000" % (so, so)
    def kread(s, buf, slot, j, t):
        return "ds_read_b128 %s, v%d offset:%d" % (R("a", aK(buf, t), 4), vK, slot * SLOT + j * 256 + t * 64)
    def vread(s, buf, slot0, db, r, va=vV):
        ks, u = r >> 1, r & 1
        return "ds_read_b64_tr_b16 %s, v%d offset:%d" % (R("a", aV(buf, ks) + 2 * u, 2), va, (slot0 + (ks >> 1)) * SLOT + (2 * (ks & 1) + u) * 256 + db * 32)
    def qk(s, buf, qb, t, zero=False, rev=False, start=None):
        st = buf if s.sdb and not zero else 0
        if start is None: start = t == 0
        c = R("v", vS(qb, st), 4) if not start else ("0" if zero else R("v", vNM(qb), 4))
        if rev: t = 3 - t
        if s.qkswap: return "%s %s, %s, %s, %s" % (MF, R("v", vS(qb, st), 4), R("a", aQ(qb, t), 4), R("a", aK(buf, t), 4), c)
        return "%s %s, %s, %s, %s" % (MF, R("v", vS(qb, st), 4), R("a", aK(buf, t), 4), R("a", aQ(qb, t), 4), c)
    def pv(s, buf, pbuf, qb, db, ks):
        o = R("a", aO(qb, db), 4)
        if s.pvswap: return "%s %s, %s, %s, %s" % (MF, o, R("v", vP(pbuf, qb, ks), 4), R("a", aV(buf, ks), 4), o)
        return "%s %s, %s, %s, %s" % (MF, o, R("a", aV(buf, ks), 4), R("v", vP(pbuf, qb, ks), 4), o)
    def msum(s, pbuf, qb, ks):
        o = R("v", vL(qb), 4)
        return "%s %s, %s, %s, %s" % (MF, o, R("v", vONE, 4), R("v", vP(pbuf, qb, ks), 4), o)

    def msums(s, pbuf, qb):
        if not s.sp: return [s.msum(pbuf, qb, ks) for ks in range(4)]
        return ["v_smfmac_f32_16x16x64_bf16 %s, %s, %s, v%d" % (R("v", vL(qb), 4), R("v", vONE, 4), R("v", vP(pbuf, qb, 2 * h), 8), vIDX) for h in range(2)]

    def sm_table(s, first=False):
        t = []
        if first:
            for qb in range(4):
                for e in range(4):
                    t.append((4 * qb + 6 + e, "exp", qb, e))
                    if qb in s.add_qb: t.append((4 * qb + 7 + e, "add", qb, e))
                for h in range(2): t.append((4 * qb + 8 + 2 * h, "cvt", qb, h))
        else:
            addslot = {1: (16, 20, 26, 30), 3: (32, 36, 40, 44), 0: (10, 14, 18, 22), 2: (26, 30, 34, 38)}
            for j, qb in enumerate(s.qseq):
                for e in range(4): t.append((s.off + 8 * j + 7 + 2 * e, "exp", qb, e))
                for h in range(2): t.append((s.off + 8 * j + 10 + 4 * h, "cvt", qb, h))
            for qb in s.add_qb:
                for e in range(4): t.append((addslot[qb][e], "add", qb, e))
        return t
    def sm_op(s, kind, qb, i, wbuf, bb):
        S = vS(qb, bb & 1 if s.sdb else 0)
        if kind == "exp": return "v_exp_f32 v%d, v%d" % (S + i, S + i)
        if kind == "add": return "v_add_f32 v%d, v%d, v%d" % (vA(qb), vA(qb), S + i)
        d = vP(wbuf, qb, bb >> 1) + 2 * (bb & 1) + i
        if s.perm: return "v_perm_b32 v%d, v%d, v%d, s%d" % (d, S + 2 * i + 1, S + 2 * i, sSEL)
        return "v_cvt_pk_bf16_f32 v%d, v%d, v%d" % (d, S + 2 * i, S + 2 * i + 1)

    def seq(s, p, par):
        grp, piece, pp = (p % 16) >> 2, p & 3, (par + p // 16) & 1
        isK = grp in (0, 3)
        slot = (2 * pp + (4, 2, 3, 5)[grp]) & 3
        return (isK, slot * SLOT + (0 if isK else VBASE), piece)
    def dma_plan(s, par, b, first=False):
        if first:
            p0 = s.npre + sum(s.fcnt[:b])
            return [s.seq(p, par) for p in range(p0, p0 + (s.fcnt[b] if b < 7 else s.f7))]
        return [s.seq(2 * (b - s.s0) + i, par) for i in range(2)]

    def eseq(s, p):
        if p < 16: return s.seq(p, 1)
        return (False, ((p >> 2) - 4) * SLOT, p & 3)
    def after(s, pos, p):
        return sum(1 for g, q in s.ev if g <= pos and q > p)

    def block(s, par, b, do_qk=True, do_pv=True, first=False, last=False, extra=None, eb=None):
        n = 16 if first else 32
        sh = [[] for _ in range(n)]
        mem = [[] for _ in range(n)]
        va = [[] for _ in range(n)]
        flush = []
        if not s.novalu:
            tab = s.sm_table(first)
            if (do_qk or b == 0) and not (first and b == 0):
                pp = par if b else par ^ 1
                for g, kind, qb, i in tab:
                    if g >= n: va[g - n].append(s.sm_op(kind, qb, i, pp ^ 1, (b - 1) & 7))
            if do_qk:
                for g, kind, qb, i in tab:
                    if g < n: va[g].append(s.sm_op(kind, qb, i, par ^ 1, b))
                if first and b == 7:
                    keep = set((k, q, i) for g, k, q, i in s.sm_table(False) if g >= 32)
                    for g, kind, qb, i in sorted(tab):
                        if g >= n and (kind, qb, i) not in keep: flush.append(s.sm_op(kind, qb, i, par ^ 1, b))
        buf = b & 1
        nb = (b + 1) & 7
        npar = par if b < 7 else par ^ 1
        plan = s.dma_plan(par, b, first) if do_qk else []
        if eb is not None: plan = [s.eseq(q) for g, q in s.ev if g >> 5 == eb]
        gaps = s.dmagaps[len(plan)] if plan else ()
        if first: gaps = {0: (), 1: (5,), 2: (3, 11), 3: (1, 7, 13), 4: (1, 5, 9, 13)}[len(plan)]
        if first: dsg = [0, 2, 4, 6] + list(range(8, 16))
        else: dsg = [g for g in range(0, 32, 2) if g not in gaps or g in s.share]
        if do_qk:
            kslot = (2 if npar == 0 else 0) + (nb >> 2)
            for t in range(4):
                if not s.nolds and eb != 15: mem[dsg[t]].append(s.kread(buf ^ 1, kslot, nb & 3, t))
        if (do_pv and (do_qk or b < 7)) or (b == 7 and do_qk):
            for r in range(8):
                if not s.nolds: mem[dsg[4 + r]].append(s.vread(buf ^ 1, 0 if npar == 0 or eb == 15 else 2, nb, r, vV2 if eb == 15 else vV))
        if do_qk:
            for (isK, off, piece), g in zip(plan, gaps):
                if not s.nodma:
                    if piece == 0 or g == gaps[0] and s.instr == 3: sh[g - 1].append(s.m0set(off))
                    if first and s.lim1: mem[g].append("s_waitcnt vmcnt(%d)" % ((s.lim7 if b == 7 and s.lim7 else s.lim1) - 1))
                    if not first and s.lim2: sh[g].append("s_waitcnt vmcnt(%d)" % (s.lim2 - 1))
                    mem[g].append(s.dma(isK, piece))
                if piece == 3: sh[g + 1].append(s.adv(isK))
            if eb is not None:
                lastp = {}
                for g, q in s.ev: lastp[g if s.dist2 else g >> 5] = (g, q)
                for bb, (g, q) in lastp.items():
                    x = g + s.dist
                    if s.dist and x >> 5 == eb and eb < s.edist: sh[x & 31].append("s_waitcnt vmcnt(%d)" % s.after(x - 1, q))
            elif s.dist and not first:
                for g2 in (gaps if s.dist2 else gaps[-1:]):
                    x = (g2 + s.dist) % 32
                    cnt = sum(1 for k in range(1, s.dist) if (g2 + k) % 32 in gaps)
                    sh[x].append("s_waitcnt vmcnt(%d)" % cnt)
            if eb in (2, 6, 10, 14):
                w = "s_waitcnt vmcnt(%d) lgkmcnt(0)" % s.after(32 * eb + 31, {2: -1, 6: 11, 10: 15, 14: 23}[eb])
            elif b in (2, 6):
                w = "s_waitcnt vmcnt(%d) lgkmcnt(0)" % ((s.npre + sum(s.fcnt[:3]) if first else s.vm1) if b == 2 else s.vm2 - (s.f7 - 2 if first else 0))
            elif s.latev and not first and b != 7:
                w = "s_waitcnt lgkmcnt(8)"
            else:
                w = "s_waitcnt lgkmcnt(0)"
            if s.latev and not first and b not in (0, 3, 7):
                lv = 15 if s.qo else 3
                sh[lv].append("s_waitcnt lgkmcnt(%d)" % sum(1 for g in dsg[:12] if g < lv))
            if first and b == 6 and s.pre2:
                n0 = len(s.lines); s.dummy(s.pre2); flush += s.lines[n0:]; del s.lines[n0:]
            if flush: flush.append(w)
            else: sh[n - 1].append(w)
            if b in (3, 7):
                if not s.nobar: sh[0].insert(0, "s_barrier")
                if s.instr == 3:
                    sh[0].insert(1, "s_memrealtime s[72:73]\ns_memtime s[74:75]\ns_waitcnt lgkmcnt(0)\ns_mov_b32 m0, s76\ns_nop 1\nv_writelane_b32 v46, s72, m0\nv_writelane_b32 v47, s74, m0\ns_add_u32 s76, s76, 1")
        else:
            sh[n - 1].append("s_waitcnt lgkmcnt(0)")
        if s.instr == 4 and do_qk:
            if b == 7: sh[1].append("s_memrealtime s[72:73]")
            if b == 0 and not first:
                sh[1].append("s_sub_u32 s75, s72, s74")
                sh[2].append("s_mov_b32 s74, s72")
                sh[4].append("s_cmp_gt_i32 s75, 310\ns_cselect_b32 s75, 1, 0\ns_cselect_b32 s79, s72, s77")
                sh[5].append("s_add_u32 s76, s76, s75")
                sh[6].append("s_min_u32 s77, s77, s79")
        if last:
            sh[31 if any("s_add" in x for x in sh[31]) else 30].append("s_sub_u32 s%d, s%d, 1" % (sCNT, sCNT))
        ms = None
        if do_pv and do_qk and s.msum_qb:
            place = {4: {1: 0, 3: 1, 5: 2, 7: 3}, 2: {1: 0, 5: 1}}[len(s.msum_qb)]
            if b in place: ms = s.msums(par, s.msum_qb[place[b]])
            if s.smpl == 2 and len(s.msum_qb) == 4:
                x = s.msums(par, b >> 1); k = len(x) // 2
                ms = x[k * (b & 1): k * (b & 1) + k]
        for pos in range(n):
            m = None
            if first: m = s.qk(buf, pos >> 2, pos & 3, rev=s.qo == "rsn" and pos & 4)
            else:
                ch, k = pos >> 2, pos & 3
                isq, qb = [((1, 0), (0, 0), (1, 1), (0, 1), (1, 2), (0, 2), (1, 3), (0, 3)),
                           ((1, 0), (1, 1), (1, 2), (1, 3), (0, 0), (0, 1), (0, 2), (0, 3)),
                           ((1, 0), (1, 1), (0, 0), (0, 1), (1, 2), (1, 3), (0, 2), (0, 3))][s.order][ch]
                rev = s.snake and (qb & 1)
                if s.qo:
                    path = PATHS[s.qo if pos < 16 else s.po]
                    qb, k = path[pos & 15]
                    if pos < 16: m = s.qk(buf, qb, k, start=all(q != qb for q, _ in path[:pos]))
                    else: m = s.pv(buf, par, qb, b, k)
                elif isq:
                    if do_qk: m = s.qk(buf, qb, k, rev=rev)
                elif do_pv: m = s.pv(buf, par, qb, b, 3 - k if rev else k)
            if m: s.A(m)
            for o in sh[pos] + mem[pos] + va[pos]: s.A(o)
            if extra:
                for o in extra(pos): s.A(o)
            if s.pad and m: s.A("s_nop %d" % (s.pad - 1))
            if s.padn and not first and do_qk and (pos & 1) and (pos >> 1) % (16 // s.padn) == 0: s.A("s_nop 0")
            if ms is not None and pos == s.mspos:
                for x in ms: s.A(x)
        for o in flush: s.A(o)

    def tail2(s):
        assert s.pvswap and s.sp
        chains = [(qb, 0) for qb in range(4)] + [(qb, db) for qb in range(4) for db in (1, 2, 3)] + [(qb, db) for qb in range(4) for db in (4, 5, 6, 7)]
        vset = [("a", aV(0, 0)), ("a", aV(1, 0)), ("a", aK(0, 0)), ("a", aK(1, 0)), ("a", aV(0, 0)), ("v", 128), ("v", 144), ("v", 160)]
        reg = (0, 3, 1, 2)
        RB = (176, 184, 64, 72)
        RI = vE
        def mf(n, k):
            qb, db = chains[n]
            ks = 3 - k if n & 1 else k
            o = R("a", aO(qb, db), 4)
            return "%s %s, %s, %s, %s" % (MF, o, R("v", vP(1, qb, ks), 4), R(vset[db][0], vset[db][1] + 4 * ks, 4), o)
        def vrd(db, r):
            ks, u = r >> 1, r & 1
            return "ds_read_b64_tr_b16 %s, v%d offset:%d" % (R(vset[db][0], vset[db][1] + 4 * ks + 2 * u, 2), vV, (2 + (ks >> 1)) * SLOT + (2 * (ks & 1) + u) * 256 + db * 32)
        def wr(n, p):
            qb, db = chains[n]
            o = aO(qb, db) + 2 * p
            b = reg[qb] * (SLOT // 256) + 2 * p
            return "ds_write2st64_b32 v%d, a%d, a%d offset0:%d offset1:%d" % (vW + (db & 3), o, o + 1, b, b + 1)
        units = [(qb, h, i) for h in range(2) for qb in range(4) for i in range(2)]
        def rd(u, x):
            qb, h, i = units[u]
            return "ds_read_b128 %s, v%d offset:%d" % (R("v", RB[u % 4] + 4 * x, 4), (vOR, vBP + 1)[x], reg[qb] * SLOT + i * 512)
        def fin(u):
            qb, h, i = units[u]
            b = RB[u % 4]
            ops = []
            for j in range(4):
                ops += ["v_mul_f32 v%d, v%d, v%d" % (b + 2 * j + x, b + 2 * j + x, RI + 2 * qb + i) for x in range(2)]
                if j: ops.append("v_cvt_pk_bf16_f32 v%d, v%d, v%d" % (b + j - 1, b + 2 * j - 2, b + 2 * j - 1))
            ops.append("v_cvt_pk_bf16_f32 v%d, v%d, v%d" % (b + 3, b + 6, b + 7))
            ops.append("buffer_store_dwordx4 %s, v%d, %s, s%d offen offset:%d %s" % (R("v", b, 4), vOA, R("s", sO, 4), sQB + qb, i * 512 + h * 128, s.st))
            return ops
        M = [("s", x) for x in s.msums(1, 0) + s.msums(1, 1) + s.msums(1, 2)]
        for n in range(32):
            M += [((n, k), mf(n, k)) for k in range(4)]
            if n == 0: M += [("s", x) for x in s.msums(1, 3)]
        at = {t: g for g, (t, x) in enumerate(M) if t != "s"}
        NG = len(M)
        fixed = [[] for _ in range(NG + 8)]
        scal = [[] for _ in range(NG + 8)]
        left = [s.sm_op(k, q, i, 1, 7) for g, k, q, i in sorted(s.sm_table(False)) if g >= 32]
        for i, x in enumerate(left): fixed[i].append(x)
        scal[0].append("s_mov_b32 s%d, %s" % (sT, f32(s.thr)))
        wdone = {}
        for n in range(32):
            for p in range(2):
                g = at[(n + 1, s.wpos[p])] if n < 31 else NG
                fixed[g].append(wr(n, p)); wdone[n] = g
        scal[at[(3, s.wpos[0])]].append("s_waitcnt vmcnt(%d)" % (-2 * s.s0))
        scal[at[(4, s.wpos[0])]].append("s_waitcnt vmcnt(%d)" % max(0, -2 * s.s0 - 4))
        avail = [wdone[max(n for n in range(32) if chains[n][0] == qb and chains[n][1] >> 2 == h)] for qb, h, i in units]
        vq = []
        for db in range(1, 8):
            first = min(n for n in range(32) if chains[n][1] == db)
            order = range(8) if not first & 1 else (6, 7, 4, 5, 2, 3, 0, 1)
            vq += [(at[(3, 3)] if db == 4 else 0, vrd(db, r)) for r in order]
        misc = []
        for qb in range(4):
            e = (8, 10, 12, at[(2, 0)])[qb]
            misc += [(e, "v_add_f32 v%d, v%d, v%d" % (vL(qb), vL(qb), vL(qb) + 1)), (e + 1, "v_rcp_f32 v%d, v%d" % (vT + qb, vL(qb)))]
        for qb in range(4):
            misc += [(0, "ds_bpermute_b32 v%d, v%d, v%d offset:%d" % (RI + 2 * qb + i, vBP, vT + qb, 8 * i)) for i in range(2)]
        misc += [(0, "v_add_f32 v%d, v%d, v%d" % (vT + 5, vL(0), vL(1))), (0, "v_add_f32 v%d, v%d, v%d" % (vT + 6, vL(2), vL(3))),
                 (0, "v_add_f32 v%d, v%d, v%d" % (vT + 5, vT + 5, vT + 6)), (0, "v_cmp_nge_f32 vcc, s%d, v%d" % (sT, vT + 5))]
        T = []
        nrd = 0; rdat = {}; cur = 0; ops = fin(0); lastst = {}
        cost = lambda x: 2 if x.startswith(("v_exp", "v_rcp")) else 1
        for g in range(NG + 1):
            if g < NG: T.append(M[g][1])
            T += scal[g] + fixed[g]
            used = sum(cost(x) for x in fixed[g])
            budget = s.tb if g < NG else 1000
            nv = 0
            while used < budget:
                u = nrd >> 1
                if u < 16 and avail[u] <= g and (u < 4 or lastst.get(u - 4, 1000) < g or g == NG and cur > u - 4):
                    T.append(rd(u, nrd & 1)); rdat[u] = g; nrd += 1
                elif misc and misc[0][0] <= g and (nv or not vq or len(vq) < 36):
                    x = misc.pop(0)[1]; T.append(x); used += cost(x) - 1
                elif any(e <= g for e, x in vq) and nv < s.tnv:
                    T.append(vq.pop([e <= g for e, x in vq].index(True))[1]); nv += 1
                elif cur < 16 and nrd >= 2 * cur + 2 and (rdat[cur] + s.tlat <= g or g == NG) and not misc:
                    T.append(ops.pop(0))
                    if not ops:
                        lastst[cur] = g; cur += 1
                        if cur < 16: ops = fin(cur)
                else: break
                used += 1
            if s.tst and g < NG and M[g][0] in [(n, 3) for n in (3, 11, 19, 27, 31)]:
                j = (3, 11, 19, 27, 31).index(M[g][0][0])
                T.append("s_memtime s[%d:%d]" % (48 + 2 * j, 49 + 2 * j))
        assert cur == 16 and not vq and not misc
        for qb in range(4):
            assert T.index(rd(2 * qb + 1, 1)) < T.index(wr(16 + 4 * qb, 0))
        return T

    def tail3(s):
        assert s.pvswap and s.sp and not s.ones1
        if s.tord == 0: chains = [(qb, 0) for qb in range(4)] + [(qb, db) for qb in range(4) for db in (1, 2, 3)]
        else: chains = [(qb, db) for db in (0, 1) for qb in range(4)] + [(qb, db) for qb in range(4) for db in (2, 3)]
        chains += [(qb, db) for qb in range(4) for db in (4, 5, 6, 7)]
        vset = [("a", aV(0, 0)), ("a", aV(1, 0)), ("a", aK(0, 0)), ("a", aK(1, 0)), ("a", aV(0, 0)), ("v", 128), ("v", 144), ("v", 160)]
        reg = (0, 3, 1, 2)
        def lo(qb, h): return (2 + (qb >> 1)) * SLOT + (qb & 1) * 2048 if s.peel else reg[qb] * SLOT + h * 2048
        X = (64, 72)
        W = (176, 184, 100, 108)
        def mf(n, k):
            qb, db = chains[n]
            ks = 3 - k if n & 1 else k
            o = R("a", aO(qb, db), 4)
            return "%s %s, %s, %s, %s" % (MF, o, R("v", vP(1, qb, ks), 4), R(vset[db][0], vset[db][1] + 4 * ks, 4), o)
        def vrd(db, r):
            ks, u = r >> 1, r & 1
            return "ds_read_b64_tr_b16 %s, v%d offset:%d" % (R(vset[db][0], vset[db][1] + 4 * ks + 2 * u, 2), vV2 if s.peel else vV, ((0 if s.peel else 2) + (ks >> 1)) * SLOT + (2 * (ks & 1) + u) * 256 + db * 32)
        M = [("s", x) for x in s.msums(1, 0) + s.msums(1, 1) + s.msums(1, 2)]
        for n in range(32):
            M += [((n, k), mf(n, k)) for k in range(4)]
            if n == 0: M += [("s", x) for x in s.msums(1, 3)]
        at = {t: g for g, (t, x) in enumerate(M) if t != "s"}
        NG = len(M)
        fixed = [[] for _ in range(NG + 1)]
        scal = [[] for _ in range(NG + 1)]
        left = [s.sm_op(k, q, i, 1, 7) for g, k, q, i in sorted(s.sm_table(False)) if g >= 32]
        for i, x in enumerate(left): fixed[i].append(x)
        scal[0].append("s_mov_b32 s%d, %s" % (sT, f32(s.thr)))
        rinv = {}
        for qb in range(4):
            e = (6, 8, 10, at[(2, 0)])[qb]
            fixed[e].append("v_add_f32 v%d, v%d, v%d" % (vL(qb), vL(qb), vL(qb) + 1))
            fixed[e + 1].append("v_rcp_f32 v%d, v%d" % (vT + qb, vL(qb)))
            for gq in range(1, 4):
                fixed[e + 1 + 2 * gq].append("v_mov_b32_dpp v%d, v%d row_shl:%d row_mask:0x%x bank_mask:0xf" % (vT + qb, vT + qb, 4 * gq, 1 << gq))
            rinv[qb] = e + 9
        e = at[(3, 0)]
        fixed[e] += ["v_add_f32 v%d, v%d, v%d" % (vT + 5, vL(0), vL(1)), "v_add_f32 v%d, v%d, v%d" % (vT + 6, vL(2), vL(3))]
        fixed[e + 1].append("v_add_f32 v%d, v%d, v%d" % (vT + 5, vT + 5, vT + 6))
        fixed[e + 2].append("v_cmp_nge_f32 vcc, s%d, v%d" % (sT, vT + 5))
        if not s.peel: scal[at[(5, 0)]].append("s_waitcnt vmcnt(%d)" % max(0, -2 * s.s0 - 4))
        vq = []
        for db in range(1, 8):
            first = min(n for n in range(32) if chains[n][1] == db)
            order = range(8) if not first & 1 else (6, 7, 4, 5, 2, 3, 0, 1)
            vq += [(at[(3, 3)] + 1 if db == 4 else 0, at[(first, j >> 1)], vrd(db, r)) for j, r in enumerate(order)]
        groups = [(qb, h) for h in range(2) for qb in range(4)]
        units = []
        for gi, (qb, h) in enumerate(groups):
            for p in range(2): units.append((max(chains.index((qb, 4 * h + 2 * p + e2)) for e2 in range(2)), gi, p))
        units.sort()
        cq = []
        for ui, (_, gi, p) in enumerate(units):
            qb, h = groups[gi]
            w = W[gi & 3]
            for e2 in range(2):
                db = 4 * h + 2 * p + e2
                rdy = max(at[(chains.index((qb, db)), 3)] + 1 + s.clag, rinv[qb])
                x = X[ui & 1] + 4 * e2
                cq += [(rdy, "v_accvgpr_read_b32 v%d, a%d" % (x + r, aO(qb, db) + r), []) for r in range(4)]
                cq += [(rdy, "v_mul_f32_dpp v%d, v%d, v%d row_newbcast:%d row_mask:0xf bank_mask:0xf" % (x + r, vT + qb, x + r, r), []) for r in range(4)]
            for r in range(4):
                rel = []
                if p:
                    rel.append(("w", "ds_write_b64 v%d, %s offset:%d" % (vW, R("v", w + 2 * r, 2), lo(qb, h) + r * 128), None))
                    if r & 1:
                        i = r >> 1
                        rel += [("r", "ds_read_b64_tr_b16 %s, v%d offset:%d" % (R("a", aO(qb, 4 * h) + 4 * i + 2 * x, 2), (vOR, vBP + 1)[x], lo(qb, h) + i * 256), (gi, i) if x else None) for x in range(2)]
                cq.append((rdy, "v_cvt_pk_bf16_f32 v%d, v%d, v%d" % (w + 2 * r + p, X[ui & 1] + r, X[ui & 1] + 4 + r), rel))
        def st(gi, i):
            qb, h = groups[gi]
            return "buffer_store_dwordx4 %s, v%d, %s, s%d offen offset:%d %s" % (R("a", aO(qb, 4 * h) + 4 * i, 4), vOA, R("s", sO, 4), sQB + qb, i * 512 + h * 128, s.st)
        T = []; sq = []; oq = []
        cost = lambda x: 2 if x.startswith(("v_exp", "v_rcp")) else 1
        def popo(g):
            k, o, tag = oq.pop(0); T.append(o)
            if tag: sq.append((g + s.tlat, st(*tag)))
            return k
        for g in range(NG):
            T.append(M[g][1])
            T += scal[g]
            used = 0
            ok = [e <= g for e, d, x in vq]
            need = max([j + 1 - (d - s.vlat - g) for j, (e, d, x) in enumerate(vq)] + [0])
            if any(ok) and need >= 1:
                for _ in range(min(2, need)):
                    ok = [e <= g for e, d, x in vq]
                    if any(ok): T.append(vq.pop(ok.index(True))[2]); used += 1
            elif sq and sq[0][0] <= g and g >= s.sfrom and not (oq and s.sfrom and g < NG - s.sprio): T.append(sq.pop(0)[1]); used += s.cst
            elif oq:
                k = popo(g); used += 3 if k == "w" else 1
                if k == "r" and oq and oq[0][0] == "r": popo(g); used += 1
            elif any(ok):
                T.append(vq.pop(ok.index(True))[2]); used += 1
                ok = [e <= g for e, d, x in vq]
                if any(ok) and not fixed[g] and not (cq and cq[0][0] <= g): T.append(vq.pop(ok.index(True))[2]); used += 1
            T += fixed[g]
            used += sum(cost(x) for x in fixed[g])
            budget = s.tb[g % len(s.tb)] if isinstance(s.tb, tuple) else s.tb
            if s.tad:
                nr = next((j for j, x in enumerate(cq) if x[0] > g), len(cq))
                nx = cq[nr][0] - g if nr < len(cq) else NG - g
                budget = max(2, min(s.tb, used + -(-nr // max(1, min(nx + s.tad - 1, NG - g)))))
            while used < budget and cq and cq[0][0] <= g:
                e, o, rel = cq.pop(0); T.append(o); oq += rel; used += 1
            if s.tst and M[g][0] in [(n, 3) for n in (3, 11, 19, 27, 31)]:
                j = (3, 11, 19, 27, 31).index(M[g][0][0])
                T.append("s_memtime s[%d:%d]" % (48 + 2 * j, 49 + 2 * j))
        while oq: popo(NG)
        for e, o, rel in cq: T.append(o); oq += rel
        oq.sort(key=lambda x: x[0] == "r")
        while oq: popo(NG)
        T += [x for g, x in sq]
        assert not vq
        for db in range(1, 8):
            n = min(n for n in range(32) if chains[n][1] == db)
            assert max(T.index(vrd(db, r)) for r in range(8)) < T.index(mf(n, 3))
        wrs = [k for k, x in enumerate(T) if x.startswith("ds_write_b64")]
        cvs = [k for k, x in enumerate(T) if x.startswith("v_cvt_pk")]
        for gi in range(4): assert wrs[4 * gi + 3] < min(k for k in cvs if T[k].split()[1] == "v%d," % W[gi] and k > wrs[4 * gi])
        return T

    def dummy(s, n):
        for i in range(n):
            s.A("%s v[120:123], v[%d:%d], v[%d:%d], %s" % (MF, 104 + 4 * (i & 1), 107 + 4 * (i & 1), 112 + 4 * ((i >> 1) & 1), 115 + 4 * ((i >> 1) & 1), "v[120:123]" if i & 3 else "0"))
    def stamp(s, idx, force=False):
        if s.tst and idx < 5: return
        if s.pst and not force: return
        if s.stamps: s.A("%s s[%d:%d]" % ("s_memrealtime" if s.stamps == 2 else "s_memtime", 48 + 2 * idx, 49 + 2 * idx))

    def build(s):
        A = s.A
        A("; @launch grid=(256,1,1) block=(256,1,1) lds=%d" % LDS_BYTES)
        A('.amdgcn_target "amdgcn-amd-amdhsa--gfx950"')
        A(".text")
        A(".globl %s\n.p2align 8\n.type %s,@function\n%s:" % (KN, KN, KN))
        A("s_cmp_ge_u32 s2, 256\ns_cbranch_scc1 L_end")
        if s.stamps: A("s_memrealtime s[40:41]\ns_memtime s[44:45]")
        A("s_load_dwordx4 s[24:27], s[0:1], 0\ns_load_dwordx4 s[28:31], s[0:1], 16")
        if s.stamps: A("s_load_dwordx2 s[64:65], s[0:1], 40")
        if s.warm:
            A("s_getpc_b64 s[36:37]\nL_pc:")
            if s.warm2:
                A("v_lshlrev_b32 v1, 6, v0\nglobal_load_dword v11, v1, s[36:37]")
                A("v_lshlrev_b32 v38, 6, v0\nv_add_u32 v38, 16384, v38\nv_min_u32 v38, L_end-L_pc, v38\ns_mov_b64 s[86:87], s[36:37]")
            else:
                A("v_lshlrev_b32 v1, 7, v0\nv_min_u32 v1, L_end-L_pc, v1\nglobal_load_dword v11, v1, s[36:37]")
        A("v_lshrrev_b32 v1, 6, v0\nv_and_b32 v0, 63, v0\ns_nop 0\nv_readfirstlane_b32 s%d, v1" % sW)
        A("v_lshrrev_b32 v20, 4, v0\nv_and_b32 v21, 15, v0")
        A("s_mul_i32 s%d, s%d, %d" % (sWL, sW, 4 * PITCH))
        if s.amap:
            assert s.tmask or sorted(s.amap) == list(range(8, 14))
            A("s_and_b32 s%d, s%d, 1\ns_lshl_b32 s%d, s%d, %d\ns_lshr_b32 s%d, s%d, 1\ns_lshl_b32 s%d, s%d, %d\ns_add_u32 s%d, s%d, s%d" % (sT, sW, sT, sT, s.amap[4], sT + 1, sW, sT + 1, sT + 1, s.amap[5], sT, sT, sT + 1))
            if s.amap[:2] == (8, 9): A("v_lshlrev_b32 v22, 4, v0")
            else: A("v_and_b32 v22, 1, v20\nv_lshlrev_b32 v22, %d, v22\nv_lshl_add_u32 v22, v21, 4, v22\nv_lshrrev_b32 v23, 1, v20\nv_lshl_add_u32 v22, v23, %d, v22" % s.amap[:2])
            A("v_add_u32 v22, s%d, v22" % sT)
        elif s.lin:
            A("s_lshl_b32 s%d, s%d, 12\nv_lshlrev_b32 v22, 4, v0\nv_add_u32 v22, s%d, v22" % (sT, sW, sT))
        else:
            A("v_lshlrev_b32 v22, 12, v20\nv_lshl_add_u32 v22, v21, 4, v22")
            A("s_lshr_b32 s%d, s%d, 1\ns_lshl_b32 s%d, s%d, 11\ns_and_b32 s%d, s%d, 1\ns_lshl_b32 s%d, s%d, 9\ns_add_u32 s%d, s%d, s%d" % (sT, sW, sT, sT, sT + 1, sW, sT + 1, sT + 1, sT, sT, sT + 1))
            A("v_add_u32 v22, s%d, v22" % sT)
        for i in range(4):
            goff = i * 1024 if s.lin else (4 * (i & 1) + (i >> 1)) * 256
            if s.amap: goff = ((i & 1) << s.amap[2]) + ((i >> 1) << s.amap[3])
            assert goff - PITCH * i + BIASB >= 0
            if s.tmask:
                if i == 0:
                    A("s_mov_b32 s91, 0\ns_mov_b32 s92, %d\ns_mov_b32 s93, 0" % s.tmask)
                    for wb, ab in s.wx:
                        d = 91 if ab in s.amap[6:] else 93
                        A("s_bfe_u32 s%d, s2, %d\ns_lshl_b32 s%d, s%d, %d\ns_xor_b32 s%d, s%d, s%d" % (sT, wb | 1 << 16, sT, sT, ab, d, d, sT))
                A("v_add_u32 v%d, %d, v22\nv_xor_b32 v%d, s93, v%d\nv_add_u32 v%d, %d, v%d" % (vDMA + i, goff, vDMA + i, vDMA + i, vDMA + i, BIASB - PITCH * i, vDMA + i))
                continue
            A("v_add_u32 v%d, %d, v22" % (vDMA + i, goff - PITCH * i + BIASB))
        A("s_lshl_b32 s%d, s%d, 14" % (sT, sW))
        A("v_lshlrev_b32 v23, 2, v20\nv_xor_b32 v23, v23, v21\nv_lshlrev_b32 v23, 4, v23\nv_lshl_add_u32 v23, v20, 8, v23\nv_add_u32 v%d, s%d, v23" % (vQA, sT))
        if s.newtail == 3:
            A("v_bfe_u32 v23, v0, 3, 1\nv_lshl_add_u32 v23, v20, 2, v23\nv_and_b32 v24, 3, v0\nv_lshlrev_b32 v24, 5, v24\nv_lshl_add_u32 v23, v23, 8, v24")
            A("v_bfe_u32 v24, v0, 2, 1\nv_lshl_add_u32 v23, v24, 4, v23\nv_add_u32 v%d, s%d, v23" % (vOA, sT))
        elif s.newtail == 2:
            A("v_bfe_u32 v23, v0, 3, 1\nv_lshl_add_u32 v23, v20, 2, v23\nv_lshlrev_b32 v%d, 2, v23\nv_and_b32 v24, 7, v0\nv_lshlrev_b32 v24, 4, v24\nv_lshl_add_u32 v23, v23, 8, v24\nv_add_u32 v%d, s%d, v23" % (vBP, vOA, sT))
        elif s.operm:
            A("v_lshrrev_b32 v23, 3, v0\nv_and_b32 v24, 3, v0\nv_lshlrev_b32 v24, 5, v24\nv_lshl_add_u32 v23, v23, 8, v24\nv_bfe_u32 v24, v0, 2, 1\nv_lshl_add_u32 v23, v24, 4, v23\nv_add_u32 v%d, s%d, v23" % (vOA, sT))
        else:
            A("v_lshrrev_b32 v23, 3, v0\nv_and_b32 v24, 7, v0\nv_lshlrev_b32 v24, 4, v24\nv_lshl_add_u32 v23, v23, 8, v24\nv_add_u32 v%d, s%d, v23" % (vOA, sT))
        for qb in range(4): A("s_mov_b32 s%d, %d" % (sQB + qb, qb * 4096))
        if s.fast0:
            assert not s.hmap and not s.rot
            A("s_lshl_b32 s88, s2, 19\ns_sub_u32 s88, s88, %d\ns_subb_u32 s89, 0, 0\ns_lshl_b32 s90, s2, 16" % BIASB)
            for d, n in ((sK, 0x80000 + BIASB), (sV, 0x80000 + BIASB), (sQ, 0x10000), (sO, 0x10000)): A("s_mov_b32 s%d, %d\ns_mov_b32 s%d, 0x20000" % (d + 2, n, d + 3))
            A("s_mov_b32 s%d, 0" % sPASS)
            for qb in range(4): A("v_mov_b32 v%d, 0xff800000" % vM(qb))
            A("L_start:")
            A("s_mov_b32 s%d, %s\ns_mov_b32 s%d, %s" % ((sSOK, "s91", sSOV, "s91") if s.tmask else (sSOK, "0", sSOV, "0")))
            A(s.m0set(0))
        if s.pst == 1: s.stamp(0, True)
        A("s_waitcnt lgkmcnt(0)")
        if s.pst == 1: s.stamp(1, True)
        hd = 2
        if s.hmap == 1:
            hd = 33; A("s_xor_b32 s33, s2, 1")
        if s.hmap == 2:
            hd = 33; A("s_and_b32 s33, s2, 7\ns_lshl_b32 s33, s33, 5\ns_lshr_b32 s36, s2, 3\ns_add_u32 s33, s33, s36")
        if s.fast0:
            A("s_add_u32 s%d, s26, s88\ns_addc_u32 s%d, s27, s89" % (sK, sK + 1))
        else:
            A("s_lshl_b32 s%d, s%d, 19" % (sT, hd))
            A("s_sub_u32 s26, s26, %d\ns_subb_u32 s27, s27, 0\ns_sub_u32 s28, s28, %d\ns_subb_u32 s29, s29, 0" % (BIASB, BIASB))
            A("s_add_u32 s%d, s26, s%d\ns_addc_u32 s%d, s27, 0\ns_mov_b32 s%d, %d\ns_mov_b32 s%d, 0x20000" % (sK, sT, sK + 1, sK + 2, 0x80000 + BIASB, sK + 3))
            A("s_add_u32 s%d, s28, s%d\ns_addc_u32 s%d, s29, 0\ns_mov_b32 s%d, %d\ns_mov_b32 s%d, 0x20000" % (sV, sT, sV + 1, sV + 2, 0x80000 + BIASB, sV + 3))
            A("s_lshl_b32 s%d, s%d, 16" % (sT, hd))
            A("s_add_u32 s%d, s24, s%d\ns_addc_u32 s%d, s25, 0\ns_mov_b32 s%d, 0x10000\ns_mov_b32 s%d, 0x20000" % (sQ, sT, sQ + 1, sQ + 2, sQ + 3))
            A("s_add_u32 s%d, s30, s%d\ns_addc_u32 s%d, s31, 0\ns_mov_b32 s%d, 0x10000\ns_mov_b32 s%d, 0x20000" % (sO, sT, sO + 1, sO + 2, sO + 3))
            A("s_mov_b32 s%d, 0" % sPASS)
            for qb in range(4): A("v_mov_b32 v%d, 0xff800000" % vM(qb))
            A("L_start:")
            if s.rot: A("s_mul_i32 s%d, s2, %d\ns_and_b32 s%d, s%d, 31\ns_lshl_b32 s%d, s%d, 14\ns_mov_b32 s%d, s%d" % (sSOK, s.rot, sSOK, sSOK, sSOK, sSOK, sSOV, sSOK))
            else: A("s_mov_b32 s%d, 0\ns_mov_b32 s%d, 0" % (sSOK, sSOV))
        def group(isK, off, n=4):
            return [s.m0set(off), "s_nop 0"] + [s.dma(isK, i) for i in range(n)] + ([s.adv(isK)] if n == 4 else [])
        PERM = (0, 3, 1, 2)
        def qgroup(qb):
            out = []
            for i in range(4):
                out.append(["s_add_u32 m0, s%d, %d" % (sWL, VBASE + qb * SLOT + i * PITCH - PERM[i] * 1024), "s_nop 0",
                            "buffer_load_dwordx4 v%d, %s, s%d offen offset:%d %s lds" % (vQA, R("s", sQ, 4), sQB + qb, PERM[i] * 1024, s.qld)])
            return out
        def pieces(isK, off, n=4):
            out = [[s.dma(isK, i)] for i in range(n)]
            if n: out[0] = [s.m0set(off), "s_nop 0"] + out[0]
            if n == 4: out[3].append(s.adv(isK))
            return out
        Q = [("K0", p) for p in pieces(True, 0)]
        for qb in range(4): Q += [("Q%d" % qb, p) for p in qgroup(qb)]
        Q += [("K1", p) for p in pieces(True, SLOT)]
        for p in range(s.npre):
            isK, off, piece = s.seq(p, 1)
            ops = ([s.m0set(off), "s_nop 0"] if piece == 0 else []) + [s.dma(isK, piece)] + ([s.adv(isK)] if piece == 3 else [])
            Q.append((("K2", "V0", "V1", "K3")[p >> 2], ops))
        if s.fast0:
            Q[0] = ("K0", Q[0][1][2:])
            Q[0][1].append("s_add_u32 s%d, s24, s90\ns_addc_u32 s%d, s25, 0" % (sQ, sQ + 1))
        if s.vtlb: Q.insert(s.vtlb, ("X", ["buffer_load_dword v127, v%d, %s, 0 offen" % (vDMA, R("s", sV, 4))]))
        if s.otlb: Q.insert(s.otlb, ("X", ["buffer_load_dword v10, v%d, %s, 0 offen" % (vOA, R("s", sO, 4))]))
        st = {"n": 0}
        def issue(k=1):
            for _ in range(k):
                if st["n"] < len(Q):
                    if s.lim and st["n"] >= s.lim: A("s_waitcnt vmcnt(%d)" % (s.lim - 1))
                    for x in Q[st["n"]][1]: A(x)
                    st["n"] += 1
        def waitfor(tag):
            last = max(i for i, x in enumerate(Q) if x[0] == tag)
            if st["n"] <= last: issue(last + 1 - st["n"])
            A("s_waitcnt vmcnt(%d)" % (st["n"] - 1 - last))
        if s.pst == 1: s.stamp(2, True)
        issue(s.nfirst)
        if s.fast0:
            assert s.nfirst <= min(x for x in (s.otlb, s.vtlb, 20) if x)
            A("s_add_u32 s%d, s28, s88\ns_addc_u32 s%d, s29, s89" % (sV, sV + 1))
            A("s_add_u32 s%d, s30, s90\ns_addc_u32 s%d, s31, 0" % (sO, sO + 1))
        if s.pst == 1: s.stamp(3, True)
        A("v_and_b32 v22, 3, v0\nv_bfe_u32 v23, v0, 2, 1\nv_lshl_add_u32 v22, v22, 1, v23\nv_and_b32 v23, 8, v0\nv_add_u32 v22, v22, v23")
        A("v_mul_u32_u24 v22, %d, v22\nv_lshrrev_b32 v23, 4, v0\nv_lshl_add_u32 v%d, v23, 4, v22" % (PITCH, vK))
        A("v_bfe_u32 v22, v0, 2, 2\nv_bfe_u32 v23, v0, 4, 1\nv_lshl_add_u32 v22, v22, 1, v23\nv_lshrrev_b32 v23, 5, v0\nv_lshl_add_u32 v22, v23, 3, v22")
        A("v_mul_u32_u24 v22, %d, v22\nv_and_b32 v23, 3, v0\nv_lshl_add_u32 v22, v23, 3, v22\nv_add_u32 v%d, %d, v22" % (PITCH, vV, VBASE))
        A("v_bfe_u32 v22, v0, 2, 2\nv_lshlrev_b32 v22, 1, v22\nv_mov_b32 v23, 0x78\nv_lshrrev_b32 v22, v22, v23\nv_and_b32 v22, 3, v22")
        A("v_mul_u32_u24 v22, %d, v22\nv_and_b32 v23, 3, v0\nv_lshl_add_u32 v22, v23, 8, v22\nv_lshrrev_b32 v24, 4, v0\nv_lshl_add_u32 v22, v24, 4, v22" % PITCH)
        A("v_add_u32 v22, s%d, v22\nv_add_u32 v22, %d, v22" % (sWL, VBASE))
        for t in range(4): A("v_xor_b32 v24, %d, v23\nv_lshl_add_u32 v%d, v24, 6, v22" % (t, vQR + t))
        if s.newtail == 3:
            sh = 4 if s.w128 else 3
            A("v_lshrrev_b32 v%d, 4, v0\nv_lshlrev_b32 v%d, 9, v%d\nv_add_u32 v%d, s%d, v%d" % (vE, vE + 1, vE, vE + 1, sWL, vE + 1))
            A("v_and_b32 v%d, 1, v%d\nv_lshlrev_b32 v%d, 2, v%d" % (vE, vE, vE, vE))
            A("v_and_b32 v%d, 15, v0\nv_xor_b32 v%d, v%d, v%d\nv_lshl_add_u32 v%d, v%d, %d, v%d" % (vE + 2, vE + 2, vE + 2, vE, vW, vE + 2, sh, vE + 1))
            A("v_bfe_u32 v%d, v0, 1, 1\nv_lshl_add_u32 v%d, v%d, %d, v%d" % (vE + 2, vE + 1, vE + 2, 3 if s.w128 else 7, vE + 1))
            A("v_and_b32 v%d, 1, v0\nv_bfe_u32 v%d, v0, 2, 2\nv_lshl_add_u32 v%d, v%d, 3, v%d\nv_xor_b32 v%d, v%d, v%d" % (vE + 2, vE + 3, vE + 2, vE + 2, vE + 3, vE + 2, vE + 2, vE))
            A("v_lshl_add_u32 v%d, v%d, %d, v%d\nv_xor_b32 v%d, 4, v%d\nv_lshl_add_u32 v%d, v%d, %d, v%d" % (vOR, vE + 2, sh, vE + 1, vE + 2, vE + 2, vBP + 1, vE + 2, sh, vE + 1))
        elif s.newtail == 2:
            A("v_bfe_u32 v%d, v0, 4, 1\nv_mul_u32_u24 v%d, 5, v%d\nv_lshrrev_b32 v%d, 4, v0\nv_lshlrev_b32 v%d, 10, v%d" % (vE, vE, vE, vE + 1, vE + 1, vE + 1))
            A("v_and_b32 v%d, 3, v0\nv_lshl_add_u32 v%d, v%d, 2, v%d\nv_add_u32 v%d, s%d, v%d" % (vE + 2, vE + 1, vE + 2, vE + 1, vE + 1, sWL, vE + 1))
            A("v_bfe_u32 v%d, v0, 2, 2\nv_xor_b32 v%d, v%d, v%d" % (vE + 2, vE + 2, vE + 2, vE))
            for e in range(4): A("v_xor_b32 v%d, %d, v%d\nv_lshl_add_u32 v%d, v%d, 4, v%d" % (vW + e, 4 * e, vE + 2, vW + e, vW + e, vE + 1))
            A("v_and_b32 v%d, 7, v0\nv_lshlrev_b32 v%d, 1, v%d\nv_xor_b32 v%d, v%d, v%d" % (vE + 2, vE + 2, vE + 2, vE + 2, vE + 2, vE))
            A("v_lshlrev_b32 v%d, 6, v%d\nv_add_u32 v%d, s%d, v%d" % (vE + 1, vBP, vE + 1, sWL, vE + 1))
            A("v_lshl_add_u32 v%d, v%d, 4, v%d\nv_xor_b32 v%d, 1, v%d\nv_lshl_add_u32 v%d, v%d, 4, v%d" % (vOR, vE + 2, vE + 1, vE + 2, vE + 2, vBP + 1, vE + 2, vE + 1))
        else:
            A("v_and_b32 v%d, 15, v0\nv_lshrrev_b32 v%d, 5, v0\nv_xor_b32 v%d, v%d, v%d\nv_lshlrev_b32 v%d, 4, v%d" % (vE, vE + 1, vE + 1, vE + 1, vE, vE + 1, vE + 1))
            A("v_lshl_add_u32 v%d, v%d, 8, v%d\nv_bfe_u32 v%d, v0, 4, 1\nv_lshl_add_u32 v%d, v%d, 3, v%d" % (vE + 1, vE, vE + 1, vE, vE + 1, vE, vE + 1))
            for db in range(8): A("v_xor_b32 v%d, %d, v%d\nv_add_u32 v%d, s%d, v%d" % (vW + db, db * 32, vE + 1, vW + db, sWL, vW + db))
            A("v_lshrrev_b32 v%d, 3, v0\nv_and_b32 v%d, 7, v0\nv_xor_b32 v%d, v%d, v%d\nv_lshlrev_b32 v%d, 4, v%d" % (vE, vE + 1, vE + 1, vE + 1, vE, vE + 1, vE + 1))
            A("v_lshl_add_u32 v%d, v%d, 8, v%d\nv_add_u32 v%d, s%d, v%d" % (vE + 1, vE, vE + 1, vOR, sWL, vE + 1))
        c = 1.4426950408889634 / (128.0 ** 0.5)
        A("s_mov_b32 s%d, %s\ns_mov_b32 s%d, %s" % (sC, f32(c), sC + 1, f32(c)))
        A("s_mov_b32 s%d, %d" % (sCNT, 6 if s.peel else 7))
        if s.peel: A("v_subrev_u32 v%d, %d, v%d" % (vV2, VBASE, vV))
        A("s_mov_b32 s%d, 0x07060302" % sSEL)
        if s.sp:
            A("v_and_b32 v22, %d, v0\nv_cmp_gt_u32 vcc, 2, v22\nv_mov_b32 v23, 0x3f803f80\nv_and_b32 v22, 1, v0\nv_cndmask_b32 v%d, 0, v23, vcc" % (15 if s.ones1 else 3, vONE))
            A("v_cmp_eq_u32 vcc, 0, v22\nv_mov_b32 v23, 0x44444444\nv_mov_b32 v24, 0xeeeeeeee\nv_cndmask_b32 v%d, v24, v23, vcc" % vIDX)
        elif s.ones4:
            A("v_and_b32 v22, 3, v0\nv_cmp_eq_u32 vcc, 0, v22\nv_mov_b32 v23, 0x3f803f80\ns_nop 0\nv_cndmask_b32 v%d, 0, v23, vcc" % vONE)
        else:
            A("v_mov_b32 v%d, 0x3f803f80" % vONE)
        for i in range(1, 4): A("v_mov_b32 v%d, v%d" % (vONE + i, vONE))
        if s.pst == 1: s.stamp(4, True)
        for i in range(128): A("v_accvgpr_write_b32 a%d, 0" % i)
        for i in range(16): A("v_mov_b32 v%d, 0" % (vL(0) + i))
        for qb in range(4): A("v_mov_b32 v%d, 0" % vA(qb))
        s.stamp(0)
        if s.pst == 1:
            s.stamp(5, True)
            A("s_waitcnt vmcnt(%d)" % (s.nfirst - 1))
            s.stamp(6, True)
        if s.pre0 or s.pre1 or s.pre2:
            A("s_mov_b32 s85, 0x9e3779b1\nv_add_u32 v100, 1, v0")
            for i in range(16):
                A("v_mul_lo_u32 v100, v100, s85\nv_and_b32 v%d, 0xbfffbfff, v100\nv_or_b32 v%d, 0x3c003c00, v%d" % (104 + i, 104 + i, 104 + i))
            s.dummy(s.pre0)
        issue(s.nsecond - st["n"])
        for qb in range(4):
            if qb and s.pre1: s.dummy(s.pre1)
            waitfor("Q%d" % qb)
            if qb == 0: s.stamp(1)
            for t in range(4): A("ds_read_b128 %s, v%d offset:%d" % (R("v", 128 + 4 * t, 4), vQR + t, qb * SLOT))
            if qb == 0:
                A("s_barrier")
                for t in range(4): A(s.kread(0, 0, 0, t))
                if s.prepass == 2:
                    for t in range(4): A(s.kread(1, 0, 1, t))
            for f in range(4):
                b = 128 + 4 * f
                if f < s.nq[qb] and st["n"] < len(Q) and Q[st["n"]][0] not in ["V%d" % x for x in range(qb, 4)]: issue(1)
                A("s_waitcnt lgkmcnt(%d)" % (3 - f + (4 * s.prepass if qb == 0 else 0)))
                for i in range(4):
                    A("v_lshlrev_b32 v%d, 16, v%d\nv_and_b32 v%d, 0xffff0000, v%d" % (vT + 2 * i, b + i, vT + 2 * i + 1, b + i))
                for i in range(4):
                    A("v_pk_mul_f32 %s, %s, %s" % (R("v", vT + 2 * i, 2), R("v", vT + 2 * i, 2), R("s", sC, 2)))
                for i in range(4):
                    A("v_cvt_pk_bf16_f32 v%d, v%d, v%d" % (vT + 8 + i, vT + 2 * i, vT + 2 * i + 1))
                for i in range(4):
                    A("v_accvgpr_write_b32 a%d, v%d" % (aQ(qb, f) + i, vT + 8 + i))
        s.stamp(2)
        A("s_waitcnt lgkmcnt(0)")
        for rep in range(s.prepass):
            for qb in range(4):
                for t in range(4): A(s.qk(rep, qb, t, zero=True))
                if qb & 1: issue(1)
            A("s_nop 4")
            for qb in range(4):
                S = vS(qb)
                A("v_max3_f32 v%d, v%d, v%d, v%d" % (vM(qb), vM(qb), S, S + 1))
            for qb in range(4):
                S = vS(qb)
                A("v_max3_f32 v%d, v%d, v%d, v%d" % (vM(qb), vM(qb), S + 2, S + 3))
        for sw in ("v_permlane32_swap_b32", "v_permlane16_swap_b32"):
            for qb in range(4): A("v_mov_b32 v%d, v%d" % (vT + qb, vM(qb)))
            for qb in range(4): A("%s v%d, v%d" % (sw, vT + qb, vM(qb)))
            for qb in range(4): A("v_max_f32 v%d, v%d, v%d" % (vM(qb), vM(qb), vT + qb))
            issue(1)
        issue(len(Q))
        A("s_mov_b32 s%d, %s" % (sT, f32(-s.bias)))
        for qb in range(4): A("v_sub_f32 v%d, s%d, v%d" % (vNM(qb), sT, vM(qb)))
        for qb in range(4):
            for i in range(1, 4): A("v_mov_b32 v%d, v%d" % (vNM(qb) + i, vNM(qb)))
        if s.novalu:
            for i in range(128): A("v_accvgpr_read_b32 v%d, a%d" % (128 + i, 128 + (i & 63)))
        if s.nolds:
            for t in range(4): A(s.kread(1, 0, 1, t))
            for bf in range(2):
                for r in range(8): A(s.vread(bf, 2, bf, r))
            A("s_waitcnt lgkmcnt(0)")
        if s.instr == 3: A("s_mov_b32 s76, 0")
        if s.instr == 4: A("s_mov_b32 s76, 0\ns_add_u32 s77, s40, 7000\ns_memrealtime s[74:75]\ns_waitcnt lgkmcnt(0)\ns_add_u32 s74, s74, 200\ns_mov_b32 s78, 0")
        A("s_nop 0")
        s.stamp(3)
        n0 = len(s.lines)
        for b in range(8): s.block(1, b, do_pv=False, first=True)
        if s.warm2: A("global_load_dword v39, v38, s[86:87]")
        s.lines = hazards.pad(s.lines)
        s.stamp(4)
        A(".p2align 6")
        A("L_loop:")
        n0 = len(s.lines)
        for b in range(8): s.block(0, b, last=(b == 7))
        A("s_cbranch_scc1 L_tail")
        n1 = len(s.lines)
        for b in range(8): s.block(1, b)
        body = s.lines[n0:]
        A("s_branch L_loop")
        A("L_tail:")
        n2 = len(s.lines)
        if s.peel:
            for eb in range(16): s.block(1 - (eb >> 3), eb & 7, eb=eb)
        s.stamp(5)
        assert s.sp and len(s.msum_qb) == 4
        def conv(n):
            qb, db = n & 3, n >> 2
            tb = vE + 6 * (n % 4)
            o = aO(qb, db)
            ops = ["v_accvgpr_read_b32 v%d, a%d" % (tb + i, o + i) for i in range(4)]
            ops += ["v_mul_f32 v%d, v%d, v%d" % (tb + i, tb + i, vT + qb) for i in range(4)]
            ops += ["v_cvt_pk_bf16_f32 v%d, v%d, v%d" % (tb + 4 + i, tb + 2 * i, tb + 2 * i + 1) for i in range(2)]
            return ops
        def owrite(n): return "ds_write_b64 v%d, %s offset:%d" % (vW + (n >> 2), R("v", vE + 6 * (n % 4) + 4, 2), (n & 3) * SLOT)
        def oread(h, qb, i):
            return "ds_read_b128 %s, v%d offset:%d" % (R("v", 128 + 32 * h + 8 * qb + 4 * i, 4), vOR, qb * SLOT + i * 2048 + ((h ^ i) * 128))
        def ostore(h, qb, i):
            return "buffer_store_dwordx4 %s, v%d, %s, s%d offen offset:%d %s" % (R("v", 128 + 32 * h + 8 * qb + 4 * i, 4), vOA, R("s", sO, 4), sQB + qb, i * 2048 + h * 128, s.st)
        def lfin(qb): return ["v_add_f32 v%d, v%d, v%d" % (vL(qb), vL(qb), vL(qb) + 1), "v_rcp_f32 v%d, v%d" % (vT + qb, vL(qb))]
        left = [s.sm_op(k, q, i, 1, 7) for g, k, q, i in sorted(s.sm_table(False)) if g >= 32]
        T = []
        m = s.msums(1, 0) + s.msums(1, 1) + s.msums(1, 2)
        for i, x in enumerate(m):
            T.append(x)
            if i == 0: T.append("s_mov_b32 s%d, %s" % (sT, f32(s.thr)))
            if i < len(left): T.append(left[i])
        sh = [[[] for k in range(4)] for n in range(32)]
        ds = [[[] for k in range(4)] for n in range(32)]
        va = [[[] for k in range(4)] for n in range(32)]
        for n in range(32):
            qb, db = n & 3, n >> 2
            if db < 7:
                for u in range(2): ds[n][2 * u].append(s.vread((db + 1) & 1, 2, db + 1, 2 * qb + u))
            if n >= 2:
                c = conv(n - 2)
                for k, (x, y) in enumerate(((0, 3), (3, 6), (6, 8), (8, 10))): va[n][k] += c[x:y]
            if n >= 3: ds[n][1].append(owrite(n - 3))
        sh[3][1].append("s_waitcnt vmcnt(2)")
        sh[5][1].append("s_waitcnt vmcnt(0)")
        for j, qb in enumerate((0, 1, 2)):
            x = lfin(qb); va[0 if j < 1 else 1][(2, 0, 2)[j]].append(x[0]); va[0 if j < 1 else 1][(3, 1, 3)[j]].append(x[1])
        x = lfin(3); va[3][2].append(x[0]); va[3][3].append(x[1])
        va[4][2].append("v_add_f32 v%d, v%d, v%d" % (vT + 5, vL(0), vL(1)))
        va[4][3].append("v_add_f32 v%d, v%d, v%d" % (vT + 6, vL(2), vL(3)))
        va[5][2].append("v_add_f32 v%d, v%d, v%d" % (vT + 5, vT + 5, vT + 6))
        va[5][3].append("v_cmp_nge_f32 vcc, s%d, v%d" % (sT, vT + 5))
        for j in range(8):
            ds[15 + j][3].append(oread(0, j >> 1, j & 1))
            ds[17 + j][2].append(ostore(0, j >> 1, j & 1))
        ds[31][2].append(oread(1, 0, 0)); ds[31][3].append(oread(1, 0, 1))
        for n in range(32):
            qb, db = n & 3, n >> 2
            for k in range(4):
                T.append(s.pv(db & 1, 1, qb, db, k))
                T += sh[n][k] + ds[n][k] + va[n][k]
            if n == 0: T += s.msums(1, 3)
            if s.tst and n in (3, 11, 19, 27, 31): T.append("s_memtime s[%d:%d]" % (48 + 2 * (3, 11, 19, 27, 31).index(n), 49 + 2 * (3, 11, 19, 27, 31).index(n)))
        T += [owrite(29), oread(1, 1, 0), oread(1, 1, 1)] + conv(30) + [ostore(1, 0, 0), ostore(1, 0, 1), owrite(30), oread(1, 2, 0), oread(1, 2, 1)]
        T += conv(31) + [ostore(1, 1, 0), ostore(1, 1, 1), owrite(31), oread(1, 3, 0), oread(1, 3, 1)]
        T += [ostore(1, 2, 0), ostore(1, 2, 1), ostore(1, 3, 0), ostore(1, 3, 1)]
        if s.newtail == 2: T = s.tail2()
        if s.newtail == 3: T = s.tail3()
        if s.nost: T = [x for x in T if not x.startswith("buffer_store")]
        for x in hazards.autowait(T): A(x)
        pre = s.lines[n0:n1]
        s.lines[n2:] = hazards.pad(pre + s.lines[n2:], start=len(pre))[len(pre):]
        s.stamp(6)
        if s.nodma or s.novalu or s.nolds: A("s_branch L_fin")
        A("s_cmp_lg_u32 s%d, 0\ns_cbranch_scc1 L_fin" % sPASS)
        A("s_cmp_lg_u64 vcc, 0\ns_cselect_b32 s%d, 1, 0" % sT)
        A("s_lshl_b32 s%d, s%d, 2\ns_add_u32 s%d, s%d, %d" % (sT + 1, sW, sT + 1, sT + 1, FLAG_OFF))
        A("v_mov_b32 v%d, s%d\nv_mov_b32 v%d, s%d\nv_mov_b32 v%d, %d" % (vT, sT, vT + 1, sT + 1, vT + 2, FLAG_OFF))
        A("ds_write_b32 v%d, v%d\ns_waitcnt lgkmcnt(0)\ns_barrier" % (vT + 1, vT))
        A("ds_read_b128 %s, v%d\ns_waitcnt lgkmcnt(0)" % (R("v", vT + 8, 4), vT + 2))
        A("v_or3_b32 v%d, v%d, v%d, v%d\nv_or_b32 v%d, v%d, v%d\ns_nop 1" % (vT, vT + 8, vT + 9, vT + 10, vT, vT, vT + 11))
        A("v_readfirstlane_b32 s%d, v%d\ns_nop 3\ns_cmp_eq_u32 s%d, 0\ns_cbranch_scc0 L_redo" % (sT, vT, sT))
        A("L_fin:")
        if s.dbg == -1:
            A("s_waitcnt vmcnt(0)")
            A("s_memrealtime s[42:43]\ns_memtime s[46:47]\ns_load_dwordx2 s[64:65], s[0:1], 32\ns_waitcnt lgkmcnt(0)")
            A("s_mov_b32 s68, s64\ns_mov_b32 s69, s65\ns_mov_b32 s70, 256\ns_mov_b32 s71, 0x20000")
            A("s_cmp_ge_u32 s2, 8\ns_cbranch_scc1 L_end\ns_cmp_lg_u32 s3, 0\ns_cbranch_scc1 L_end")
            A("s_lshl_b32 s36, s2, 2\nv_mov_b32 v3, s36\ns_mov_b64 exec, 1")
            A("s_sub_u32 s36, s42, s40\nv_mov_b32 v8, s36\ns_sub_u32 s36, s46, s44\nv_mov_b32 v9, s36")
            A("buffer_store_dword v8, v3, s[68:71], 0 offen\nbuffer_store_dword v9, v3, s[68:71], 0 offen offset:32")
        elif s.probe is not None:
            A("s_waitcnt vmcnt(0)")
            A("s_memrealtime s[42:43]\ns_memtime s[46:47]\ns_waitcnt lgkmcnt(0)")
            A("s_cmp_lg_u32 s2, %d\ns_cbranch_scc1 L_end" % s.probe[3])
            a, b, div = s.probe[:3]
            A("s_sub_u32 s36, s%d, s%d" % (a, b))
            if div == 10: A("s_mul_hi_u32 s36, s36, 429496730")
            if div == 0: A("s_mov_b32 s36, 0")
            if div == -1: A("s_mul_i32 s36, s36, 500")
            A("s_add_u32 s36, s36, 15000\ns_add_u32 s36, s36, s40")
            A("L_spin:\ns_sleep 4\ns_memrealtime s[42:43]\ns_waitcnt lgkmcnt(0)\ns_sub_u32 s37, s42, s36\ns_cmp_lt_i32 s37, 0\ns_cbranch_scc1 L_spin")
        elif s.stamps:
            A("s_waitcnt vmcnt(0)")
            A("s_memrealtime s[42:43]\ns_memtime s[46:47]\ns_getreg_b32 s62, hwreg(HW_REG_XCC_ID)\ns_mov_b32 s63, 0\ns_waitcnt lgkmcnt(0)")
            A("s_mov_b32 s68, s64\ns_mov_b32 s69, s65\ns_mov_b32 s70, 0x100000\ns_mov_b32 s71, 0x20000")
            A("s_lshl_b32 s37, s2, 2\ns_add_u32 s37, s37, s3\ns_mul_i32 s37, s37, 96\nv_mov_b32 v3, s37")
            if s.instr == 3:
                A("s_lshl_b32 s38, s2, 2\ns_add_u32 s38, s38, s3\ns_lshl_b32 s38, s38, 9\ns_add_u32 s38, s38, 0x20000\nv_lshlrev_b32 v4, 3, v0\nv_add_u32 v4, s38, v4")
                A("buffer_store_dwordx2 v[46:47], v4, s[68:71], 0 offen")
            for j, r in enumerate([40, 42, 44, 46] + list(range(48, 64, 2))):
                A("v_mov_b32 v8, s%d\nv_mov_b32 v9, s%d" % (r, r + 1))
                A("buffer_store_dwordx2 v[8:9], v3, s[68:71], 0 offen offset:%d" % (j * 8))
                A("s_nop 1")
        A("L_end:\ns_endpgm")
        A("L_redo:")
        A("s_mov_b32 s%d, 1\ns_mov_b32 s%d, 0" % (sPASS, sSOK))
        A("s_waitcnt vmcnt(0)")
        A("L_maxpass:")
        A("s_barrier")
        for x in group(True, 0): A(x)
        A("s_waitcnt vmcnt(0)\ns_barrier")
        for j in range(4):
            for t in range(4): A(s.kread(0, 0, j, t))
            A("s_waitcnt lgkmcnt(0)")
            for qb in range(4):
                for t in range(4): A(s.qk(0, qb, t, zero=True))
            A("s_nop 7")
            for qb in range(4):
                S = vS(qb)
                A("v_max3_f32 v%d, v%d, v%d, v%d" % (vM(qb), vM(qb), S, S + 1))
                A("v_max3_f32 v%d, v%d, v%d, v%d" % (vM(qb), vM(qb), S + 2, S + 3))
        if s.tmask: A("s_cmp_lg_u32 s%d, 0\ns_cbranch_scc1 L_maxpass" % sSOK)
        else: A("s_cmp_lt_u32 s%d, 0x80000\ns_cbranch_scc1 L_maxpass" % sSOK)
        A("s_barrier\ns_branch L_start")
        A("L_last:")
        A('.section .rodata,"a"\n.p2align 6\n.amdhsa_kernel %s' % KN)
        A("  .amdhsa_next_free_vgpr 512\n  .amdhsa_next_free_sgpr 102\n  .amdhsa_accum_offset 256\n  .amdhsa_group_segment_fixed_size 0\n  .amdhsa_kernarg_size 48\n  .amdhsa_user_sgpr_count 2\n  .amdhsa_user_sgpr_kernarg_segment_ptr 1\n  .amdhsa_system_sgpr_workgroup_id_x 1\n  .amdhsa_float_denorm_mode_32 3\n.end_amdhsa_kernel")
        vb = not (s.nodma or s.novalu or s.nolds)
        errs = hazards.check(s.lines[:n2], "linear", vb) + hazards.check(body + body, "loop", vb) + hazards.check(s.lines[n0:n1] + s.lines[n2:], "tail", vb)
        return "\n".join(s.lines) + "\n", errs

def gen(name, **kw):
    txt, errs = Gen(**kw).build()
    open(name, "w").write(txt)
    return errs

if __name__ == "__main__":
    import ast
    name = sys.argv[1]
    kw = {}
    for a in sys.argv[2:]:
        k, v = a.split("=", 1)
        try: kw[k] = ast.literal_eval(v)
        except Exception: kw[k] = v
    e = gen(name, **kw)
    print(name, "hazards:", len(e))
```

```python
import sys, struct
import hazards

KN = "standalone__mha_softmax__near_ridge_kernel"
PITCH = 1056
SLOT = 16 * PITCH
VBASE = 4 * SLOT
FLAG_OFF = 8 * SLOT
LDS_BYTES = 8 * SLOT + 64
BIASB = 1888

def f32(x): return "0x%08x" % struct.unpack("<I", struct.pack("<f", x))[0]
def R(p, b, n): return "%s[%d:%d]" % (p, b, b + n - 1)

vDMA = 2
vK = 6
vV = 7
vQA = 8
vOA = 9
def vA(qb): return 12 + qb
def vM(qb): return 16 + qb
vT = 20
def vS(qb, st=0): return (100 if st else 48) + 4 * qb
def vNM(qb): return 64 + 4 * qb
vONE = 80
def vL(qb): return 84 + 4 * qb
vE = 100
vQR = 40
vW = 32
vOR = 44
vV2 = 33
vBP = 36
def vP(buf, qb, ks): return 128 + buf * 64 + qb * 16 + ks * 4
def aO(qb, db): return (qb * 8 + db) * 4
def aQ(qb, t): return 128 + (qb * 4 + t) * 4
def aK(buf, t): return 192 + buf * 16 + 4 * t
def aV(buf, ks): return 224 + buf * 16 + 4 * ks

sW = 3
sQ, sK, sV, sO = 4, 8, 12, 16
sSOK, sSOV = 20, 21
sWL = 22
sCNT = 23
sPASS = 32
sC = 34
sT = 36
sSEL = 84
vIDX = 45
sQB = 80
MF = "v_mfma_f32_16x16x32_bf16"

PATHS = {
    "row": [(q, k) for q in range(4) for k in range(4)],
    "rsn": [(q, 3 - k if q & 1 else k) for q in range(4) for k in range(4)],
    "rsr": [(3 - q, 3 - k if q & 1 else k) for q in range(4) for k in range(4)],
    "col": [(q, k) for k in range(4) for q in range(4)],
    "csn": [(3 - q if k & 1 else q, k) for k in range(4) for q in range(4)],
    "hil": [(0,0),(0,1),(1,1),(1,0),(2,0),(3,0),(3,1),(2,1),(2,2),(3,2),(3,3),(2,3),(1,3),(1,2),(0,2),(0,3)],
    "zig": [(0,0),(0,1),(1,1),(1,0),(2,0),(2,1),(3,1),(3,0),(3,2),(3,3),(2,3),(2,2),(1,2),(1,3),(0,3),(0,2)],
    "zg2": [(0,0),(1,0),(1,1),(0,1),(0,2),(1,2),(1,3),(0,3),(2,3),(3,3),(3,2),(2,2),(2,1),(3,1),(3,0),(2,0)],
}

class Gen:
    def __init__(s, ld="nt", qld="nt", st="nt", stamps=0, bias=10.0, thr=2.0 ** 40, summode="sp", nodma=0, nobar=0, novalu=0, nolds=0,
                 warm=1, instr=0, probe=None, dbg=None, dmagaps=None, pad=0, otlb=8, ones4=1, prepass=1, mspos=23, nfirst=12, nsecond=16, hmap=0, lim=0, lim1=0, padn=0, perm=0, smpl=1, lim2=0, share=(), latev=0, pre0=0, pre1=0, pre2=0, lin=1, dist=0, s0=-1, npre=None, fcnt=None, vtlb=0, newtail=1, nq=(4, 4, 4, 4), rot=0, tst=0, nost=0, pst=0, pvswap=0, qkswap=0, order=0, snake=0, qo=None, po=None, sdb=0, off=0, qseq=(0, 1, 2, 3), ones1=0, tb=3, tlat=5, wpos=(2, 3), tnv=2, operm=0, w128=0, clag=2, tord=0, vlat=4, cst=2, tad=0, f7=2, lim7=0, sfrom=0, sprio=0, peel=0, ecnt=None, edist=8, warm2=0, dg3=None, dg4=None, dist2=0, fast0=0, amap=None, wx=(), tx=0):
        s.__dict__.update(locals())
        s.lines = []
        s.msum_qb = {"mfma": (0, 1, 2, 3), "hybrid": (0, 2), "valu": (), "sp": (0, 1, 2, 3), "sphy": (0, 2)}[summode]
        s.sp = summode.startswith("sp")
        s.dmagaps = {1: (24,), 2: (24, 28), 3: (24, 26, 28), 4: (24, 26, 28, 30)}
        if dmagaps: s.dmagaps[len(dmagaps)] = dmagaps
        if dg3: s.dmagaps[3] = dg3
        if dg4: s.dmagaps[4] = dg4
        s.vm1 = 2 * (3 - s0)
        s.vm2 = 2 * (7 - s0) - 12
        if npre is None: s.npre = -2 * s0
        if fcnt is None:
            rest = 2 * (8 - s0) - f7 - s.npre
            s.fcnt = [rest // 7 + (1 if i < rest % 7 else 0) for i in range(7)]
        assert sum(s.fcnt) + s.npre + f7 == 2 * (8 - s0) and max(s.fcnt) <= 4
        if peel:
            if ecnt is None: s.ecnt = ([2] * (12 + s0) + [0] * 16)[:16]
            assert sum(s.ecnt) == 24 + 2 * s0
            ev = [(32 * b + g, 2 * (b - s0) + i) for b in range(-4, 0) for i, g in enumerate(s.dmagaps[2])]
            p = -2 * s0
            for b in range(16):
                for g in (s.dmagaps[s.ecnt[b]] if s.ecnt[b] else ()):
                    assert b >= {4: 3, 5: 7}.get(p >> 2, -1)
                    ev.append((32 * b + g, p)); p += 1
            s.ev = ev
        s.tmask = 0
        if amap and (len(amap) == 11 or wx):
            global BIASB
            BIASB = 3 * PITCH
            if len(amap) == 6: s.amap = amap = tuple(amap) + (14, 15, 16, 17, 18)
            assert sorted(amap) == list(range(8, 19)) and list(amap[6 + 2 * tx:]) == sorted(amap[6 + 2 * tx:]) and fast0
            s.umask = sum(1 << b for b in amap[8:]); s.tc = [0, 0]
            s.tmask = sum(1 << b for b in amap[6:])
        s.add_qb = tuple(q for q in range(4) if q not in s.msum_qb)
    def A(s, x): s.lines.append(x)

    def m0set(s, lds_off): return "s_add_u32 m0, s%d, %d" % (sWL, lds_off)
    def dma(s, isK, i):
        return "buffer_load_dwordx4 v%d, %s, s%d offen offset:%d %s lds" % (vDMA + i, R("s", sK if isK else sV, 4), sSOK if isK else sSOV, i * PITCH, s.ld)
    def adv(s, isK, plain=False):
        so = sSOK if isK else sSOV
        if s.tx and not plain:
            s.tc[isK] += 1
            t = s.tc[isK] & 3
            if t: return "s_xor_b32 s%d, s%d, %d" % (so, so, (1 << s.amap[6]) | ((1 << s.amap[7]) if t == 2 else 0))
            u = 94 + isK
            return "s_sub_u32 s%d, s%d, s96\ns_and_b32 s%d, s%d, s96\ns_add_u32 s%d, s%d, s97" % (u, u, u, u, so, u)
        if s.tmask: return "s_sub_u32 s%d, s%d, s92\ns_and_b32 s%d, s%d, s92" % (so, so, so, so)
        if s.rot: return "s_add_u32 s%d, s%d, 0x4000\ns_and_b32 s%d, s%d, 0x7ffff" % (so, so, so, so)
        return "s_add_u32 s%d, s%d, 0x4000" % (so, so)
    def kread(s, buf, slot, j, t):
        return "ds_read_b128 %s, v%d offset:%d" % (R("a", aK(buf, t), 4), vK, slot * SLOT + j * 256 + t * 64)
    def vread(s, buf, slot0, db, r, va=vV):
        ks, u = r >> 1, r & 1
        return "ds_read_b64_tr_b16 %s, v%d offset:%d" % (R("a", aV(buf, ks) + 2 * u, 2), va, (slot0 + (ks >> 1)) * SLOT + (2 * (ks & 1) + u) * 256 + db * 32)
    def qk(s, buf, qb, t, zero=False, rev=False, start=None):
        st = buf if s.sdb and not zero else 0
        if start is None: start = t == 0
        c = R("v", vS(qb, st), 4) if not start else ("0" if zero else R("v", vNM(qb), 4))
        if rev: t = 3 - t
        if s.qkswap: return "%s %s, %s, %s, %s" % (MF, R("v", vS(qb, st), 4), R("a", aQ(qb, t), 4), R("a", aK(buf, t), 4), c)
        return "%s %s, %s, %s, %s" % (MF, R("v", vS(qb, st), 4), R("a", aK(buf, t), 4), R("a", aQ(qb, t), 4), c)
    def pv(s, buf, pbuf, qb, db, ks):
        o = R("a", aO(qb, db), 4)
        if s.pvswap: return "%s %s, %s, %s, %s" % (MF, o, R("v", vP(pbuf, qb, ks), 4), R("a", aV(buf, ks), 4), o)
        return "%s %s, %s, %s, %s" % (MF, o, R("a", aV(buf, ks), 4), R("v", vP(pbuf, qb, ks), 4), o)
    def msum(s, pbuf, qb, ks):
        o = R("v", vL(qb), 4)
        return "%s %s, %s, %s, %s" % (MF, o, R("v", vONE, 4), R("v", vP(pbuf, qb, ks), 4), o)

    def msums(s, pbuf, qb):
        if not s.sp: return [s.msum(pbuf, qb, ks) for ks in range(4)]
        return ["v_smfmac_f32_16x16x64_bf16 %s, %s, %s, v%d" % (R("v", vL(qb), 4), R("v", vONE, 4), R("v", vP(pbuf, qb, 2 * h), 8), vIDX) for h in range(2)]

    def sm_table(s, first=False):
        t = []
        if first:
            for qb in range(4):
                for e in range(4):
                    t.append((4 * qb + 6 + e, "exp", qb, e))
                    if qb in s.add_qb: t.append((4 * qb + 7 + e, "add", qb, e))
                for h in range(2): t.append((4 * qb + 8 + 2 * h, "cvt", qb, h))
        else:
            addslot = {1: (16, 20, 26, 30), 3: (32, 36, 40, 44), 0: (10, 14, 18, 22), 2: (26, 30, 34, 38)}
            for j, qb in enumerate(s.qseq):
                for e in range(4): t.append((s.off + 8 * j + 7 + 2 * e, "exp", qb, e))
                for h in range(2): t.append((s.off + 8 * j + 10 + 4 * h, "cvt", qb, h))
            for qb in s.add_qb:
                for e in range(4): t.append((addslot[qb][e], "add", qb, e))
        return t
    def sm_op(s, kind, qb, i, wbuf, bb):
        S = vS(qb, bb & 1 if s.sdb else 0)
        if kind == "exp": return "v_exp_f32 v%d, v%d" % (S + i, S + i)
        if kind == "add": return "v_add_f32 v%d, v%d, v%d" % (vA(qb), vA(qb), S + i)
        d = vP(wbuf, qb, bb >> 1) + 2 * (bb & 1) + i
        if s.perm: return "v_perm_b32 v%d, v%d, v%d, s%d" % (d, S + 2 * i + 1, S + 2 * i, sSEL)
        return "v_cvt_pk_bf16_f32 v%d, v%d, v%d" % (d, S + 2 * i, S + 2 * i + 1)

    def seq(s, p, par):
        grp, piece, pp = (p % 16) >> 2, p & 3, (par + p // 16) & 1
        isK = grp in (0, 3)
        slot = (2 * pp + (4, 2, 3, 5)[grp]) & 3
        return (isK, slot * SLOT + (0 if isK else VBASE), piece)
    def dma_plan(s, par, b, first=False):
        if first:
            p0 = s.npre + sum(s.fcnt[:b])
            return [s.seq(p, par) for p in range(p0, p0 + (s.fcnt[b] if b < 7 else s.f7))]
        return [s.seq(2 * (b - s.s0) + i, par) for i in range(2)]

    def eseq(s, p):
        if p < 16: return s.seq(p, 1)
        return (False, ((p >> 2) - 4) * SLOT, p & 3)
    def after(s, pos, p):
        return sum(1 for g, q in s.ev if g <= pos and q > p)

    def block(s, par, b, do_qk=True, do_pv=True, first=False, last=False, extra=None, eb=None):
        n = 16 if first else 32
        sh = [[] for _ in range(n)]
        mem = [[] for _ in range(n)]
        va = [[] for _ in range(n)]
        flush = []
        if not s.novalu:
            tab = s.sm_table(first)
            if (do_qk or b == 0) and not (first and b == 0):
                pp = par if b else par ^ 1
                for g, kind, qb, i in tab:
                    if g >= n: va[g - n].append(s.sm_op(kind, qb, i, pp ^ 1, (b - 1) & 7))
            if do_qk:
                for g, kind, qb, i in tab:
                    if g < n: va[g].append(s.sm_op(kind, qb, i, par ^ 1, b))
                if first and b == 7:
                    keep = set((k, q, i) for g, k, q, i in s.sm_table(False) if g >= 32)
                    for g, kind, qb, i in sorted(tab):
                        if g >= n and (kind, qb, i) not in keep: flush.append(s.sm_op(kind, qb, i, par ^ 1, b))
        buf = b & 1
        nb = (b + 1) & 7
        npar = par if b < 7 else par ^ 1
        plan = s.dma_plan(par, b, first) if do_qk else []
        if eb is not None: plan = [s.eseq(q) for g, q in s.ev if g >> 5 == eb]
        gaps = s.dmagaps[len(plan)] if plan else ()
        if first: gaps = {0: (), 1: (5,), 2: (3, 11), 3: (1, 7, 13), 4: (1, 5, 9, 13)}[len(plan)]
        if first: dsg = [0, 2, 4, 6] + list(range(8, 16))
        else: dsg = [g for g in range(0, 32, 2) if g not in gaps or g in s.share]
        if do_qk:
            kslot = (2 if npar == 0 else 0) + (nb >> 2)
            for t in range(4):
                if not s.nolds and eb != 15: mem[dsg[t]].append(s.kread(buf ^ 1, kslot, nb & 3, t))
        if (do_pv and (do_qk or b < 7)) or (b == 7 and do_qk):
            for r in range(8):
                if not s.nolds: mem[dsg[4 + r]].append(s.vread(buf ^ 1, 0 if npar == 0 or eb == 15 else 2, nb, r, vV2 if eb == 15 else vV))
        if do_qk:
            for (isK, off, piece), g in zip(plan, gaps):
                if not s.nodma:
                    if piece == 0 or g == gaps[0] and s.instr == 3: sh[g - 1].append(s.m0set(off))
                    if first and s.lim1: mem[g].append("s_waitcnt vmcnt(%d)" % ((s.lim7 if b == 7 and s.lim7 else s.lim1) - 1))
                    if not first and s.lim2: sh[g].append("s_waitcnt vmcnt(%d)" % (s.lim2 - 1))
                    mem[g].append(s.dma(isK, piece))
                if piece == 3: sh[g + 1].append(s.adv(isK))
            if eb is not None:
                lastp = {}
                for g, q in s.ev: lastp[g if s.dist2 else g >> 5] = (g, q)
                for bb, (g, q) in lastp.items():
                    x = g + s.dist
                    if s.dist and x >> 5 == eb and eb < s.edist: sh[x & 31].append("s_waitcnt vmcnt(%d)" % s.after(x - 1, q))
            elif s.dist and not first:
                for g2 in (gaps if s.dist2 else gaps[-1:]):
                    x = (g2 + s.dist) % 32
                    cnt = sum(1 for k in range(1, s.dist) if (g2 + k) % 32 in gaps)
                    sh[x].append("s_waitcnt vmcnt(%d)" % cnt)
            if eb in (2, 6, 10, 14):
                w = "s_waitcnt vmcnt(%d) lgkmcnt(0)" % s.after(32 * eb + 31, {2: -1, 6: 11, 10: 15, 14: 23}[eb])
            elif b in (2, 6):
                w = "s_waitcnt vmcnt(%d) lgkmcnt(0)" % ((s.npre + sum(s.fcnt[:3]) if first else s.vm1) if b == 2 else s.vm2 - (s.f7 - 2 if first else 0))
            elif s.latev and not first and b != 7:
                w = "s_waitcnt lgkmcnt(8)"
            else:
                w = "s_waitcnt lgkmcnt(0)"
            if s.latev and not first and b not in (0, 3, 7):
                lv = 15 if s.qo else 3
                sh[lv].append("s_waitcnt lgkmcnt(%d)" % sum(1 for g in dsg[:12] if g < lv))
            if first and b == 6 and s.pre2:
                n0 = len(s.lines); s.dummy(s.pre2); flush += s.lines[n0:]; del s.lines[n0:]
            if flush: flush.append(w)
            else: sh[n - 1].append(w)
            if b in (3, 7):
                if not s.nobar: sh[0].insert(0, "s_barrier")
                if s.instr == 3:
                    sh[0].insert(1, "s_memrealtime s[72:73]\ns_memtime s[74:75]\ns_waitcnt lgkmcnt(0)\ns_mov_b32 m0, s76\ns_nop 1\nv_writelane_b32 v46, s72, m0\nv_writelane_b32 v47, s74, m0\ns_add_u32 s76, s76, 1")
        else:
            sh[n - 1].append("s_waitcnt lgkmcnt(0)")
        if s.instr == 4 and do_qk:
            if b == 7: sh[1].append("s_memrealtime s[72:73]")
            if b == 0 and not first:
                sh[1].append("s_sub_u32 s75, s72, s74")
                sh[2].append("s_mov_b32 s74, s72")
                sh[4].append("s_cmp_gt_i32 s75, 310\ns_cselect_b32 s75, 1, 0\ns_cselect_b32 s79, s72, s77")
                sh[5].append("s_add_u32 s76, s76, s75")
                sh[6].append("s_min_u32 s77, s77, s79")
        if last:
            sh[31 if any("s_add" in x for x in sh[31]) else 30].append("s_sub_u32 s%d, s%d, 1" % (sCNT, sCNT))
        ms = None
        if do_pv and do_qk and s.msum_qb:
            place = {4: {1: 0, 3: 1, 5: 2, 7: 3}, 2: {1: 0, 5: 1}}[len(s.msum_qb)]
            if b in place: ms = s.msums(par, s.msum_qb[place[b]])
            if s.smpl == 2 and len(s.msum_qb) == 4:
                x = s.msums(par, b >> 1); k = len(x) // 2
                ms = x[k * (b & 1): k * (b & 1) + k]
        for pos in range(n):
            m = None
            if first: m = s.qk(buf, pos >> 2, pos & 3, rev=s.qo == "rsn" and pos & 4)
            else:
                ch, k = pos >> 2, pos & 3
                isq, qb = [((1, 0), (0, 0), (1, 1), (0, 1), (1, 2), (0, 2), (1, 3), (0, 3)),
                           ((1, 0), (1, 1), (1, 2), (1, 3), (0, 0), (0, 1), (0, 2), (0, 3)),
                           ((1, 0), (1, 1), (0, 0), (0, 1), (1, 2), (1, 3), (0, 2), (0, 3))][s.order][ch]
                rev = s.snake and (qb & 1)
                if s.qo:
                    path = PATHS[s.qo if pos < 16 else s.po]
                    qb, k = path[pos & 15]
                    if pos < 16: m = s.qk(buf, qb, k, start=all(q != qb for q, _ in path[:pos]))
                    else: m = s.pv(buf, par, qb, b, k)
                elif isq:
                    if do_qk: m = s.qk(buf, qb, k, rev=rev)
                elif do_pv: m = s.pv(buf, par, qb, b, 3 - k if rev else k)
            if m: s.A(m)
            for o in sh[pos] + mem[pos] + va[pos]: s.A(o)
            if extra:
                for o in extra(pos): s.A(o)
            if s.pad and m: s.A("s_nop %d" % (s.pad - 1))
            if s.padn and not first and do_qk and (pos & 1) and (pos >> 1) % (16 // s.padn) == 0: s.A("s_nop 0")
            if ms is not None and pos == s.mspos:
                for x in ms: s.A(x)
        for o in flush: s.A(o)

    def tail2(s):
        assert s.pvswap and s.sp
        chains = [(qb, 0) for qb in range(4)] + [(qb, db) for qb in range(4) for db in (1, 2, 3)] + [(qb, db) for qb in range(4) for db in (4, 5, 6, 7)]
        vset = [("a", aV(0, 0)), ("a", aV(1, 0)), ("a", aK(0, 0)), ("a", aK(1, 0)), ("a", aV(0, 0)), ("v", 128), ("v", 144), ("v", 160)]
        reg = (0, 3, 1, 2)
        RB = (176, 184, 64, 72)
        RI = vE
        def mf(n, k):
            qb, db = chains[n]
            ks = 3 - k if n & 1 else k
            o = R("a", aO(qb, db), 4)
            return "%s %s, %s, %s, %s" % (MF, o, R("v", vP(1, qb, ks), 4), R(vset[db][0], vset[db][1] + 4 * ks, 4), o)
        def vrd(db, r):
            ks, u = r >> 1, r & 1
            return "ds_read_b64_tr_b16 %s, v%d offset:%d" % (R(vset[db][0], vset[db][1] + 4 * ks + 2 * u, 2), vV, (2 + (ks >> 1)) * SLOT + (2 * (ks & 1) + u) * 256 + db * 32)
        def wr(n, p):
            qb, db = chains[n]
            o = aO(qb, db) + 2 * p
            b = reg[qb] * (SLOT // 256) + 2 * p
            return "ds_write2st64_b32 v%d, a%d, a%d offset0:%d offset1:%d" % (vW + (db & 3), o, o + 1, b, b + 1)
        units = [(qb, h, i) for h in range(2) for qb in range(4) for i in range(2)]
        def rd(u, x):
            qb, h, i = units[u]
            return "ds_read_b128 %s, v%d offset:%d" % (R("v", RB[u % 4] + 4 * x, 4), (vOR, vBP + 1)[x], reg[qb] * SLOT + i * 512)
        def fin(u):
            qb, h, i = units[u]
            b = RB[u % 4]
            ops = []
            for j in range(4):
                ops += ["v_mul_f32 v%d, v%d, v%d" % (b + 2 * j + x, b + 2 * j + x, RI + 2 * qb + i) for x in range(2)]
                if j: ops.append("v_cvt_pk_bf16_f32 v%d, v%d, v%d" % (b + j - 1, b + 2 * j - 2, b + 2 * j - 1))
            ops.append("v_cvt_pk_bf16_f32 v%d, v%d, v%d" % (b + 3, b + 6, b + 7))
            ops.append("buffer_store_dwordx4 %s, v%d, %s, s%d offen offset:%d %s" % (R("v", b, 4), vOA, R("s", sO, 4), sQB + qb, i * 512 + h * 128, s.st))
            return ops
        M = [("s", x) for x in s.msums(1, 0) + s.msums(1, 1) + s.msums(1, 2)]
        for n in range(32):
            M += [((n, k), mf(n, k)) for k in range(4)]
            if n == 0: M += [("s", x) for x in s.msums(1, 3)]
        at = {t: g for g, (t, x) in enumerate(M) if t != "s"}
        NG = len(M)
        fixed = [[] for _ in range(NG + 8)]
        scal = [[] for _ in range(NG + 8)]
        left = [s.sm_op(k, q, i, 1, 7) for g, k, q, i in sorted(s.sm_table(False)) if g >= 32]
        for i, x in enumerate(left): fixed[i].append(x)
        scal[0].append("s_mov_b32 s%d, %s" % (sT, f32(s.thr)))
        wdone = {}
        for n in range(32):
            for p in range(2):
                g = at[(n + 1, s.wpos[p])] if n < 31 else NG
                fixed[g].append(wr(n, p)); wdone[n] = g
        scal[at[(3, s.wpos[0])]].append("s_waitcnt vmcnt(%d)" % (-2 * s.s0))
        scal[at[(4, s.wpos[0])]].append("s_waitcnt vmcnt(%d)" % max(0, -2 * s.s0 - 4))
        avail = [wdone[max(n for n in range(32) if chains[n][0] == qb and chains[n][1] >> 2 == h)] for qb, h, i in units]
        vq = []
        for db in range(1, 8):
            first = min(n for n in range(32) if chains[n][1] == db)
            order = range(8) if not first & 1 else (6, 7, 4, 5, 2, 3, 0, 1)
            vq += [(at[(3, 3)] if db == 4 else 0, vrd(db, r)) for r in order]
        misc = []
        for qb in range(4):
            e = (8, 10, 12, at[(2, 0)])[qb]
            misc += [(e, "v_add_f32 v%d, v%d, v%d" % (vL(qb), vL(qb), vL(qb) + 1)), (e + 1, "v_rcp_f32 v%d, v%d" % (vT + qb, vL(qb)))]
        for qb in range(4):
            misc += [(0, "ds_bpermute_b32 v%d, v%d, v%d offset:%d" % (RI + 2 * qb + i, vBP, vT + qb, 8 * i)) for i in range(2)]
        misc += [(0, "v_add_f32 v%d, v%d, v%d" % (vT + 5, vL(0), vL(1))), (0, "v_add_f32 v%d, v%d, v%d" % (vT + 6, vL(2), vL(3))),
                 (0, "v_add_f32 v%d, v%d, v%d" % (vT + 5, vT + 5, vT + 6)), (0, "v_cmp_nge_f32 vcc, s%d, v%d" % (sT, vT + 5))]
        T = []
        nrd = 0; rdat = {}; cur = 0; ops = fin(0); lastst = {}
        cost = lambda x: 2 if x.startswith(("v_exp", "v_rcp")) else 1
        for g in range(NG + 1):
            if g < NG: T.append(M[g][1])
            T += scal[g] + fixed[g]
            used = sum(cost(x) for x in fixed[g])
            budget = s.tb if g < NG else 1000
            nv = 0
            while used < budget:
                u = nrd >> 1
                if u < 16 and avail[u] <= g and (u < 4 or lastst.get(u - 4, 1000) < g or g == NG and cur > u - 4):
                    T.append(rd(u, nrd & 1)); rdat[u] = g; nrd += 1
                elif misc and misc[0][0] <= g and (nv or not vq or len(vq) < 36):
                    x = misc.pop(0)[1]; T.append(x); used += cost(x) - 1
                elif any(e <= g for e, x in vq) and nv < s.tnv:
                    T.append(vq.pop([e <= g for e, x in vq].index(True))[1]); nv += 1
                elif cur < 16 and nrd >= 2 * cur + 2 and (rdat[cur] + s.tlat <= g or g == NG) and not misc:
                    T.append(ops.pop(0))
                    if not ops:
                        lastst[cur] = g; cur += 1
                        if cur < 16: ops = fin(cur)
                else: break
                used += 1
            if s.tst and g < NG and M[g][0] in [(n, 3) for n in (3, 11, 19, 27, 31)]:
                j = (3, 11, 19, 27, 31).index(M[g][0][0])
                T.append("s_memtime s[%d:%d]" % (48 + 2 * j, 49 + 2 * j))
        assert cur == 16 and not vq and not misc
        for qb in range(4):
            assert T.index(rd(2 * qb + 1, 1)) < T.index(wr(16 + 4 * qb, 0))
        return T

    def tail3(s):
        assert s.pvswap and s.sp and not s.ones1
        if s.tord == 0: chains = [(qb, 0) for qb in range(4)] + [(qb, db) for qb in range(4) for db in (1, 2, 3)]
        else: chains = [(qb, db) for db in (0, 1) for qb in range(4)] + [(qb, db) for qb in range(4) for db in (2, 3)]
        chains += [(qb, db) for qb in range(4) for db in (4, 5, 6, 7)]
        vset = [("a", aV(0, 0)), ("a", aV(1, 0)), ("a", aK(0, 0)), ("a", aK(1, 0)), ("a", aV(0, 0)), ("v", 128), ("v", 144), ("v", 160)]
        reg = (0, 3, 1, 2)
        def lo(qb, h): return (2 + (qb >> 1)) * SLOT + (qb & 1) * 2048 if s.peel else reg[qb] * SLOT + h * 2048
        X = (64, 72)
        W = (176, 184, 100, 108)
        def mf(n, k):
            qb, db = chains[n]
            ks = 3 - k if n & 1 else k
            o = R("a", aO(qb, db), 4)
            return "%s %s, %s, %s, %s" % (MF, o, R("v", vP(1, qb, ks), 4), R(vset[db][0], vset[db][1] + 4 * ks, 4), o)
        def vrd(db, r):
            ks, u = r >> 1, r & 1
            return "ds_read_b64_tr_b16 %s, v%d offset:%d" % (R(vset[db][0], vset[db][1] + 4 * ks + 2 * u, 2), vV2 if s.peel else vV, ((0 if s.peel else 2) + (ks >> 1)) * SLOT + (2 * (ks & 1) + u) * 256 + db * 32)
        M = [("s", x) for x in s.msums(1, 0) + s.msums(1, 1) + s.msums(1, 2)]
        for n in range(32):
            M += [((n, k), mf(n, k)) for k in range(4)]
            if n == 0: M += [("s", x) for x in s.msums(1, 3)]
        at = {t: g for g, (t, x) in enumerate(M) if t != "s"}
        NG = len(M)
        fixed = [[] for _ in range(NG + 1)]
        scal = [[] for _ in range(NG + 1)]
        left = [s.sm_op(k, q, i, 1, 7) for g, k, q, i in sorted(s.sm_table(False)) if g >= 32]
        for i, x in enumerate(left): fixed[i].append(x)
        scal[0].append("s_mov_b32 s%d, %s" % (sT, f32(s.thr)))
        rinv = {}
        for qb in range(4):
            e = (6, 8, 10, at[(2, 0)])[qb]
            fixed[e].append("v_add_f32 v%d, v%d, v%d" % (vL(qb), vL(qb), vL(qb) + 1))
            fixed[e + 1].append("v_rcp_f32 v%d, v%d" % (vT + qb, vL(qb)))
            for gq in range(1, 4):
                fixed[e + 1 + 2 * gq].append("v_mov_b32_dpp v%d, v%d row_shl:%d row_mask:0x%x bank_mask:0xf" % (vT + qb, vT + qb, 4 * gq, 1 << gq))
            rinv[qb] = e + 9
        e = at[(3, 0)]
        fixed[e] += ["v_add_f32 v%d, v%d, v%d" % (vT + 5, vL(0), vL(1)), "v_add_f32 v%d, v%d, v%d" % (vT + 6, vL(2), vL(3))]
        fixed[e + 1].append("v_add_f32 v%d, v%d, v%d" % (vT + 5, vT + 5, vT + 6))
        fixed[e + 2].append("v_cmp_nge_f32 vcc, s%d, v%d" % (sT, vT + 5))
        if not s.peel: scal[at[(5, 0)]].append("s_waitcnt vmcnt(%d)" % max(0, -2 * s.s0 - 4))
        vq = []
        for db in range(1, 8):
            first = min(n for n in range(32) if chains[n][1] == db)
            order = range(8) if not first & 1 else (6, 7, 4, 5, 2, 3, 0, 1)
            vq += [(at[(3, 3)] + 1 if db == 4 else 0, at[(first, j >> 1)], vrd(db, r)) for j, r in enumerate(order)]
        groups = [(qb, h) for h in range(2) for qb in range(4)]
        units = []
        for gi, (qb, h) in enumerate(groups):
            for p in range(2): units.append((max(chains.index((qb, 4 * h + 2 * p + e2)) for e2 in range(2)), gi, p))
        units.sort()
        cq = []
        for ui, (_, gi, p) in enumerate(units):
            qb, h = groups[gi]
            w = W[gi & 3]
            for e2 in range(2):
                db = 4 * h + 2 * p + e2
                rdy = max(at[(chains.index((qb, db)), 3)] + 1 + s.clag, rinv[qb])
                x = X[ui & 1] + 4 * e2
                cq += [(rdy, "v_accvgpr_read_b32 v%d, a%d" % (x + r, aO(qb, db) + r), []) for r in range(4)]
                cq += [(rdy, "v_mul_f32_dpp v%d, v%d, v%d row_newbcast:%d row_mask:0xf bank_mask:0xf" % (x + r, vT + qb, x + r, r), []) for r in range(4)]
            for r in range(4):
                rel = []
                if p:
                    rel.append(("w", "ds_write_b64 v%d, %s offset:%d" % (vW, R("v", w + 2 * r, 2), lo(qb, h) + r * 128), None))
                    if r & 1:
                        i = r >> 1
                        rel += [("r", "ds_read_b64_tr_b16 %s, v%d offset:%d" % (R("a", aO(qb, 4 * h) + 4 * i + 2 * x, 2), (vOR, vBP + 1)[x], lo(qb, h) + i * 256), (gi, i) if x else None) for x in range(2)]
                cq.append((rdy, "v_cvt_pk_bf16_f32 v%d, v%d, v%d" % (w + 2 * r + p, X[ui & 1] + r, X[ui & 1] + 4 + r), rel))
        def st(gi, i):
            qb, h = groups[gi]
            return "buffer_store_dwordx4 %s, v%d, %s, s%d offen offset:%d %s" % (R("a", aO(qb, 4 * h) + 4 * i, 4), vOA, R("s", sO, 4), sQB + qb, i * 512 + h * 128, s.st)
        T = []; sq = []; oq = []
        cost = lambda x: 2 if x.startswith(("v_exp", "v_rcp")) else 1
        def popo(g):
            k, o, tag = oq.pop(0); T.append(o)
            if tag: sq.append((g + s.tlat, st(*tag)))
            return k
        for g in range(NG):
            T.append(M[g][1])
            T += scal[g]
            used = 0
            ok = [e <= g for e, d, x in vq]
            need = max([j + 1 - (d - s.vlat - g) for j, (e, d, x) in enumerate(vq)] + [0])
            if any(ok) and need >= 1:
                for _ in range(min(2, need)):
                    ok = [e <= g for e, d, x in vq]
                    if any(ok): T.append(vq.pop(ok.index(True))[2]); used += 1
            elif sq and sq[0][0] <= g and g >= s.sfrom and not (oq and s.sfrom and g < NG - s.sprio): T.append(sq.pop(0)[1]); used += s.cst
            elif oq:
                k = popo(g); used += 3 if k == "w" else 1
                if k == "r" and oq and oq[0][0] == "r": popo(g); used += 1
            elif any(ok):
                T.append(vq.pop(ok.index(True))[2]); used += 1
                ok = [e <= g for e, d, x in vq]
                if any(ok) and not fixed[g] and not (cq and cq[0][0] <= g): T.append(vq.pop(ok.index(True))[2]); used += 1
            T += fixed[g]
            used += sum(cost(x) for x in fixed[g])
            budget = s.tb[g % len(s.tb)] if isinstance(s.tb, tuple) else s.tb
            if s.tad:
                nr = next((j for j, x in enumerate(cq) if x[0] > g), len(cq))
                nx = cq[nr][0] - g if nr < len(cq) else NG - g
                budget = max(2, min(s.tb, used + -(-nr // max(1, min(nx + s.tad - 1, NG - g)))))
            while used < budget and cq and cq[0][0] <= g:
                e, o, rel = cq.pop(0); T.append(o); oq += rel; used += 1
            if s.tst and M[g][0] in [(n, 3) for n in (3, 11, 19, 27, 31)]:
                j = (3, 11, 19, 27, 31).index(M[g][0][0])
                T.append("s_memtime s[%d:%d]" % (48 + 2 * j, 49 + 2 * j))
        while oq: popo(NG)
        for e, o, rel in cq: T.append(o); oq += rel
        oq.sort(key=lambda x: x[0] == "r")
        while oq: popo(NG)
        T += [x for g, x in sq]
        assert not vq
        for db in range(1, 8):
            n = min(n for n in range(32) if chains[n][1] == db)
            assert max(T.index(vrd(db, r)) for r in range(8)) < T.index(mf(n, 3))
        wrs = [k for k, x in enumerate(T) if x.startswith("ds_write_b64")]
        cvs = [k for k, x in enumerate(T) if x.startswith("v_cvt_pk")]
        for gi in range(4): assert wrs[4 * gi + 3] < min(k for k in cvs if T[k].split()[1] == "v%d," % W[gi] and k > wrs[4 * gi])
        return T

    def dummy(s, n):
        for i in range(n):
            s.A("%s v[120:123], v[%d:%d], v[%d:%d], %s" % (MF, 104 + 4 * (i & 1), 107 + 4 * (i & 1), 112 + 4 * ((i >> 1) & 1), 115 + 4 * ((i >> 1) & 1), "v[120:123]" if i & 3 else "0"))
    def stamp(s, idx, force=False):
        if s.tst and idx < 5: return
        if s.pst and not force: return
        if s.stamps: s.A("%s s[%d:%d]" % ("s_memrealtime" if s.stamps == 2 else "s_memtime", 48 + 2 * idx, 49 + 2 * idx))

    def build(s):
        A = s.A
        A("; @launch grid=(256,1,1) block=(256,1,1) lds=%d" % LDS_BYTES)
        A('.amdgcn_target "amdgcn-amd-amdhsa--gfx950"')
        A(".text")
        A(".globl %s\n.p2align 8\n.type %s,@function\n%s:" % (KN, KN, KN))
        A("s_cmp_ge_u32 s2, 256\ns_cbranch_scc1 L_end")
        if s.stamps: A("s_memrealtime s[40:41]\ns_memtime s[44:45]")
        A("s_load_dwordx4 s[24:27], s[0:1], 0\ns_load_dwordx4 s[28:31], s[0:1], 16")
        if s.stamps: A("s_load_dwordx2 s[64:65], s[0:1], 40")
        if s.warm:
            A("s_getpc_b64 s[36:37]\nL_pc:")
            if s.warm2:
                A("v_lshlrev_b32 v1, 6, v0\nglobal_load_dword v11, v1, s[36:37]")
                A("v_lshlrev_b32 v38, 6, v0\nv_add_u32 v38, 16384, v38\nv_min_u32 v38, L_end-L_pc, v38\ns_mov_b64 s[86:87], s[36:37]")
            else:
                A("v_lshlrev_b32 v1, 7, v0\nv_min_u32 v1, L_end-L_pc, v1\nglobal_load_dword v11, v1, s[36:37]")
        A("v_lshrrev_b32 v1, 6, v0\nv_and_b32 v0, 63, v0\ns_nop 0\nv_readfirstlane_b32 s%d, v1" % sW)
        A("v_lshrrev_b32 v20, 4, v0\nv_and_b32 v21, 15, v0")
        A("s_mul_i32 s%d, s%d, %d" % (sWL, sW, 4 * PITCH))
        if s.amap:
            assert s.tmask or sorted(s.amap) == list(range(8, 14))
            A("s_and_b32 s%d, s%d, 1\ns_lshl_b32 s%d, s%d, %d\ns_lshr_b32 s%d, s%d, 1\ns_lshl_b32 s%d, s%d, %d\ns_add_u32 s%d, s%d, s%d" % (sT, sW, sT, sT, s.amap[4], sT + 1, sW, sT + 1, sT + 1, s.amap[5], sT, sT, sT + 1))
            if s.amap[:2] == (8, 9): A("v_lshlrev_b32 v22, 4, v0")
            else: A("v_and_b32 v22, 1, v20\nv_lshlrev_b32 v22, %d, v22\nv_lshl_add_u32 v22, v21, 4, v22\nv_lshrrev_b32 v23, 1, v20\nv_lshl_add_u32 v22, v23, %d, v22" % s.amap[:2])
            A("v_add_u32 v22, s%d, v22" % sT)
        elif s.lin:
            A("s_lshl_b32 s%d, s%d, 12\nv_lshlrev_b32 v22, 4, v0\nv_add_u32 v22, s%d, v22" % (sT, sW, sT))
        else:
            A("v_lshlrev_b32 v22, 12, v20\nv_lshl_add_u32 v22, v21, 4, v22")
            A("s_lshr_b32 s%d, s%d, 1\ns_lshl_b32 s%d, s%d, 11\ns_and_b32 s%d, s%d, 1\ns_lshl_b32 s%d, s%d, 9\ns_add_u32 s%d, s%d, s%d" % (sT, sW, sT, sT, sT + 1, sW, sT + 1, sT + 1, sT, sT, sT + 1))
            A("v_add_u32 v22, s%d, v22" % sT)
        for i in range(4):
            goff = i * 1024 if s.lin else (4 * (i & 1) + (i >> 1)) * 256
            if s.amap: goff = ((i & 1) << s.amap[2]) + ((i >> 1) << s.amap[3])
            assert goff - PITCH * i + BIASB >= 0
            if s.tmask:
                if i == 0:
                    A("s_mov_b32 s91, 0\ns_mov_b32 s92, %d\ns_mov_b32 s93, 0" % s.tmask)
                    for wb, ab in s.wx:
                        d = 91 if ab in s.amap[6:] else 93
                        A("s_bfe_u32 s%d, s2, %d\ns_lshl_b32 s%d, s%d, %d\ns_xor_b32 s%d, s%d, s%d" % (sT, wb | 1 << 16, sT, sT, ab, d, d, sT))
                A("v_add_u32 v%d, %d, v22\nv_xor_b32 v%d, s93, v%d\nv_add_u32 v%d, %d, v%d" % (vDMA + i, goff, vDMA + i, vDMA + i, vDMA + i, BIASB - PITCH * i, vDMA + i))
                continue
            A("v_add_u32 v%d, %d, v22" % (vDMA + i, goff - PITCH * i + BIASB))
        A("s_lshl_b32 s%d, s%d, 14" % (sT, sW))
        A("v_lshlrev_b32 v23, 2, v20\nv_xor_b32 v23, v23, v21\nv_lshlrev_b32 v23, 4, v23\nv_lshl_add_u32 v23, v20, 8, v23\nv_add_u32 v%d, s%d, v23" % (vQA, sT))
        if s.newtail == 3:
            A("v_bfe_u32 v23, v0, 3, 1\nv_lshl_add_u32 v23, v20, 2, v23\nv_and_b32 v24, 3, v0\nv_lshlrev_b32 v24, 5, v24\nv_lshl_add_u32 v23, v23, 8, v24")
            A("v_bfe_u32 v24, v0, 2, 1\nv_lshl_add_u32 v23, v24, 4, v23\nv_add_u32 v%d, s%d, v23" % (vOA, sT))
        elif s.newtail == 2:
            A("v_bfe_u32 v23, v0, 3, 1\nv_lshl_add_u32 v23, v20, 2, v23\nv_lshlrev_b32 v%d, 2, v23\nv_and_b32 v24, 7, v0\nv_lshlrev_b32 v24, 4, v24\nv_lshl_add_u32 v23, v23, 8, v24\nv_add_u32 v%d, s%d, v23" % (vBP, vOA, sT))
        elif s.operm:
            A("v_lshrrev_b32 v23, 3, v0\nv_and_b32 v24, 3, v0\nv_lshlrev_b32 v24, 5, v24\nv_lshl_add_u32 v23, v23, 8, v24\nv_bfe_u32 v24, v0, 2, 1\nv_lshl_add_u32 v23, v24, 4, v23\nv_add_u32 v%d, s%d, v23" % (vOA, sT))
        else:
            A("v_lshrrev_b32 v23, 3, v0\nv_and_b32 v24, 7, v0\nv_lshlrev_b32 v24, 4, v24\nv_lshl_add_u32 v23, v23, 8, v24\nv_add_u32 v%d, s%d, v23" % (vOA, sT))
        for qb in range(4): A("s_mov_b32 s%d, %d" % (sQB + qb, qb * 4096))
        if s.fast0:
            assert not s.hmap and not s.rot
            A("s_lshl_b32 s88, s2, 19\ns_sub_u32 s88, s88, %d\ns_subb_u32 s89, 0, 0\ns_lshl_b32 s90, s2, 16" % BIASB)
            for d, n in ((sK, 0x80000 + BIASB), (sV, 0x80000 + BIASB), (sQ, 0x10000), (sO, 0x10000)): A("s_mov_b32 s%d, %d\ns_mov_b32 s%d, 0x20000" % (d + 2, n, d + 3))
            A("s_mov_b32 s%d, 0" % sPASS)
            for qb in range(4): A("v_mov_b32 v%d, 0xff800000" % vM(qb))
            A("L_start:")
            A("s_mov_b32 s%d, %s\ns_mov_b32 s%d, %s" % ((sSOK, "s91", sSOV, "s91") if s.tmask else (sSOK, "0", sSOV, "0")))
            if s.tx: A("s_mov_b32 s96, %d\ns_and_b32 s94, s91, s96\ns_mov_b32 s95, s94\ns_andn2_b32 s97, s91, s96" % s.umask)
            A(s.m0set(0))
        if s.pst == 1: s.stamp(0, True)
        A("s_waitcnt lgkmcnt(0)")
        if s.pst == 1: s.stamp(1, True)
        hd = 2
        if s.hmap == 1:
            hd = 33; A("s_xor_b32 s33, s2, 1")
        if s.hmap == 2:
            hd = 33; A("s_and_b32 s33, s2, 7\ns_lshl_b32 s33, s33, 5\ns_lshr_b32 s36, s2, 3\ns_add_u32 s33, s33, s36")
        if s.fast0:
            A("s_add_u32 s%d, s26, s88\ns_addc_u32 s%d, s27, s89" % (sK, sK + 1))
        else:
            A("s_lshl_b32 s%d, s%d, 19" % (sT, hd))
            A("s_sub_u32 s26, s26, %d\ns_subb_u32 s27, s27, 0\ns_sub_u32 s28, s28, %d\ns_subb_u32 s29, s29, 0" % (BIASB, BIASB))
            A("s_add_u32 s%d, s26, s%d\ns_addc_u32 s%d, s27, 0\ns_mov_b32 s%d, %d\ns_mov_b32 s%d, 0x20000" % (sK, sT, sK + 1, sK + 2, 0x80000 + BIASB, sK + 3))
            A("s_add_u32 s%d, s28, s%d\ns_addc_u32 s%d, s29, 0\ns_mov_b32 s%d, %d\ns_mov_b32 s%d, 0x20000" % (sV, sT, sV + 1, sV + 2, 0x80000 + BIASB, sV + 3))
            A("s_lshl_b32 s%d, s%d, 16" % (sT, hd))
            A("s_add_u32 s%d, s24, s%d\ns_addc_u32 s%d, s25, 0\ns_mov_b32 s%d, 0x10000\ns_mov_b32 s%d, 0x20000" % (sQ, sT, sQ + 1, sQ + 2, sQ + 3))
            A("s_add_u32 s%d, s30, s%d\ns_addc_u32 s%d, s31, 0\ns_mov_b32 s%d, 0x10000\ns_mov_b32 s%d, 0x20000" % (sO, sT, sO + 1, sO + 2, sO + 3))
            A("s_mov_b32 s%d, 0" % sPASS)
            for qb in range(4): A("v_mov_b32 v%d, 0xff800000" % vM(qb))
            A("L_start:")
            if s.rot: A("s_mul_i32 s%d, s2, %d\ns_and_b32 s%d, s%d, 31\ns_lshl_b32 s%d, s%d, 14\ns_mov_b32 s%d, s%d" % (sSOK, s.rot, sSOK, sSOK, sSOK, sSOK, sSOV, sSOK))
            else: A("s_mov_b32 s%d, 0\ns_mov_b32 s%d, 0" % (sSOK, sSOV))
        def group(isK, off, n=4):
            return [s.m0set(off), "s_nop 0"] + [s.dma(isK, i) for i in range(n)] + ([s.adv(isK, True)] if n == 4 else [])
        PERM = (0, 3, 1, 2)
        def qgroup(qb):
            out = []
            for i in range(4):
                out.append(["s_add_u32 m0, s%d, %d" % (sWL, VBASE + qb * SLOT + i * PITCH - PERM[i] * 1024), "s_nop 0",
                            "buffer_load_dwordx4 v%d, %s, s%d offen offset:%d %s lds" % (vQA, R("s", sQ, 4), sQB + qb, PERM[i] * 1024, s.qld)])
            return out
        def pieces(isK, off, n=4):
            out = [[s.dma(isK, i)] for i in range(n)]
            if n: out[0] = [s.m0set(off), "s_nop 0"] + out[0]
            if n == 4: out[3].append(s.adv(isK))
            return out
        Q = [("K0", p) for p in pieces(True, 0)]
        for qb in range(4): Q += [("Q%d" % qb, p) for p in qgroup(qb)]
        Q += [("K1", p) for p in pieces(True, SLOT)]
        for p in range(s.npre):
            isK, off, piece = s.seq(p, 1)
            ops = ([s.m0set(off), "s_nop 0"] if piece == 0 else []) + [s.dma(isK, piece)] + ([s.adv(isK)] if piece == 3 else [])
            Q.append((("K2", "V0", "V1", "K3")[p >> 2], ops))
        if s.fast0:
            Q[0] = ("K0", Q[0][1][2:])
            Q[0][1].append("s_add_u32 s%d, s24, s90\ns_addc_u32 s%d, s25, 0" % (sQ, sQ + 1))
        if s.vtlb: Q.insert(s.vtlb, ("X", ["buffer_load_dword v127, v%d, %s, 0 offen" % (vDMA, R("s", sV, 4))]))
        if s.otlb: Q.insert(s.otlb, ("X", ["buffer_load_dword v10, v%d, %s, 0 offen" % (vOA, R("s", sO, 4))]))
        st = {"n": 0}
        def issue(k=1):
            for _ in range(k):
                if st["n"] < len(Q):
                    if s.lim and st["n"] >= s.lim: A("s_waitcnt vmcnt(%d)" % (s.lim - 1))
                    for x in Q[st["n"]][1]: A(x)
                    st["n"] += 1
        def waitfor(tag):
            last = max(i for i, x in enumerate(Q) if x[0] == tag)
            if st["n"] <= last: issue(last + 1 - st["n"])
            A("s_waitcnt vmcnt(%d)" % (st["n"] - 1 - last))
        if s.pst == 1: s.stamp(2, True)
        issue(s.nfirst)
        if s.fast0:
            assert s.nfirst <= min(x for x in (s.otlb, s.vtlb, 20) if x)
            A("s_add_u32 s%d, s28, s88\ns_addc_u32 s%d, s29, s89" % (sV, sV + 1))
            A("s_add_u32 s%d, s30, s90\ns_addc_u32 s%d, s31, 0" % (sO, sO + 1))
        if s.pst == 1: s.stamp(3, True)
        A("v_and_b32 v22, 3, v0\nv_bfe_u32 v23, v0, 2, 1\nv_lshl_add_u32 v22, v22, 1, v23\nv_and_b32 v23, 8, v0\nv_add_u32 v22, v22, v23")
        A("v_mul_u32_u24 v22, %d, v22\nv_lshrrev_b32 v23, 4, v0\nv_lshl_add_u32 v%d, v23, 4, v22" % (PITCH, vK))
        A("v_bfe_u32 v22, v0, 2, 2\nv_bfe_u32 v23, v0, 4, 1\nv_lshl_add_u32 v22, v22, 1, v23\nv_lshrrev_b32 v23, 5, v0\nv_lshl_add_u32 v22, v23, 3, v22")
        A("v_mul_u32_u24 v22, %d, v22\nv_and_b32 v23, 3, v0\nv_lshl_add_u32 v22, v23, 3, v22\nv_add_u32 v%d, %d, v22" % (PITCH, vV, VBASE))
        A("v_bfe_u32 v22, v0, 2, 2\nv_lshlrev_b32 v22, 1, v22\nv_mov_b32 v23, 0x78\nv_lshrrev_b32 v22, v22, v23\nv_and_b32 v22, 3, v22")
        A("v_mul_u32_u24 v22, %d, v22\nv_and_b32 v23, 3, v0\nv_lshl_add_u32 v22, v23, 8, v22\nv_lshrrev_b32 v24, 4, v0\nv_lshl_add_u32 v22, v24, 4, v22" % PITCH)
        A("v_add_u32 v22, s%d, v22\nv_add_u32 v22, %d, v22" % (sWL, VBASE))
        for t in range(4): A("v_xor_b32 v24, %d, v23\nv_lshl_add_u32 v%d, v24, 6, v22" % (t, vQR + t))
        if s.newtail == 3:
            sh = 4 if s.w128 else 3
            A("v_lshrrev_b32 v%d, 4, v0\nv_lshlrev_b32 v%d, 9, v%d\nv_add_u32 v%d, s%d, v%d" % (vE, vE + 1, vE, vE + 1, sWL, vE + 1))
            A("v_and_b32 v%d, 1, v%d\nv_lshlrev_b32 v%d, 2, v%d" % (vE, vE, vE, vE))
            A("v_and_b32 v%d, 15, v0\nv_xor_b32 v%d, v%d, v%d\nv_lshl_add_u32 v%d, v%d, %d, v%d" % (vE + 2, vE + 2, vE + 2, vE, vW, vE + 2, sh, vE + 1))
            A("v_bfe_u32 v%d, v0, 1, 1\nv_lshl_add_u32 v%d, v%d, %d, v%d" % (vE + 2, vE + 1, vE + 2, 3 if s.w128 else 7, vE + 1))
            A("v_and_b32 v%d, 1, v0\nv_bfe_u32 v%d, v0, 2, 2\nv_lshl_add_u32 v%d, v%d, 3, v%d\nv_xor_b32 v%d, v%d, v%d" % (vE + 2, vE + 3, vE + 2, vE + 2, vE + 3, vE + 2, vE + 2, vE))
            A("v_lshl_add_u32 v%d, v%d, %d, v%d\nv_xor_b32 v%d, 4, v%d\nv_lshl_add_u32 v%d, v%d, %d, v%d" % (vOR, vE + 2, sh, vE + 1, vE + 2, vE + 2, vBP + 1, vE + 2, sh, vE + 1))
        elif s.newtail == 2:
            A("v_bfe_u32 v%d, v0, 4, 1\nv_mul_u32_u24 v%d, 5, v%d\nv_lshrrev_b32 v%d, 4, v0\nv_lshlrev_b32 v%d, 10, v%d" % (vE, vE, vE, vE + 1, vE + 1, vE + 1))
            A("v_and_b32 v%d, 3, v0\nv_lshl_add_u32 v%d, v%d, 2, v%d\nv_add_u32 v%d, s%d, v%d" % (vE + 2, vE + 1, vE + 2, vE + 1, vE + 1, sWL, vE + 1))
            A("v_bfe_u32 v%d, v0, 2, 2\nv_xor_b32 v%d, v%d, v%d" % (vE + 2, vE + 2, vE + 2, vE))
            for e in range(4): A("v_xor_b32 v%d, %d, v%d\nv_lshl_add_u32 v%d, v%d, 4, v%d" % (vW + e, 4 * e, vE + 2, vW + e, vW + e, vE + 1))
            A("v_and_b32 v%d, 7, v0\nv_lshlrev_b32 v%d, 1, v%d\nv_xor_b32 v%d, v%d, v%d" % (vE + 2, vE + 2, vE + 2, vE + 2, vE + 2, vE))
            A("v_lshlrev_b32 v%d, 6, v%d\nv_add_u32 v%d, s%d, v%d" % (vE + 1, vBP, vE + 1, sWL, vE + 1))
            A("v_lshl_add_u32 v%d, v%d, 4, v%d\nv_xor_b32 v%d, 1, v%d\nv_lshl_add_u32 v%d, v%d, 4, v%d" % (vOR, vE + 2, vE + 1, vE + 2, vE + 2, vBP + 1, vE + 2, vE + 1))
        else:
            A("v_and_b32 v%d, 15, v0\nv_lshrrev_b32 v%d, 5, v0\nv_xor_b32 v%d, v%d, v%d\nv_lshlrev_b32 v%d, 4, v%d" % (vE, vE + 1, vE + 1, vE + 1, vE, vE + 1, vE + 1))
            A("v_lshl_add_u32 v%d, v%d, 8, v%d\nv_bfe_u32 v%d, v0, 4, 1\nv_lshl_add_u32 v%d, v%d, 3, v%d" % (vE + 1, vE, vE + 1, vE, vE + 1, vE, vE + 1))
            for db in range(8): A("v_xor_b32 v%d, %d, v%d\nv_add_u32 v%d, s%d, v%d" % (vW + db, db * 32, vE + 1, vW + db, sWL, vW + db))
            A("v_lshrrev_b32 v%d, 3, v0\nv_and_b32 v%d, 7, v0\nv_xor_b32 v%d, v%d, v%d\nv_lshlrev_b32 v%d, 4, v%d" % (vE, vE + 1, vE + 1, vE + 1, vE, vE + 1, vE + 1))
            A("v_lshl_add_u32 v%d, v%d, 8, v%d\nv_add_u32 v%d, s%d, v%d" % (vE + 1, vE, vE + 1, vOR, sWL, vE + 1))
        c = 1.4426950408889634 / (128.0 ** 0.5)
        A("s_mov_b32 s%d, %s\ns_mov_b32 s%d, %s" % (sC, f32(c), sC + 1, f32(c)))
        A("s_mov_b32 s%d, %d" % (sCNT, 6 if s.peel else 7))
        if s.peel: A("v_subrev_u32 v%d, %d, v%d" % (vV2, VBASE, vV))
        A("s_mov_b32 s%d, 0x07060302" % sSEL)
        if s.sp:
            A("v_and_b32 v22, %d, v0\nv_cmp_gt_u32 vcc, 2, v22\nv_mov_b32 v23, 0x3f803f80\nv_and_b32 v22, 1, v0\nv_cndmask_b32 v%d, 0, v23, vcc" % (15 if s.ones1 else 3, vONE))
            A("v_cmp_eq_u32 vcc, 0, v22\nv_mov_b32 v23, 0x44444444\nv_mov_b32 v24, 0xeeeeeeee\nv_cndmask_b32 v%d, v24, v23, vcc" % vIDX)
        elif s.ones4:
            A("v_and_b32 v22, 3, v0\nv_cmp_eq_u32 vcc, 0, v22\nv_mov_b32 v23, 0x3f803f80\ns_nop 0\nv_cndmask_b32 v%d, 0, v23, vcc" % vONE)
        else:
            A("v_mov_b32 v%d, 0x3f803f80" % vONE)
        for i in range(1, 4): A("v_mov_b32 v%d, v%d" % (vONE + i, vONE))
        if s.pst == 1: s.stamp(4, True)
        for i in range(128): A("v_accvgpr_write_b32 a%d, 0" % i)
        for i in range(16): A("v_mov_b32 v%d, 0" % (vL(0) + i))
        for qb in range(4): A("v_mov_b32 v%d, 0" % vA(qb))
        s.stamp(0)
        if s.pst == 1:
            s.stamp(5, True)
            A("s_waitcnt vmcnt(%d)" % (s.nfirst - 1))
            s.stamp(6, True)
        if s.pre0 or s.pre1 or s.pre2:
            A("s_mov_b32 s85, 0x9e3779b1\nv_add_u32 v100, 1, v0")
            for i in range(16):
                A("v_mul_lo_u32 v100, v100, s85\nv_and_b32 v%d, 0xbfffbfff, v100\nv_or_b32 v%d, 0x3c003c00, v%d" % (104 + i, 104 + i, 104 + i))
            s.dummy(s.pre0)
        issue(s.nsecond - st["n"])
        for qb in range(4):
            if qb and s.pre1: s.dummy(s.pre1)
            waitfor("Q%d" % qb)
            if qb == 0: s.stamp(1)
            for t in range(4): A("ds_read_b128 %s, v%d offset:%d" % (R("v", 128 + 4 * t, 4), vQR + t, qb * SLOT))
            if qb == 0:
                A("s_barrier")
                for t in range(4): A(s.kread(0, 0, 0, t))
                if s.prepass == 2:
                    for t in range(4): A(s.kread(1, 0, 1, t))
            for f in range(4):
                b = 128 + 4 * f
                if f < s.nq[qb] and st["n"] < len(Q) and Q[st["n"]][0] not in ["V%d" % x for x in range(qb, 4)]: issue(1)
                A("s_waitcnt lgkmcnt(%d)" % (3 - f + (4 * s.prepass if qb == 0 else 0)))
                for i in range(4):
                    A("v_lshlrev_b32 v%d, 16, v%d\nv_and_b32 v%d, 0xffff0000, v%d" % (vT + 2 * i, b + i, vT + 2 * i + 1, b + i))
                for i in range(4):
                    A("v_pk_mul_f32 %s, %s, %s" % (R("v", vT + 2 * i, 2), R("v", vT + 2 * i, 2), R("s", sC, 2)))
                for i in range(4):
                    A("v_cvt_pk_bf16_f32 v%d, v%d, v%d" % (vT + 8 + i, vT + 2 * i, vT + 2 * i + 1))
                for i in range(4):
                    A("v_accvgpr_write_b32 a%d, v%d" % (aQ(qb, f) + i, vT + 8 + i))
        s.stamp(2)
        A("s_waitcnt lgkmcnt(0)")
        for rep in range(s.prepass):
            for qb in range(4):
                for t in range(4): A(s.qk(rep, qb, t, zero=True))
                if qb & 1: issue(1)
            A("s_nop 4")
            for qb in range(4):
                S = vS(qb)
                A("v_max3_f32 v%d, v%d, v%d, v%d" % (vM(qb), vM(qb), S, S + 1))
            for qb in range(4):
                S = vS(qb)
                A("v_max3_f32 v%d, v%d, v%d, v%d" % (vM(qb), vM(qb), S + 2, S + 3))
        for sw in ("v_permlane32_swap_b32", "v_permlane16_swap_b32"):
            for qb in range(4): A("v_mov_b32 v%d, v%d" % (vT + qb, vM(qb)))
            for qb in range(4): A("%s v%d, v%d" % (sw, vT + qb, vM(qb)))
            for qb in range(4): A("v_max_f32 v%d, v%d, v%d" % (vM(qb), vM(qb), vT + qb))
            issue(1)
        issue(len(Q))
        A("s_mov_b32 s%d, %s" % (sT, f32(-s.bias)))
        for qb in range(4): A("v_sub_f32 v%d, s%d, v%d" % (vNM(qb), sT, vM(qb)))
        for qb in range(4):
            for i in range(1, 4): A("v_mov_b32 v%d, v%d" % (vNM(qb) + i, vNM(qb)))
        if s.novalu:
            for i in range(128): A("v_accvgpr_read_b32 v%d, a%d" % (128 + i, 128 + (i & 63)))
        if s.nolds:
            for t in range(4): A(s.kread(1, 0, 1, t))
            for bf in range(2):
                for r in range(8): A(s.vread(bf, 2, bf, r))
            A("s_waitcnt lgkmcnt(0)")
        if s.instr == 3: A("s_mov_b32 s76, 0")
        if s.instr == 4: A("s_mov_b32 s76, 0\ns_add_u32 s77, s40, 7000\ns_memrealtime s[74:75]\ns_waitcnt lgkmcnt(0)\ns_add_u32 s74, s74, 200\ns_mov_b32 s78, 0")
        A("s_nop 0")
        s.stamp(3)
        n0 = len(s.lines)
        for b in range(8): s.block(1, b, do_pv=False, first=True)
        if s.warm2: A("global_load_dword v39, v38, s[86:87]")
        s.lines = hazards.pad(s.lines)
        s.stamp(4)
        A(".p2align 6")
        A("L_loop:")
        n0 = len(s.lines)
        if s.tx: tc0 = list(s.tc)
        for b in range(8): s.block(0, b, last=(b == 7))
        A("s_cbranch_scc1 L_tail")
        if s.tx: tc1 = list(s.tc)
        n1 = len(s.lines)
        for b in range(8): s.block(1, b)
        if s.tx:
            assert s.tc == [x + 4 for x in tc0]
            s.tc = tc1
        body = s.lines[n0:]
        A("s_branch L_loop")
        A("L_tail:")
        n2 = len(s.lines)
        if s.peel:
            for eb in range(16): s.block(1 - (eb >> 3), eb & 7, eb=eb)
        s.stamp(5)
        assert s.sp and len(s.msum_qb) == 4
        def conv(n):
            qb, db = n & 3, n >> 2
            tb = vE + 6 * (n % 4)
            o = aO(qb, db)
            ops = ["v_accvgpr_read_b32 v%d, a%d" % (tb + i, o + i) for i in range(4)]
            ops += ["v_mul_f32 v%d, v%d, v%d" % (tb + i, tb + i, vT + qb) for i in range(4)]
            ops += ["v_cvt_pk_bf16_f32 v%d, v%d, v%d" % (tb + 4 + i, tb + 2 * i, tb + 2 * i + 1) for i in range(2)]
            return ops
        def owrite(n): return "ds_write_b64 v%d, %s offset:%d" % (vW + (n >> 2), R("v", vE + 6 * (n % 4) + 4, 2), (n & 3) * SLOT)
        def oread(h, qb, i):
            return "ds_read_b128 %s, v%d offset:%d" % (R("v", 128 + 32 * h + 8 * qb + 4 * i, 4), vOR, qb * SLOT + i * 2048 + ((h ^ i) * 128))
        def ostore(h, qb, i):
            return "buffer_store_dwordx4 %s, v%d, %s, s%d offen offset:%d %s" % (R("v", 128 + 32 * h + 8 * qb + 4 * i, 4), vOA, R("s", sO, 4), sQB + qb, i * 2048 + h * 128, s.st)
        def lfin(qb): return ["v_add_f32 v%d, v%d, v%d" % (vL(qb), vL(qb), vL(qb) + 1), "v_rcp_f32 v%d, v%d" % (vT + qb, vL(qb))]
        left = [s.sm_op(k, q, i, 1, 7) for g, k, q, i in sorted(s.sm_table(False)) if g >= 32]
        T = []
        m = s.msums(1, 0) + s.msums(1, 1) + s.msums(1, 2)
        for i, x in enumerate(m):
            T.append(x)
            if i == 0: T.append("s_mov_b32 s%d, %s" % (sT, f32(s.thr)))
            if i < len(left): T.append(left[i])
        sh = [[[] for k in range(4)] for n in range(32)]
        ds = [[[] for k in range(4)] for n in range(32)]
        va = [[[] for k in range(4)] for n in range(32)]
        for n in range(32):
            qb, db = n & 3, n >> 2
            if db < 7:
                for u in range(2): ds[n][2 * u].append(s.vread((db + 1) & 1, 2, db + 1, 2 * qb + u))
            if n >= 2:
                c = conv(n - 2)
                for k, (x, y) in enumerate(((0, 3), (3, 6), (6, 8), (8, 10))): va[n][k] += c[x:y]
            if n >= 3: ds[n][1].append(owrite(n - 3))
        sh[3][1].append("s_waitcnt vmcnt(2)")
        sh[5][1].append("s_waitcnt vmcnt(0)")
        for j, qb in enumerate((0, 1, 2)):
            x = lfin(qb); va[0 if j < 1 else 1][(2, 0, 2)[j]].append(x[0]); va[0 if j < 1 else 1][(3, 1, 3)[j]].append(x[1])
        x = lfin(3); va[3][2].append(x[0]); va[3][3].append(x[1])
        va[4][2].append("v_add_f32 v%d, v%d, v%d" % (vT + 5, vL(0), vL(1)))
        va[4][3].append("v_add_f32 v%d, v%d, v%d" % (vT + 6, vL(2), vL(3)))
        va[5][2].append("v_add_f32 v%d, v%d, v%d" % (vT + 5, vT + 5, vT + 6))
        va[5][3].append("v_cmp_nge_f32 vcc, s%d, v%d" % (sT, vT + 5))
        for j in range(8):
            ds[15 + j][3].append(oread(0, j >> 1, j & 1))
            ds[17 + j][2].append(ostore(0, j >> 1, j & 1))
        ds[31][2].append(oread(1, 0, 0)); ds[31][3].append(oread(1, 0, 1))
        for n in range(32):
            qb, db = n & 3, n >> 2
            for k in range(4):
                T.append(s.pv(db & 1, 1, qb, db, k))
                T += sh[n][k] + ds[n][k] + va[n][k]
            if n == 0: T += s.msums(1, 3)
            if s.tst and n in (3, 11, 19, 27, 31): T.append("s_memtime s[%d:%d]" % (48 + 2 * (3, 11, 19, 27, 31).index(n), 49 + 2 * (3, 11, 19, 27, 31).index(n)))
        T += [owrite(29), oread(1, 1, 0), oread(1, 1, 1)] + conv(30) + [ostore(1, 0, 0), ostore(1, 0, 1), owrite(30), oread(1, 2, 0), oread(1, 2, 1)]
        T += conv(31) + [ostore(1, 1, 0), ostore(1, 1, 1), owrite(31), oread(1, 3, 0), oread(1, 3, 1)]
        T += [ostore(1, 2, 0), ostore(1, 2, 1), ostore(1, 3, 0), ostore(1, 3, 1)]
        if s.newtail == 2: T = s.tail2()
        if s.newtail == 3: T = s.tail3()
        if s.nost: T = [x for x in T if not x.startswith("buffer_store")]
        for x in hazards.autowait(T): A(x)
        pre = s.lines[n0:n1]
        s.lines[n2:] = hazards.pad(pre + s.lines[n2:], start=len(pre))[len(pre):]
        s.stamp(6)
        if s.nodma or s.novalu or s.nolds: A("s_branch L_fin")
        A("s_cmp_lg_u32 s%d, 0\ns_cbranch_scc1 L_fin" % sPASS)
        A("s_cmp_lg_u64 vcc, 0\ns_cselect_b32 s%d, 1, 0" % sT)
        A("s_lshl_b32 s%d, s%d, 2\ns_add_u32 s%d, s%d, %d" % (sT + 1, sW, sT + 1, sT + 1, FLAG_OFF))
        A("v_mov_b32 v%d, s%d\nv_mov_b32 v%d, s%d\nv_mov_b32 v%d, %d" % (vT, sT, vT + 1, sT + 1, vT + 2, FLAG_OFF))
        A("ds_write_b32 v%d, v%d\ns_waitcnt lgkmcnt(0)\ns_barrier" % (vT + 1, vT))
        A("ds_read_b128 %s, v%d\ns_waitcnt lgkmcnt(0)" % (R("v", vT + 8, 4), vT + 2))
        A("v_or3_b32 v%d, v%d, v%d, v%d\nv_or_b32 v%d, v%d, v%d\ns_nop 1" % (vT, vT + 8, vT + 9, vT + 10, vT, vT, vT + 11))
        A("v_readfirstlane_b32 s%d, v%d\ns_nop 3\ns_cmp_eq_u32 s%d, 0\ns_cbranch_scc0 L_redo" % (sT, vT, sT))
        A("L_fin:")
        if s.dbg == -1:
            A("s_waitcnt vmcnt(0)")
            A("s_memrealtime s[42:43]\ns_memtime s[46:47]\ns_load_dwordx2 s[64:65], s[0:1], 32\ns_waitcnt lgkmcnt(0)")
            A("s_mov_b32 s68, s64\ns_mov_b32 s69, s65\ns_mov_b32 s70, 256\ns_mov_b32 s71, 0x20000")
            A("s_cmp_ge_u32 s2, 8\ns_cbranch_scc1 L_end\ns_cmp_lg_u32 s3, 0\ns_cbranch_scc1 L_end")
            A("s_lshl_b32 s36, s2, 2\nv_mov_b32 v3, s36\ns_mov_b64 exec, 1")
            A("s_sub_u32 s36, s42, s40\nv_mov_b32 v8, s36\ns_sub_u32 s36, s46, s44\nv_mov_b32 v9, s36")
            A("buffer_store_dword v8, v3, s[68:71], 0 offen\nbuffer_store_dword v9, v3, s[68:71], 0 offen offset:32")
        elif s.probe is not None:
            A("s_waitcnt vmcnt(0)")
            A("s_memrealtime s[42:43]\ns_memtime s[46:47]\ns_waitcnt lgkmcnt(0)")
            A("s_cmp_lg_u32 s2, %d\ns_cbranch_scc1 L_end" % s.probe[3])
            a, b, div = s.probe[:3]
            A("s_sub_u32 s36, s%d, s%d" % (a, b))
            if div == 10: A("s_mul_hi_u32 s36, s36, 429496730")
            if div == 0: A("s_mov_b32 s36, 0")
            if div == -1: A("s_mul_i32 s36, s36, 500")
            A("s_add_u32 s36, s36, 15000\ns_add_u32 s36, s36, s40")
            A("L_spin:\ns_sleep 4\ns_memrealtime s[42:43]\ns_waitcnt lgkmcnt(0)\ns_sub_u32 s37, s42, s36\ns_cmp_lt_i32 s37, 0\ns_cbranch_scc1 L_spin")
        elif s.stamps:
            A("s_waitcnt vmcnt(0)")
            A("s_memrealtime s[42:43]\ns_memtime s[46:47]\ns_getreg_b32 s62, hwreg(HW_REG_XCC_ID)\ns_mov_b32 s63, 0\ns_waitcnt lgkmcnt(0)")
            A("s_mov_b32 s68, s64\ns_mov_b32 s69, s65\ns_mov_b32 s70, 0x100000\ns_mov_b32 s71, 0x20000")
            A("s_lshl_b32 s37, s2, 2\ns_add_u32 s37, s37, s3\ns_mul_i32 s37, s37, 96\nv_mov_b32 v3, s37")
            if s.instr == 3:
                A("s_lshl_b32 s38, s2, 2\ns_add_u32 s38, s38, s3\ns_lshl_b32 s38, s38, 9\ns_add_u32 s38, s38, 0x20000\nv_lshlrev_b32 v4, 3, v0\nv_add_u32 v4, s38, v4")
                A("buffer_store_dwordx2 v[46:47], v4, s[68:71], 0 offen")
            for j, r in enumerate([40, 42, 44, 46] + list(range(48, 64, 2))):
                A("v_mov_b32 v8, s%d\nv_mov_b32 v9, s%d" % (r, r + 1))
                A("buffer_store_dwordx2 v[8:9], v3, s[68:71], 0 offen offset:%d" % (j * 8))
                A("s_nop 1")
        A("L_end:\ns_endpgm")
        A("L_redo:")
        A("s_mov_b32 s%d, 1\ns_mov_b32 s%d, 0" % (sPASS, sSOK))
        A("s_waitcnt vmcnt(0)")
        A("L_maxpass:")
        A("s_barrier")
        for x in group(True, 0): A(x)
        A("s_waitcnt vmcnt(0)\ns_barrier")
        for j in range(4):
            for t in range(4): A(s.kread(0, 0, j, t))
            A("s_waitcnt lgkmcnt(0)")
            for qb in range(4):
                for t in range(4): A(s.qk(0, qb, t, zero=True))
            A("s_nop 7")
            for qb in range(4):
                S = vS(qb)
                A("v_max3_f32 v%d, v%d, v%d, v%d" % (vM(qb), vM(qb), S, S + 1))
                A("v_max3_f32 v%d, v%d, v%d, v%d" % (vM(qb), vM(qb), S + 2, S + 3))
        if s.tmask: A("s_cmp_lg_u32 s%d, 0\ns_cbranch_scc1 L_maxpass" % sSOK)
        else: A("s_cmp_lt_u32 s%d, 0x80000\ns_cbranch_scc1 L_maxpass" % sSOK)
        A("s_barrier\ns_branch L_start")
        A("L_last:")
        A('.section .rodata,"a"\n.p2align 6\n.amdhsa_kernel %s' % KN)
        A("  .amdhsa_next_free_vgpr 512\n  .amdhsa_next_free_sgpr 102\n  .amdhsa_accum_offset 256\n  .amdhsa_group_segment_fixed_size 0\n  .amdhsa_kernarg_size 48\n  .amdhsa_user_sgpr_count 2\n  .amdhsa_user_sgpr_kernarg_segment_ptr 1\n  .amdhsa_system_sgpr_workgroup_id_x 1\n  .amdhsa_float_denorm_mode_32 3\n.end_amdhsa_kernel")
        vb = not (s.nodma or s.novalu or s.nolds)
        errs = hazards.check(s.lines[:n2], "linear", vb) + hazards.check(body + body, "loop", vb) + hazards.check(s.lines[n0:n1] + s.lines[n2:], "tail", vb)
        return "\n".join(s.lines) + "\n", errs

def gen(name, **kw):
    txt, errs = Gen(**kw).build()
    open(name, "w").write(txt)
    return errs

if __name__ == "__main__":
    import ast
    name = sys.argv[1]
    kw = {}
    for a in sys.argv[2:]:
        k, v = a.split("=", 1)
        try: kw[k] = ast.literal_eval(v)
        except Exception: kw[k] = v
    e = gen(name, **kw)
    print(name, "hazards:", len(e))
```
